```python
import torch

def _softmax(x, axis=-1):
    return torch.softmax(x, dim=axis)
def _gelu(x):
    return torch.nn.functional.gelu(x, approximate="tanh")
def _silu(x):
    return torch.nn.functional.silu(x)
def _sigmoid(x):
    return torch.sigmoid(x)
def _layernorm(x, axis=-1, eps=1e-5):
    m = x.mean(dim=axis, keepdim=True)
    v = x.var(dim=axis, keepdim=True, unbiased=False)
    return (x - m) / torch.sqrt(v + eps)
def _scatter_add(tgt, idx, src, axis=0):
    return tgt.clone().index_add_(axis, idx, src)
def _segment_sum(src, seg, n):
    out = torch.zeros((n,) + src.shape[1:], dtype=src.dtype)
    return out.index_add_(0, seg, src)
def _pad(x, pw):
    flat = tuple(v for pair in reversed(pw) for v in pair)
    return torch.nn.functional.pad(x, flat)

kernel_name = 'parallel_sum__sliding_local_dilated__dense_activation_relu__prompt'

def setup_inputs():

    _w = (lambda a: (lambda t: t.to(torch.bfloat16) if t.is_floating_point() else t)(torch.as_tensor(a)))
    def _A_setup():
        B, S, D = 1, 2048, 512
        return {
            "x": _w((lambda *s: torch.randn(*s, dtype=torch.bfloat16) * 0.05)(B, S, D)),
            "wqkv": _w((lambda *s: torch.randn(*s, dtype=torch.bfloat16) * 0.05)(D, 3 * D)),
            "wo": _w((lambda *s: torch.randn(*s, dtype=torch.bfloat16) * 0.05)(D, D)),
        }
    _A_in = _A_setup()

    def _B_setup():
        B, S, D, Dff = 1, 2048, 512, 1376
        return {
            "x": _w((lambda *s: torch.randn(*s, dtype=torch.bfloat16) * 0.05)(B, S, D)),
            "w1": _w((lambda *s: torch.randn(*s, dtype=torch.bfloat16) * 0.05)(D, Dff)),
            "w2": _w((lambda *s: torch.randn(*s, dtype=torch.bfloat16) * 0.05)(Dff, D)),
        }
    _B_in = _B_setup()

    return {
        "A_x": _A_in["x"],
        "A_wqkv": _A_in["wqkv"],
        "A_wo": _A_in["wo"],
        "B_x": _B_in["x"],
        "B_w1": _B_in["w1"],
        "B_w2": _B_in["w2"],
    }

def reference(A_x, A_wqkv, A_wo, B_x, B_w1, B_w2):
    def _A_ref(x, wqkv, wo):
        B, S, D = x.shape
        H = 32; Dh = D // H
        W, dil = 8, 2
        qkv = (lambda x, *d: x.permute(*d))((x @ wqkv).reshape(B, S, 3, H, Dh), 2, 0, 3, 1, 4)
        q, k, v = qkv[0], qkv[1], qkv[2]
        scale = Dh ** -0.5
        pos = torch.arange(S)
        off = torch.arange(W) * dil
        idx = pos[:, None] - off[None, :]
        mask = idx >= 0
        idx_c = torch.where(mask, idx, 0).reshape(-1)
        kg = k[:, :, idx_c, :].reshape(B, H, S, W, Dh)
        vg = v[:, :, idx_c, :].reshape(B, H, S, W, Dh)
        logits = torch.einsum("bhsd,bhswd->bhsw", q, kg) * scale
        logits = torch.where(mask[None, None, :, :], logits, -1e9)
        attn = _softmax(logits, axis=-1)
        o = torch.einsum("bhsw,bhswd->bhsd", attn, vg)
        return (lambda x, *d: x.permute(*d))(o, 0, 2, 1, 3).reshape(B, S, D) @ wo

    def _B_ref(x, w1, w2):
        h = torch.einsum("bsd,df->bsf", x, w1)
        zero = torch.zeros_like(h)
        h = torch.maximum(h, zero)
        return torch.einsum("bsf,fd->bsd", h, w2)

    x = A_x
    xn = _layernorm(x, axis=-1)
    return x + _A_ref(xn, A_wqkv, A_wo) + _B_ref(xn, B_w1, B_w2)
```

```python
import re

REG_RE = re.compile(r'^([vas])(\d+)$')
RNG_RE = re.compile(r'^([vas])\[(\d+):(\d+)\]$')

TRANS = ('v_exp_f32', 'v_log_f32', 'v_rcp_f32', 'v_rsq_f32', 'v_sqrt_f32', 'v_sin_f32', 'v_cos_f32')


def regs_of(tok):
    tok = tok.strip()
    m = REG_RE.match(tok)
    if m:
        return [(m.group(1), int(m.group(2)))]
    m = RNG_RE.match(tok)
    if m:
        return [(m.group(1), i) for i in range(int(m.group(2)), int(m.group(3)) + 1)]
    if tok == 'vcc':
        return [('s', 'vcc')]
    if tok in ('exec', 'exec_lo', 'exec_hi'):
        return [('s', 'exec')]
    if tok == 'm0':
        return [('s', 'm0')]
    return []


class Ins:
    __slots__ = ('text', 'op', 'kind', 'w', 'r', 'region', 'tag', 'srcc', 'srcab', 'dpp', 'states',
                 'lds_dma', 'comment', 'wide_store', 'label', 'raw')

    def __init__(self, text, region=None, tag=None):
        self.text = text
        self.region = region
        self.tag = tag
        self.w = []
        self.r = []
        self.srcc = []
        self.srcab = []
        self.dpp = False
        self.states = 1
        self.lds_dma = False
        self.wide_store = False
        self.label = False
        self.raw = False
        self.parse()

    def parse(self):
        t = self.text.split(';')[0].strip()
        if t.endswith(':'):
            self.kind = 'label'
            self.op = t
            self.states = 0
            self.label = True
            return
        parts = t.split(None, 1)
        op = parts[0]
        self.op = op
        rest = parts[1] if len(parts) > 1 else ''
        ops = []
        depth = 0
        cur = ''
        for ch in rest:
            if ch == '[':
                depth += 1
            if ch == ']':
                depth -= 1
            if ch == ',' and depth == 0:
                ops.append(cur.strip())
                cur = ''
            else:
                cur += ch
        if cur.strip():
            ops.append(cur.strip())
        mods = ''
        if ops:
            lp = ops[-1].split(None, 1)
            ops[-1] = lp[0]
            if len(lp) > 1:
                mods = lp[1]
        R = lambda i: regs_of(ops[i]) if i < len(ops) else []
        if op.startswith('v_mfma'):
            self.kind = 'mfma'
            self.w = R(0)
            self.srcab = R(1) + R(2)
            self.srcc = R(3)
            self.r = self.srcab + self.srcc
        elif op.startswith('v_'):
            self.kind = 'valu'
            if op.startswith('v_dot2'):
                self.kind = 'dot'
            if op.split('_e32')[0].split('_e64')[0] in TRANS:
                self.kind = 'trans'
            self.dpp = ('row_' in mods) or ('quad_perm' in mods) or op.endswith('_dpp')
            if op.startswith('v_permlane'):
                self.kind = 'permlane'
                self.w = R(0) + R(1)
                self.r = R(0) + R(1)
            elif op.startswith('v_readfirstlane') or op.startswith('v_readlane'):
                self.kind = 'readlane'
                self.w = R(0)
                self.r = R(1) + R(2)
            else:
                self.w = R(0)
                for i in range(1, len(ops)):
                    self.r += R(i)
                if op.startswith('v_fmac') or op.startswith('v_pk_fmac') or self.dpp:
                    self.r += R(0)
        elif op.startswith('ds_'):
            self.kind = 'ds'
            if op.startswith('ds_read') or op.startswith('ds_bpermute'):
                self.w = R(0)
                self.r = R(1)
            else:
                for i in range(len(ops)):
                    self.r += R(i)
        elif op.startswith('buffer_'):
            self.kind = 'vmem'
            allm = ' ' + mods + ' '
            if op.startswith('buffer_load'):
                if ' lds ' in allm:
                    self.lds_dma = True
                    for i in range(len(ops)):
                        self.r += R(i)
                    self.r += [('s', 'm0')]
                else:
                    self.w = R(0)
                    for i in range(1, len(ops)):
                        self.r += R(i)
            else:
                for i in range(len(ops)):
                    self.r += R(i)
                if op.endswith('x4') or op.endswith('x3'):
                    self.wide_store = True
        elif op.startswith('s_'):
            self.kind = 'salu'
            if op == 's_nop':
                self.kind = 'nop'
                self.states = int(ops[0], 0) + 1
            elif op == 's_waitcnt':
                self.kind = 'wait'
            elif op in ('s_barrier', 's_endpgm', 's_branch', 's_setprio') or op.startswith('s_cbranch'):
                self.kind = 'ctl'
            elif op.startswith('s_load') or op.startswith('s_buffer_load'):
                self.kind = 'smem'
                self.w = R(0)
                self.r = R(1)
            elif op.startswith('s_cmp') or op.startswith('s_bitcmp'):
                for i in range(len(ops)):
                    self.r += R(i)
            elif op in ('s_memtime', 's_memrealtime'):
                self.kind = 'smem'
                self.w = R(0)
            else:
                self.w = R(0)
                for i in range(1, len(ops)):
                    self.r += R(i)
                if 'saveexec' in op:
                    self.w += [('s', 'exec')]
        else:
            raise ValueError('unknown instruction: ' + t)


class Builder:
    def __init__(self):
        self.ins = []
        self.region = None
        self._rid = 0
        self._lid = 0
        self.vmq = []
        self.lgq = []
        self.smem_pending = []

    def label_name(self, base):
        self._lid += 1
        return '%s_%d' % (base, self._lid)

    def begin_region(self):
        self._rid += 1
        self.region = self._rid
        return self.region

    def end_region(self):
        self.region = None

    def comment(self, s):
        i = Ins('s_nop 0')
        i.kind = 'comment'
        i.text = '; ' + s
        i.states = 0
        i.w = []
        i.r = []
        self.ins.append(i)

    def _count_younger(self, q, idx):
        tgt = q[idx]
        n = 0
        for e in q[idx + 1:]:
            if e['region'] is None or e['region'] == tgt['region'] and e['region'] == self.region:
                n += 1
        return n

    def _emit_wait(self, vm=None, lg=None):
        parts = []
        if vm is not None:
            parts.append('vmcnt(%d)' % min(vm, 63))
        if lg is not None:
            parts.append('lgkmcnt(%d)' % min(lg, 15))
        if parts:
            i = Ins('s_waitcnt ' + ' '.join(parts), region=self.region)
            self.ins.append(i)

    def _need(self, q, pred):
        idx = None
        for k, e in enumerate(q):
            if pred(e):
                idx = k
        return idx

    def _retire(self, q, idx):
        if self.region is None:
            del q[:idx + 1]
        else:
            keep = [e for e in q[:idx + 1] if e['region'] != self.region]
            q[:idx + 1] = keep

    def wait_vm(self, *tags):
        idx = self._need(self.vmq, lambda e: e['tag'] in tags)
        if idx is None:
            return
        n = self._count_younger(self.vmq, idx)
        self._emit_wait(vm=n)
        self._retire(self.vmq, idx)

    def wait_lg(self, *tags):
        idx = self._need(self.lgq, lambda e: (not tags) or e['tag'] in tags)
        if idx is None:
            return
        n = self._count_younger(self.lgq, idx)
        self._emit_wait(lg=n)
        self._retire(self.lgq, idx)

    def wait_all(self, vm=True, lg=True):
        self._emit_wait(vm=0 if vm else None, lg=0 if lg else None)
        if self.region is None:
            if vm:
                self.vmq = []
            if lg:
                self.lgq = []
                self.smem_pending = []

    def __call__(self, text, tag=None):
        for line in text.split('\n'):
            line = line.strip()
            if not line:
                continue
            if line.startswith(';'):
                self.comment(line[1:].strip())
                continue
            self._one(line, tag)

    def _one(self, line, tag):
        i = Ins(line, region=self.region, tag=tag)
        if i.kind == 'wait':
            m = re.search(r'vmcnt\((\d+)\)', line)
            if m and self.region is not None and int(m.group(1)) == 0:
                self.vmq = [e for e in self.vmq if e['region'] != self.region]
            if m and self.region is None:
                n = int(m.group(1))
                while len([e for e in self.vmq if e['region'] is None]) > n or (n == 0 and self.vmq):
                    self.vmq.pop(0)
            m = re.search(r'lgkmcnt\((\d+)\)', line)
            if m and self.region is not None and int(m.group(1)) == 0:
                self.lgq = [e for e in self.lgq if e['region'] != self.region]
            if m and self.region is None:
                n = int(m.group(1))
                while len([e for e in self.lgq if e['region'] is None]) > n or (n == 0 and self.lgq):
                    self.lgq.pop(0)
                if n == 0:
                    self.smem_pending = []
            self.ins.append(i)
            return
        touched = set(i.r) | set(i.w)
        vm = lg = None
        if touched:
            idx = self._need(self.vmq, lambda e: e['regs'] & touched)
            if idx is not None:
                vm = self._count_younger(self.vmq, idx)
                self._retire(self.vmq, idx)
            idx = self._need(self.lgq, lambda e: e['regs'] & touched)
            if idx is not None:
                lg = self._count_younger(self.lgq, idx)
                self._retire(self.lgq, idx)
            if set(self.smem_pending) & touched:
                lg = 0
                if self.region is None:
                    self.smem_pending = []
                    self.lgq = []
        self._emit_wait(vm, lg)
        self.ins.append(i)
        if i.kind == 'vmem':
            self.vmq.append(dict(regs=set(i.w), tag=tag, region=self.region))
        elif i.kind == 'ds':
            assert not self.smem_pending, 'LDS op with scalar load in flight: ' + line
            self.lgq.append(dict(regs=set(i.w), tag=tag, region=self.region))
        elif i.kind == 'smem':
            self.smem_pending += i.w

    def finalize(self):
        out = []
        for ins in self.ins:
            need = self._hazard(out, ins)
            while need > 0:
                n = min(need, 8)
                nop = Ins('s_nop %d' % (n - 1), region=ins.region)
                out.append(nop)
                need -= n
            out.append(ins)
        self.ins = out
        return out

    @staticmethod
    def _isv(regs):
        return [x for x in regs if x[0] in 'va']

    def _hazard(self, out, c):
        if c.kind in ('label', 'comment', 'nop', 'wait'):
            return 0
        need = 0
        dist = 0
        cr = set(c.r)
        cw = set(c.w)
        crw = cr | cw
        valu_like = c.kind in ('valu', 'trans', 'dot', 'permlane', 'readlane')
        k = len(out) - 1
        while k >= 0 and dist < 24:
            p = out[k]
            k -= 1
            if p.kind in ('label', 'comment'):
                continue
            req = 0
            pw = set(p.w)
            p_valu = p.kind in ('valu', 'trans', 'dot', 'permlane', 'readlane')
            if p.kind == 'mfma':
                d = pw
                if c.kind == 'mfma':
                    if d & set(c.srcab):
                        req = max(req, 8)
                    cc = set(c.srcc)
                    if d & cc and cc != d:
                        req = max(req, 6)
                    if d & cw and not (d & cc):
                        req = max(req, 8)
                elif d & crw and c.kind in ('valu', 'trans', 'dot', 'permlane', 'readlane', 'ds', 'vmem'):
                    req = max(req, 8)
                if valu_like and set(p.srcc) & cw:
                    req = max(req, 3)
            if p_valu:
                pv = {x for x in pw if x[0] in 'va'}
                ps = {x for x in pw if x[0] == 's'}
                if c.kind == 'mfma' and pv & cr:
                    req = max(req, 2)
                if (c.dpp or c.kind == 'permlane') and pv & cr:
                    req = max(req, 2)
                if c.kind == 'readlane' and pv & cr:
                    req = max(req, 1)
                if ps and valu_like and ps & cr:
                    req = max(req, 4 if c.kind == 'readlane' else 2)
                if ps and c.kind == 'vmem' and ps & cr:
                    req = max(req, 5)
                if p.kind == 'trans' and valu_like and pv & cr:
                    req = max(req, 1)
                if p.kind == 'dot' and pv & crw and (valu_like or c.kind in ('mfma', 'ds', 'vmem')):
                    if not (c.kind == 'dot' and c.op == p.op and self._dot_chain(p, c)):
                        req = max(req, 3)
            if p.kind == 'salu' and ('s', 'm0') in pw and c.lds_dma:
                req = max(req, 1)
            if p.kind == 'vmem' and p.wide_store:
                data = {x for x in p.r if x[0] in 'va'}
                if data & cw:
                    req = max(req, 2)
            if req > dist:
                need = max(need, req - dist)
            if p.region is None or p.region == c.region:
                dist += p.states
            else:
                dist += self._opt_states(out, k + 1, p)
        return need

    @staticmethod
    def _opt_states(out, k, p):
        return 0

    @staticmethod
    def _dot_chain(p, c):
        t = c.text.split(';')[0]
        ops = [o.strip() for o in t.split(None, 1)[1].split(',')]
        a = set(regs_of(ops[1])) | set(regs_of(ops[2].split()[0]))
        return not (a & set(p.w))

    def text(self):
        lines = []
        for i in self.ins:
            if i.kind == 'label':
                lines.append(i.text)
            elif i.kind == 'comment':
                lines.append('    ' + i.text)
            else:
                lines.append('    ' + i.text)
        return '\n'.join(lines) + '\n'
```

```python
import copy
import sys
from asmb import Builder

NAME = 'parallel_sum__sliding_local_dilated__dense_activation_relu__prompt'

OPT = dict(profile=False, poll_limit=4000)

SLOT0, SLOT, WOFF = 1024, 43008, 18432
ST = 132096
STR = 576
OX = 134144
SX = 150528
W2S = 1024
LDS_BYTES = 163840

WS_STATS, WS_D, WS_TS, H_OFF = 0, 32768, 65536, 131072
NKS = 59
WS_BYTES = H_OFF + 128 * NKS * 1024

X_, W_, WS_, DBG_, W2_, WO_, OUT_ = 4, 8, 12, 16, 20, 24, 28
sW, sRB, sGRP, sROLE = 32, 33, 34, 35
sWOFF = 36
sXOFF, sXL, sWL, sHL, sWSTEP, sC = 42, 43, 44, 45, 46, 47
sT0, sT1, sT2, sT3 = 54, 55, 56, 57
sNON = 58
sP, sC0, sC1, sZ = 60, 62, 64, 66
sRT, sCT = 68, 69
sHB = 70
sT4, sCNT = 74, 75
sTS = 76
sTH, sNP = 100, 101


def srd(n):
    return 's[%d:%d]' % (n, n + 3)


def vr(a, n=1):
    return 'v%d' % a if n == 1 else 'v[%d:%d]' % (a, a + n - 1)


def ar(a, n=1):
    return 'a%d' % a if n == 1 else 'a[%d:%d]' % (a, a + n - 1)


def sr(a, n=1):
    return 's%d' % a if n == 1 else 's[%d:%d]' % (a, a + n - 1)


vONES = 212
vXA, vXB, vWA, vWB = 216, 217, 218, 219
vDX = 220
vDH, vDW = 224, 225
vSO, vG, vGL = 226, 227, 238
vGR = 228
vLD = 232
vROW = 200
vNON = 236
vL = 239
T = 240

MF = 'v_mfma_f32_16x16x32_bf16'
MF16 = 'v_mfma_f32_16x16x16_bf16'


class Gen:
    def __init__(self):
        self.b = Builder()
        self.nts = 0

    def ts(self, idx):
        if not OPT['profile']:
            return
        b = self.b
        b.wait_lg()
        b('s_memrealtime %s' % sr(sTS + 2 * idx, 2))
        b('s_waitcnt lgkmcnt(0)')

    def save(self):
        b = self.b
        return copy.deepcopy((b.vmq, b.lgq, b.smem_pending))

    def restore(self, st):
        b = self.b
        b.vmq, b.lgq, b.smem_pending = copy.deepcopy(st)

    def interleave(self, mf, slots):
        b = self.b
        for i, m in enumerate(mf):
            if callable(m):
                m()
            else:
                b(m)
            if i < len(slots):
                for t, tag in slots[i]:
                    b(t, tag=tag)
        for s in slots[len(mf):]:
            for t, tag in s:
                b(t, tag=tag)

    def poll_loop(self, load_text, check, name):
        b = self.b
        ok = b.label_name(name + '_ok')
        again = b.label_name(name + '_again')
        check()
        b('s_cbranch_scc1 %s' % ok)
        b.begin_region()
        b('s_mov_b32 %s, 0' % sr(sCNT))
        b(again + ':')
        b('s_sleep 1')
        b(load_text)
        b('s_waitcnt vmcnt(0)')
        check()
        b('s_cbranch_scc1 %s' % ok)
        b('s_add_u32 %s, %s, 1' % (sr(sCNT), sr(sCNT)))
        b('s_cmp_lt_u32 %s, %d' % (sr(sCNT), OPT['poll_limit']))
        b('s_cbranch_scc1 %s' % again)
        b.end_region()
        b(ok + ':')

    def prologue(self):
        b = self.b
        b('s_cmp_ge_u32 s2, 256')
        b('s_cbranch_scc1 L_end')
        b('s_load_dwordx16 s[36:51], s[0:1], 0')
        b('s_load_dwordx2 s[52:53], s[0:1], 64')
        b('s_memrealtime %s' % sr(sNON, 2))
        t = T
        vl, vL3, vL7, vg, vn = vL, t + 1, t + 2, t + 3, t + 4
        a, c = t + 5, t + 6
        b('v_and_b32 %s, 63, v0' % vr(vl))
        b('v_lshrrev_b32 %s, 6, v0' % vr(a))
        b('v_lshrrev_b32 %s, 3, %s' % (vr(vL3), vr(vl)))
        b('v_readfirstlane_b32 %s, %s' % (sr(sW), vr(a)))
        b('v_and_b32 %s, 7, %s' % (vr(vL7), vr(vl)))
        b('v_lshrrev_b32 %s, 4, %s' % (vr(vg), vr(vl)))
        b('v_and_b32 %s, 15, %s' % (vr(vn), vr(vl)))
        b('s_and_b32 s54, s2, 7')
        b('s_lshr_b32 s55, s2, 3')
        b('s_and_b32 s56, s54, 1')
        b('s_lshl_b32 s56, s56, 3')
        b('s_lshr_b32 s57, s55, 2')
        b('s_add_u32 %s, s56, s57' % sr(sRB))
        b('s_lshr_b32 %s, s55, 1' % sr(sROLE))
        b('s_and_b32 %s, %s, 1' % (sr(sROLE), sr(sROLE)))
        b('s_and_b32 s56, s54, 6')
        b('s_and_b32 s57, s55, 1')
        b('s_add_u32 %s, s56, s57' % sr(sGRP))
        b('s_lshl_b32 s56, s54, 2')
        b('s_lshr_b32 s57, s55, 3')
        b('s_add_u32 %s, s56, s57' % sr(sRT))
        b('s_and_b32 %s, s55, 7' % sr(sCT))
        b('s_lshr_b32 s54, %s, 1' % sr(sGRP))
        b('s_mul_i32 s54, s54, 11')
        b('s_and_b32 s55, %s, 1' % sr(sGRP))
        b('s_mul_i32 s56, s55, 6')
        b('s_add_u32 s54, s54, s56')
        b('s_cmp_eq_u32 %s, 7' % sr(sGRP))
        b('s_subb_u32 s74, s54, 0')
        b('s_cmp_eq_u32 %s, 6' % sr(sGRP))
        b('s_cselect_b32 s56, 1, s55')
        b('s_sub_u32 %s, 6, s56' % sr(sNP))
        b('s_lshl_b32 s54, %s, 7' % sr(sRB))
        b('s_lshl_b32 s55, %s, 5' % sr(sW))
        b('s_add_u32 s55, s55, s54')
        b('v_add_u32 %s, s55, %s' % (vr(a), vr(vL3)))
        b('v_xor_b32 %s, %s, %s' % (vr(c), vr(vL7), vr(vg)))
        b('v_lshlrev_b32 %s, 4, %s' % (vr(c), vr(c)))
        b('v_lshl_add_u32 %s, %s, 10, %s' % (vr(vDX), vr(a), vr(c)))
        b('v_add_u32 %s, 0x2000, %s' % (vr(vDX + 1), vr(vDX)))
        b('v_xor_b32 %s, 64, %s' % (vr(vDX + 1), vr(vDX + 1)))
        b('v_add_u32 %s, 0x4000, %s' % (vr(vDX + 2), vr(vDX)))
        b('v_add_u32 %s, 0x4000, %s' % (vr(vDX + 3), vr(vDX + 1)))
        b('s_lshl_b32 s55, %s, 2' % sr(sW))
        b('s_add_u32 s55, s55, s54')
        b('s_sub_u32 s55, s55, 16')
        b('v_add_u32 %s, s55, %s' % (vr(a), vr(vL3)))
        b('v_max_i32 %s, 0, %s' % (vr(a), vr(a)))
        b('s_lshl_b32 s56, %s, 1' % sr(sW))
        b('v_add_u32 %s, s56, %s' % (vr(c), vr(vg)))
        b('v_xor_b32 %s, %s, %s' % (vr(c), vr(vL7), vr(c)))
        b('v_and_b32 %s, 7, %s' % (vr(c), vr(c)))
        b('v_lshlrev_b32 %s, 4, %s' % (vr(c), vr(c)))
        b('v_lshl_add_u32 %s, %s, 10, %s' % (vr(vDH), vr(a), vr(c)))
        b('s_lshl_b32 s55, %s, 3' % sr(sROLE))
        b('s_add_u32 s55, s55, %s' % sr(sGRP))
        b('s_lshl_b32 s55, s55, 3')
        b('s_add_u32 s55, s55, s54')
        b('s_lshl_b32 s56, %s, 1' % sr(sW))
        b('s_add_u32 s55, s55, s56')
        b('v_lshrrev_b32 %s, 5, %s' % (vr(a), vr(vl)))
        b('v_add_u32 %s, s55, %s' % (vr(a), vr(a)))
        b('v_lshlrev_b32 %s, 4, %s' % (vr(vSO), vr(a)))
        b('v_and_b32 %s, 31, %s' % (vr(c), vr(vl)))
        b('v_lshlrev_b32 %s, 4, %s' % (vr(c), vr(c)))
        b('v_lshl_add_u32 %s, %s, 10, %s' % (vr(t + 7), vr(a), vr(c)))
        b('s_and_b32 s55, %s, 1' % sr(sW))
        b('s_lshl_b32 s55, s55, 4')
        b('s_lshr_b32 s56, %s, 1' % sr(sW))
        b('s_lshl_b32 s56, s56, 2')
        b('s_add_u32 s55, s55, s56')
        b('v_lshrrev_b32 %s, 5, %s' % (vr(a), vr(vl)))
        b('v_lshlrev_b32 %s, 3, %s' % (vr(a), vr(a)))
        b('v_and_b32 %s, 3, %s' % (vr(c), vr(vL3)))
        b('v_add3_u32 %s, %s, %s, s55' % (vr(a), vr(a), vr(c)))
        b('v_lshlrev_b32 %s, 1, %s' % (vr(c), vr(vg)))
        b('v_xor_b32 %s, %s, %s' % (vr(c), vr(vL7), vr(c)))
        b('v_lshlrev_b32 %s, 4, %s' % (vr(c), vr(c)))
        b('s_cmp_eq_u32 %s, 0' % sr(sROLE))
        b('s_mov_b32 s56, 2752')
        b('s_cselect_b32 s56, 3072, s56')
        b('s_lshl_b32 s57, %s, 7' % sr(sGRP))
        b('s_lshl_b32 s54, s74, 6')
        b('s_cmp_eq_u32 %s, 0' % sr(sROLE))
        b('s_cselect_b32 s57, s57, s54')
        b('s_mov_b32 s55, 128')
        b('s_cselect_b32 s55, 1024, s55')
        b('v_add_u32 %s, s57, %s' % (vr(c), vr(c)))
        b('v_mad_u32_u24 %s, %s, s56, %s' % (vr(vDW), vr(a), vr(c)))
        b('s_waitcnt lgkmcnt(0)')
        b('s_mov_b32 s4, s36')
        b('s_mov_b32 s5, s37')
        b('s_mov_b32 s6, 0x200000')
        b('s_mov_b32 s7, 0x20000')
        b('s_cmp_eq_u32 %s, 0' % sr(sROLE))
        b('s_cselect_b32 s8, s38, s44')
        b('s_cselect_b32 s9, s39, s45')
        b('s_mov_b32 s10, %d' % (512 * 2752))
        b('s_cselect_b32 s10, %d, s10' % (512 * 3072))
        b('s_mov_b32 s11, 0x20000')
        b('s_mov_b32 s12, s52')
        b('s_mov_b32 s13, s53')
        b('s_mov_b32 s14, %d' % WS_BYTES)
        b('s_mov_b32 s15, 0x20000')
        b('s_mov_b32 s16, s50')
        b('s_mov_b32 s17, s51')
        b('s_mov_b32 s18, 256')
        b('s_mov_b32 s19, 0x20000')
        b('buffer_load_dwordx4 %s, %s, %s, 0 offen' % (vr(vROW, 4), vr(t + 7), srd(X_)), tag='srow')
        b('buffer_load_dwordx4 %s, %s, %s, 0 offen offset:512' % (vr(vROW + 4, 4), vr(t + 7), srd(X_)), tag='srow')
        b('s_mov_b32 s20, s46')
        b('s_mov_b32 s21, s47')
        b('s_mov_b32 s22, %d' % (1376 * 1024))
        b('s_mov_b32 s23, 0x20000')
        b('s_mov_b32 s24, s40')
        b('s_mov_b32 s25, s41')
        b('s_mov_b32 s26, %d' % (512 * 1024))
        b('s_mov_b32 s27, 0x20000')
        b('s_mov_b32 s28, s48')
        b('s_mov_b32 s29, s49')
        b('s_mov_b32 s30, 0x200000')
        b('s_mov_b32 s31, 0x20000')
        lab = b.label_name('L_nopub')
        b('s_lshl_b32 s54, s2, 2')
        b('s_or_b32 s54, s54, %s' % sr(sW))
        b('s_cmp_lg_u32 s54, 0')
        b('s_cbranch_scc1 %s' % lab)
        b.begin_region()
        b('s_or_b32 %s, %s, 1' % (sr(sNON), sr(sNON)))
        b('v_mov_b32 %s, %s' % (vr(vGR), sr(sNON)))
        b('v_mov_b32 %s, %s' % (vr(vGR + 1), sr(sNON + 1)))
        b('s_mov_b64 exec, 1')
        b('buffer_store_dwordx2 %s, off, %s, 0 sc1' % (vr(vGR, 2), srd(DBG_)))
        b('s_mov_b64 exec, -1')
        b.end_region()
        b(lab + ':')
        b('s_mov_b32 s36, 0')
        b('s_mov_b32 s37, s55')
        b('s_lshl_b32 s38, s55, 1')
        b('s_lshl_b32 s39, s56, 5')
        b('s_add_u32 s40, s39, s37')
        b('s_add_u32 s41, s39, s38')
        b('s_lshl_b32 %s, s56, 6' % sr(sWSTEP))
        b('s_mov_b32 %s, 0' % sr(sXOFF))
        b('s_lshl_b32 s54, %s, 12' % sr(sW))
        b('s_add_u32 %s, s54, %d' % (sr(sXL), SLOT0 + 2048))
        b('s_mul_i32 s54, %s, 6144' % sr(sW))
        b('s_add_u32 %s, s54, %d' % (sr(sWL), SLOT0 + WOFF))
        b('s_lshl_b32 s54, %s, 9' % sr(sW))
        b('s_add_u32 %s, s54, %d' % (sr(sHL), SLOT0))
        self.pv = dict(l=vl, L3=vL3, L7=vL7, g=vg, n=vn, a=a, c=c)
        if OPT['profile']:
            b('s_memrealtime %s' % sr(sTS, 2))
            b('s_waitcnt lgkmcnt(0)')

    def dma_items(self, att, s):
        slot = SLOT * (s % 3)
        tag = 'st%d' % s
        items = []
        for j in range(4):
            items.append(([('s_add_u32 m0, %s, %d' % (sr(sXL), slot + j * 1024), None)],
                          [('buffer_load_dwordx4 %s, %s, %s offen lds' % (vr(vDX + j), srd(X_), sr(sXOFF)), tag)]))
        if att:
            items.append(([('s_add_u32 m0, %s, %d' % (sr(sHL), slot), None)],
                          [('s_mov_b32 exec_hi, 0', None),
                           ('buffer_load_dwordx4 %s, %s, %s offen lds' % (vr(vDH), srd(X_), sr(sXOFF)), tag),
                           ('s_mov_b32 exec_hi, -1', None)]))
        for bb in range(2):
            for p in range(3):
                items.append(([('s_add_u32 m0, %s, %d' % (sr(sWL), slot + (3 * bb + p) * 1024), None)],
                              [('buffer_load_dwordx4 %s, %s, %s offen lds' % (vr(vDW), srd(W_), sr(sWOFF + 3 * bb + p)), tag)]))
        tail = [('v_add_u32 %s, %s, %s' % (vr(vDW), sr(sWSTEP), vr(vDW)), None),
                ('s_add_u32 %s, %s, 128' % (sr(sXOFF), sr(sXOFF)), None)]
        return items, tail

    def dma_now(self, att, s):
        b = self.b
        items, tail = self.dma_items(att, s)
        for pre, ld in items:
            for t, tag in pre + ld:
                b(t, tag=tag)
        for t, tag in tail:
            b(t, tag=tag)

    @staticmethod
    def dma_slots(items, tail):
        slots = []
        prev = None
        for pre, ld in items:
            slots.append((prev or []) + pre)
            prev = ld
        slots.append((prev or []) + tail)
        return slots

    def stats_compute(self):
        b = self.b
        t = T
        s0, s1, q0, q1, cp = t + 8, t + 9, t + 10, t + 11, t + 12
        one = vONES
        for i in range(8):
            x = vr(vROW + i)
            sa = vr(s0 if i % 2 == 0 else s1)
            qa = vr(q0 if i % 2 == 0 else q1)
            b('v_dot2_f32_bf16 %s, %s, %s, %s' % (sa, x, vr(one), sa if i >= 2 else '0'))
            b('v_dot2_f32_bf16 %s, %s, %s, %s' % (qa, x, x, qa if i >= 2 else '0'))
        b('v_add_f32 %s, %s, %s' % (vr(s0), vr(s0), vr(s1)))
        b('v_add_f32 %s, %s, %s' % (vr(q0), vr(q0), vr(q1)))
        for sh in (8, 4, 2, 1):
            b('v_add_f32_dpp %s, %s, %s row_ror:%d row_mask:0xf bank_mask:0xf' % (vr(s0), vr(s0), vr(s0), sh))
            b('v_add_f32_dpp %s, %s, %s row_ror:%d row_mask:0xf bank_mask:0xf' % (vr(q0), vr(q0), vr(q0), sh))
        b('v_mov_b32 %s, %s' % (vr(s1), vr(s0)))
        b('v_mov_b32 %s, %s' % (vr(q1), vr(q0)))
        b('v_permlane16_swap_b32 %s, %s' % (vr(s0), vr(s1)))
        b('v_permlane16_swap_b32 %s, %s' % (vr(q0), vr(q1)))
        b('v_add_f32 %s, %s, %s' % (vr(s0), vr(s0), vr(s1)))
        b('v_add_f32 %s, %s, %s' % (vr(q0), vr(q0), vr(q1)))
        b('v_mul_f32 %s, 0xbb000000, %s' % (vr(vGR), vr(s0)))
        b('v_mul_f32 %s, 0x3b000000, %s' % (vr(q0), vr(q0)))
        b('v_fma_f32 %s, -%s, %s, %s' % (vr(q0), vr(vGR), vr(vGR), vr(q0)))
        b('v_max_f32 %s, 0, %s' % (vr(q0), vr(q0)))
        b('v_add_f32 %s, 0x3727c5ac, %s' % (vr(q0), vr(q0)))
        b('v_rsq_f32 %s, %s' % (vr(vGR + 1), vr(q0)))

    def nonce_and_stats_store(self):
        b = self.b

        def check():
            b('v_readfirstlane_b32 %s, %s' % (sr(sNON), vr(vNON)))
            b('v_readfirstlane_b32 %s, %s' % (sr(sNON + 1), vr(vNON + 1)))
            b('s_cmp_lg_u32 %s, 0' % sr(sNON))
        self.poll_loop('buffer_load_dwordx2 %s, off, %s, 0 sc1' % (vr(vNON, 2), srd(DBG_)), check, 'L_non')
        b('v_mov_b32 %s, %s' % (vr(vGR + 2), sr(sNON)))
        b('v_mov_b32 %s, %s' % (vr(vGR + 3), sr(sNON + 1)))
        b('s_mov_b32 exec_lo, 1')
        b('s_mov_b32 exec_hi, 1')
        b('buffer_store_dwordx4 %s, %s, %s, 0 offen sc1' % (vr(vGR, 4), vr(vSO), srd(WS_)), tag='sst')
        b('s_mov_b64 exec, -1')

    def gather_text(self):
        return 'buffer_load_dwordx4 %s, %s, %s, 0 offen sc1' % (vr(vLD, 4), vr(vG), srd(WS_))

    def gather_check(self):
        b = self.b

        def check():
            b('v_cmp_ne_u32 vcc, %s, %s' % (sr(sNON), vr(vLD + 2)))
            b('v_cmp_ne_u32 %s, %s, %s' % (sr(sZ, 2), sr(sNON + 1), vr(vLD + 3)))
            b('s_or_b64 vcc, vcc, %s' % sr(sZ, 2))
            b('s_cmp_eq_u64 vcc, 0')
        self.poll_loop(self.gather_text(), check, 'L_gat')
        b('ds_write_b32 %s, %s' % (vr(vGL), vr(vLD)), tag='stw')
        b('ds_write_b32 %s, %s offset:%d' % (vr(vGL), vr(vLD + 1), STR), tag='stw')

    def role_setup(self, att):
        b = self.b
        pv = self.pv
        l, L3, L7, g, n, a, c = (pv[k] for k in ('l', 'L3', 'L7', 'g', 'n', 'a', 'c'))
        d = T + 7
        self.dma_now(att, 0)
        self.dma_now(att, 1)
        self.dma_now(att, 2)
        b('buffer_load_dwordx2 %s, off, %s, 0 sc1' % (vr(vNON, 2), srd(DBG_)), tag='non')
        b('v_lshrrev_b32 %s, 1, %s' % (vr(a), vr(n)))
        b('v_xor_b32 %s, %s, %s' % (vr(a), vr(a), vr(g)))
        b('v_lshlrev_b32 %s, 4, %s' % (vr(a), vr(a)))
        b('v_lshl_add_u32 %s, %s, 7, %s' % (vr(a), vr(n), vr(a)))
        if att:
            b('v_add_u32 %s, %d, %s' % (vr(vXA), SLOT0, vr(a)))
        else:
            b('s_and_b32 %s, %s, 1' % (sr(sTH), sr(sW)))
            b('s_lshl_b32 s54, %s, 13' % sr(sTH))
            b('s_add_u32 s54, s54, %d' % (SLOT0 + 2048))
            b('v_add_u32 %s, s54, %s' % (vr(vXA), vr(a)))
        b('v_xor_b32 %s, 64, %s' % (vr(vXB), vr(vXA)))
        r_, cc = d, d + 1
        b('v_bfe_u32 %s, %s, 2, 2' % (vr(r_), vr(l)))
        b('v_and_b32 %s, 3, %s' % (vr(cc), vr(l)))
        b('v_and_b32 %s, 1, %s' % (vr(a), vr(g)))
        b('v_lshl_add_u32 %s, %s, 2, %s' % (vr(a), vr(a), vr(r_)))
        b('v_lshrrev_b32 %s, 1, %s' % (vr(c), vr(a)))
        b('v_lshlrev_b32 %s, 1, %s' % (vr(c), vr(c)))
        if att:
            b('s_lshl_b32 s54, %s, 1' % sr(sW))
        else:
            b('s_and_b32 s54, %s, 2' % sr(sW))
            b('s_lshl_b32 s54, s54, 1')
        b('v_xor_b32 %s, s54, %s' % (vr(c), vr(c)))
        b('v_lshrrev_b32 %s, 1, %s' % (vr(d + 2), vr(cc)))
        b('v_add_u32 %s, %s, %s' % (vr(c), vr(c), vr(d + 2)))
        b('v_lshlrev_b32 %s, 4, %s' % (vr(c), vr(c)))
        b('v_lshl_add_u32 %s, %s, 7, %s' % (vr(c), vr(a), vr(c)))
        b('v_and_b32 %s, 1, %s' % (vr(a), vr(cc)))
        b('v_lshl_add_u32 %s, %s, 3, %s' % (vr(c), vr(a), vr(c)))
        b('v_lshrrev_b32 %s, 1, %s' % (vr(a), vr(g)))
        b('s_mov_b32 s54, 6144')
        b('v_mad_u32_u24 %s, %s, s54, %s' % (vr(c), vr(a), vr(c)))
        b('v_add_u32 %s, %d, %s' % (vr(vWA), SLOT0 + WOFF, vr(c)))
        if not att:
            b('v_xor_b32 %s, 32, %s' % (vr(vWB), vr(vWA)))
        if att:
            b('v_min_u32 %s, 35, %s' % (vr(a), vr(l)))
            b('s_mul_i32 s54, %s, 36' % sr(sW))
        else:
            b('v_min_u32 %s, 31, %s' % (vr(a), vr(l)))
            b('s_lshl_b32 s54, %s, 5' % sr(sW))
            b('s_add_u32 s54, s54, 16')
        b('v_add_u32 %s, s54, %s' % (vr(a), vr(a)))
        b('v_lshlrev_b32 %s, 2, %s' % (vr(c), vr(a)))
        b('v_add_u32 %s, %d, %s' % (vr(vGL), ST, vr(c)))
        b('s_lshl_b32 s54, %s, 7' % sr(sRB))
        b('s_sub_u32 s54, s54, 16')
        b('v_add_u32 %s, s54, %s' % (vr(a), vr(a)))
        b('v_max_i32 %s, 0, %s' % (vr(a), vr(a)))
        b('v_lshlrev_b32 %s, 4, %s' % (vr(vG), vr(a)))
        for i in range(4):
            b('v_mov_b32 %s, 0x3f803f80' % vr(vONES + i))
        for i in range(116 if att else 120):
            b('v_mov_b32 %s, 0' % vr(i))
        self.stats_compute()

    def w2_addr_setup(self):
        l = vL
        a, c, d = T, T + 1, T + 2
        o = []
        o.append('v_lshrrev_b32 %s, 4, %s' % (vr(a), vr(l)))
        o.append('v_lshlrev_b32 %s, 1, %s' % (vr(a), vr(a)))
        o.append('v_and_b32 %s, 7, %s' % (vr(c), vr(l)))
        o.append('v_xor_b32 %s, %s, %s' % (vr(a), vr(a), vr(c)))
        o.append('v_lshlrev_b32 %s, 4, %s' % (vr(a), vr(a)))
        o.append('v_lshrrev_b32 %s, 3, %s' % (vr(c), vr(l)))
        o.append('v_lshl_add_u32 %s, %s, 10, %s' % (vr(a), vr(c), vr(a)))
        o.append('s_lshl_b32 s54, %s, 7' % sr(sCT))
        o.append('v_add_u32 %s, s54, %s' % (vr(vDX), vr(a)))
        for i in range(1, 4):
            o.append('v_add_u32 %s, %d, %s' % (vr(vDX + i), 7168 * i, vr(vDX)))
        o.append('s_mul_i32 %s, %s, %d' % (sr(sXOFF), sr(sW), 11 * 32768))
        o.append('s_lshl_b32 s54, %s, 15' % sr(sW))
        o.append('s_add_u32 %s, s54, %d' % (sr(sXL), W2S))
        return o

    def w2_read_addr(self):
        b = self.b
        l = vL
        a, c, d, e = T, T + 1, T + 2, T + 3
        b('v_bfe_u32 %s, %s, 2, 2' % (vr(a), vr(l)))
        b('v_lshrrev_b32 %s, 4, %s' % (vr(c), vr(l)))
        b('v_lshl_add_u32 %s, %s, 2, %s' % (vr(d), vr(c), vr(a)))
        b('v_bfe_u32 %s, %s, 1, 2' % (vr(e), vr(d)))
        b('v_lshlrev_b32 %s, 5, %s' % (vr(e), vr(e)))
        b('v_lshl_add_u32 %s, %s, 7, %s' % (vr(e), vr(d), vr(e)))
        b('v_and_b32 %s, 3, %s' % (vr(a), vr(l)))
        b('v_lshl_add_u32 %s, %s, 3, %s' % (vr(e), vr(a), vr(e)))
        b('v_add_u32 %s, %s, %s' % (vr(vXA), sr(sXL), vr(e)))
        for cp in range(1, 4):
            b('v_xor_b32 %s, %d, %s' % (vr(vXA + cp), 32 * cp, vr(vXA)))

    def w2_dma_slots(self, steps, tag):
        slots = []
        for st, (ls, sd, setup) in enumerate(steps):
            first = [('s_add_u32 m0, %s, %d' % (sr(sXL), ls * 4096), None)] + [(x, None) for x in setup]
            slots.append(first)
            for i in range(4):
                slots.append([('buffer_load_dwordx4 %s, %s, %s offen offset:%d lds'
                               % (vr(vDX + i), srd(sd), sr(sT3), 1024 * i), tag)])
        return slots

    def w2_round1_steps(self):
        steps = []
        for st in range(8):
            steps.append((st, W2_, ['s_add_u32 %s, %s, %d' % (sr(sT3), sr(sXOFF), st * 32768)]))
        return steps

    def w2_round2_steps(self):
        steps = []
        for st in range(8, 11):
            steps.append((st - 8, W2_, ['s_add_u32 %s, %s, %d' % (sr(sT3), sr(sXOFF), st * 32768)]))
        for i in range(4):
            steps.append((3 + i, WO_, ['s_lshl_b32 %s, %s, 17' % (sr(sT3), sr(sW)),
                                       's_add_u32 %s, %s, %d' % (sr(sT3), sr(sT3), i * 32768)]))
        return steps

    def w2_tr_reads(self, first_step, nsteps):
        b = self.b
        for st in range(nsteps):
            for cp in range(4):
                for hh in range(2):
                    b('ds_read_b64_tr_b16 %s, %s offset:%d'
                      % (ar(16 * (first_step + st) + 4 * cp + 2 * hh, 2), vr(vXA + cp), st * 4096 + hh * 2048), tag='w2tr')

    def main_loop(self, att):
        b = self.b
        if att:
            F = [116, 164]
            nX = 9

            def xreg(f, t):
                return F[f] + 4 * t

            def wreg(f, p):
                return F[f] + 36 + 4 * p

            def reads(f, bb):
                xa = vXB if bb else vXA
                def wr(p):
                    return [('ds_read_b64_tr_b16 %s, %s offset:%d' % (vr(wreg(f, p) + 2 * hh, 2), vr(vWA),
                                                                     hh * 12288 + (3 * bb + p) * 1024), 'fr') for hh in range(2)]
                def xr(t):
                    return [('ds_read_b128 %s, %s offset:%d' % (vr(xreg(f, t), 4), vr(xa), t * 2048), 'fr')]
                out = wr(1) + xr(0) + wr(2) + wr(0)
                for t in range(1, 9):
                    out += xr(t)
                return out

            def mfmas(f, u):
                out = []
                for t in range(9):
                    out.append('%s %s, %s, %s, %s' % (MF, vr(32 + 4 * t, 4), vr(wreg(f, 1), 4), vr(xreg(f, t), 4), vr(32 + 4 * t, 4)))
                    out.append('%s %s, %s, %s, %s' % (MF, vr(68 + 4 * t, 4), vr(xreg(f, t), 4), vr(wreg(f, 2), 4), vr(68 + 4 * t, 4)))
                    if t >= 1:
                        q = 4 * (t - 1)
                        out.append('%s %s, %s, %s, %s' % (MF, vr(q, 4), vr(wreg(f, 0), 4), vr(xreg(f, t), 4), vr(q, 4)))
                out.append('%s %s, %s, %s, %s' % (MF, vr(104, 4), vr(wreg(f, 0), 4), vr(vONES, 4), vr(104, 4)))
                out.append('%s %s, %s, %s, %s' % (MF, vr(108, 4), vr(wreg(f, 1), 4), vr(vONES, 4), vr(108, 4)))
                out.append('%s %s, %s, %s, %s' % (MF, vr(112, 4), vr(vONES, 4), vr(wreg(f, 2), 4), vr(112, 4)))
                return out
            sreg = None
        else:
            F = [120, 160]

            def xreg(f, t):
                return F[f] + 4 * t

            def wreg(f, p, ti):
                return F[f] + 16 + 4 * (2 * p + ti)

            def reads(f, bb):
                xa = vXB if bb else vXA
                def wr(p, ti):
                    return [('ds_read_b64_tr_b16 %s, %s offset:%d' % (vr(wreg(f, p, ti) + 2 * hh, 2), vr(vWB if ti else vWA),
                                                                     hh * 12288 + (3 * bb + p) * 1024), 'fr') for hh in range(2)]
                def xr(t):
                    return [('ds_read_b128 %s, %s offset:%d' % (vr(xreg(f, t), 4), vr(xa), t * 2048), 'fr')]
                out = wr(0, 0) + xr(0) + xr(1) + xr(2) + xr(3)
                for pt in range(1, 6):
                    out += wr(pt >> 1, pt & 1)
                return out

            def mfmas(f, u):
                out = []
                for pt in range(6):
                    for t in range(4):
                        acc = 16 * pt + 4 * t
                        out.append('%s %s, %s, %s, %s' % (MF, vr(acc, 4), vr(wreg(f, pt >> 1, pt & 1), 4), vr(xreg(f, t), 4), vr(acc, 4)))

                def sblock():
                    lab = b.label_name('L_nos')
                    b('s_cmp_lg_u32 %s, %d' % (sr(sTH), u & 1))
                    b('s_cbranch_scc1 %s' % lab)
                    b.begin_region()
                    for pt in range(6):
                        b('%s %s, %s, %s, %s' % (MF, vr(96 + 4 * pt, 4), vr(wreg(f, pt >> 1, pt & 1), 4), vr(vONES, 4), vr(96 + 4 * pt, 4)))
                    b.end_region()
                    b(lab + ':')
                out.append(sblock)
                return out

        b.wait_vm('st0')
        b('s_barrier')
        self.ts(1)
        for t, tag in reads(0, 0):
            b(t, tag=tag)
        for u in range(16):
            s, bb, f = u >> 1, u & 1, u & 1
            mf = mfmas(f, u)
            slots = []
            if bb == 0:
                rd = reads(1 - f, 1)
                for t in rd:
                    slots.append([t])
                self.interleave(mf, slots)
                continue
            b.wait_lg('fr', 'stw')
            if s + 1 < 8:
                b.wait_vm('st%d' % (s + 1))
            b('s_barrier')
            if u == 3:
                self.nonce_and_stats_store()
            if u == 13:
                self.gather_check()
            ds = []
            if s + 1 < 8:
                delta = SLOT if (s % 3) < 2 else -2 * SLOT
                upd = [('v_add_u32 %s, %s, %s' % (vr(r), hex(delta & 0xffffffff), vr(r)), None)
                       for r in ([vWA, vXA, vXB] if att else [vWA, vXA, vWB, vXB])]
                rd = reads(1 - f, 0)
                slots.append(upd[:2])
                ds = [rd[i:i + 2] for i in range(0, len(rd), 2)]
                rest = [upd[2:]]
            else:
                rest = []
            if s + 3 < 8:
                items, tail = self.dma_items(att, s + 3)
                dm = self.dma_slots(items, tail)
            elif u == 15:
                pre = [(x, None) for x in self.w2_addr_setup()]
                dm = [pre[i:i + 2] for i in range(0, len(pre), 2)] + self.w2_dma_slots(self.w2_round1_steps(), 'w2a')
            elif u == 11:
                dm = [[(self.gather_text(), 'gat')]]
            else:
                dm = []
            other = rest + dm
            while ds or other:
                if ds:
                    slots.append(ds.pop(0))
                if other:
                    slots.append(other.pop(0))
            self.interleave(mf, slots)

    def att_epilogue(self):
        b = self.b
        l = vL
        QS = 116
        VS = 134
        VP, KP, QP = 158, 176, 194
        a, c, d = T + 4, T + 5, T + 6
        vNEG = T + 7
        SEL = T + 8
        vAq, vAq2, vAv = T + 12, T + 13, T + 14
        vOW = T + 15
        b('v_and_b32 %s, 15, %s' % (vr(a), vr(l)))
        b('v_lshrrev_b32 %s, 4, %s' % (vr(c), vr(l)))
        b('v_lshlrev_b32 %s, 2, %s' % (vr(vAq), vr(a)))
        b('v_add_u32 %s, %d, %s' % (vr(vAq), ST, vr(vAq)))
        b('v_add_u32 %s, 256, %s' % (vr(vAq2), vr(vAq)))
        b('v_lshlrev_b32 %s, 4, %s' % (vr(vAv), vr(c)))
        b('v_add_u32 %s, %d, %s' % (vr(vAv), ST, vr(vAv)))
        for t in range(9):
            if t < 7:
                b('ds_read2_b32 %s, %s offset0:%d offset1:%d' % (vr(QS + 2 * t, 2), vr(vAq), 16 * t, 144 + 16 * t), tag='qs')
            else:
                b('ds_read2_b32 %s, %s offset0:%d offset1:%d' % (vr(QS + 2 * t, 2), vr(vAq2), 16 * t - 64, 80 + 16 * t), tag='qs')

        def vstat_read(t):
            base = VS + 8 * (t % 3)
            b('ds_read_b128 %s, %s offset:%d' % (vr(base, 4), vr(vAv), 64 * t), tag='vs')
            b('ds_read_b128 %s, %s offset:%d' % (vr(base + 4, 4), vr(vAv), STR + 64 * t), tag='vs')
        for t in range(3):
            vstat_read(t)
        b('v_and_b32 %s, 1, %s' % (vr(d), vr(a)))
        b('v_cmp_eq_u32 %s, 1, %s' % (sr(sP, 2), vr(d)))
        b('v_lshl_add_u32 %s, %s, 2, %s' % (vr(c), vr(c), vr(d)))
        b('v_cmp_le_u32 %s, %s, %s' % (sr(sC0, 2), vr(c), vr(a)))
        b('v_add_u32 %s, 2, %s' % (vr(c), vr(c)))
        b('v_cmp_le_u32 %s, %s, %s' % (sr(sC1, 2), vr(c), vr(a)))
        b('v_mov_b32 %s, 0x0c0c0100' % vr(a))
        b('v_mov_b32 %s, 0x01000c0c' % vr(c))
        b('v_cndmask_b32 %s, %s, %s, %s' % (vr(a), vr(a), vr(c), sr(sP, 2)))
        b('v_mov_b32 %s, 0x0c0c0302' % vr(c))
        b('v_mov_b32 %s, 0x03020c0c' % vr(d))
        b('v_cndmask_b32 %s, %s, %s, %s' % (vr(c), vr(c), vr(d), sr(sP, 2)))
        b('v_mov_b32 %s, 0x0c0c0c0c' % vr(d))
        b('v_cndmask_b32 %s, %s, %s, %s' % (vr(SEL + 0), vr(a), vr(d), sr(sC0, 2)))
        b('v_cndmask_b32 %s, %s, %s, %s' % (vr(SEL + 1), vr(c), vr(d), sr(sC1, 2)))
        b('v_cndmask_b32 %s, %s, %s, %s' % (vr(SEL + 2), vr(d), vr(a), sr(sC0, 2)))
        b('v_cndmask_b32 %s, %s, %s, %s' % (vr(SEL + 3), vr(d), vr(c), sr(sC1, 2)))
        b('v_mov_b32 %s, 0xcf6e6b28' % vr(vNEG))
        b('s_cmp_eq_u32 %s, 0' % sr(sRB))
        b('s_cselect_b64 %s, -1, 0' % sr(sZ, 2))
        b('s_mov_b32 %s, 0x3eb8aa3b' % sr(sC))
        b('s_lshr_b32 s54, %s, 1' % sr(sW))
        b('s_lshl_b32 s54, s54, 13')
        b('s_and_b32 s55, %s, 1' % sr(sW))
        b('s_lshl_b32 s56, s55, 3')
        b('s_add_u32 s56, s56, s54')
        b('s_add_u32 s56, s56, %d' % OX)
        b('v_lshlrev_b32 %s, 4, %s' % (vr(vOW), vr(l)))
        b('v_add_u32 %s, s56, %s' % (vr(vOW), vr(vOW)))

        def norm_qk(acc, sreg, t, dst):
            st = vr(QS + 2 * t, 2)
            for h in range(2):
                b('v_pk_fma_f32 %s, %s, %s, %s op_sel:[0,0,0] op_sel_hi:[1,0,1]' % (vr(acc + 2 * h, 2), vr(sreg + 2 * h, 2), st, vr(acc + 2 * h, 2)))
            for h in range(2):
                b('v_pk_mul_f32 %s, %s, %s op_sel:[0,1] op_sel_hi:[1,1]' % (vr(acc + 2 * h, 2), vr(acc + 2 * h, 2), st))
            for h in range(2):
                b('v_cvt_pk_bf16_f32 %s, %s, %s' % (vr(dst + h), vr(acc + 2 * h), vr(acc + 2 * h + 1)))

        def norm_v(t):
            acc = 68 + 4 * t
            base = VS + 8 * (t % 3)
            for h in range(2):
                b('v_pk_fma_f32 %s, %s, %s, %s' % (vr(acc + 2 * h, 2), vr(base + 2 * h, 2), vr(112 + 2 * h, 2), vr(acc + 2 * h, 2)))
            for h in range(2):
                b('v_pk_mul_f32 %s, %s, %s' % (vr(acc + 2 * h, 2), vr(acc + 2 * h, 2), vr(base + 4 + 2 * h, 2)))
            for h in range(2):
                b('v_cvt_pk_bf16_f32 %s, %s, %s' % (vr(VP + 2 * t + h), vr(acc + 2 * h), vr(acc + 2 * h + 1)))
            if t + 3 < 9:
                vstat_read(t + 3)

        for t in range(9):
            norm_qk(32 + 4 * t, 108, t, KP + 2 * t)
        for t in range(1, 9):
            norm_qk(4 * (t - 1), 104, t, QP + 2 * (t - 1))
        for t in range(1, 9):
            D = 8 * (t - 1)
            b('%s %s, %s, %s, 0' % (MF16, vr(D, 4), vr(KP + 2 * (t - 1), 2), vr(QP + 2 * (t - 1), 2)))
            b('%s %s, %s, %s, 0' % (MF16, vr(D + 4, 4), vr(KP + 2 * t, 2), vr(QP + 2 * (t - 1), 2)))
        for t in range(9):
            norm_v(t)
        LG, MX = 64, 80
        for t in range(1, 9):
            D = 8 * (t - 1)
            for j in range(2):
                b('v_cndmask_b32 %s, %s, %s, %s' % (vr(D + 2 * j), vr(D + 2 * j), vr(D + 2 * j + 1), sr(sP, 2)))
                b('v_cndmask_b32 %s, %s, %s, %s' % (vr(D + 4 + 2 * j), vr(D + 4 + 2 * j), vr(D + 4 + 2 * j + 1), sr(sP, 2)))
            if t == 1:
                for j in range(2):
                    b('v_cndmask_b32 %s, %s, %s, %s' % (vr(D + 2 * j), vr(D + 2 * j), vr(vNEG), sr(sZ, 2)))
            b('v_cndmask_b32 %s, %s, %s, %s' % (vr(LG + 2 * (t - 1)), vr(D), vr(D + 4), sr(sC0, 2)))
            b('v_cndmask_b32 %s, %s, %s, %s' % (vr(LG + 2 * (t - 1) + 1), vr(D + 2), vr(D + 6), sr(sC1, 2)))
            b('v_max_f32 %s, %s, %s' % (vr(MX + t - 1), vr(LG + 2 * (t - 1)), vr(LG + 2 * (t - 1) + 1)))
        for h in range(2):
            m = MX + 4 * h
            b('v_permlane16_swap_b32 %s, %s' % (vr(m), vr(m + 1)))
            b('v_permlane16_swap_b32 %s, %s' % (vr(m + 2), vr(m + 3)))
        for h in range(2):
            m = MX + 4 * h
            b('v_max_f32 %s, %s, %s' % (vr(m), vr(m), vr(m + 1)))
            b('v_max_f32 %s, %s, %s' % (vr(m + 2), vr(m + 2), vr(m + 3)))
        for h in range(2):
            m = MX + 4 * h
            b('v_permlane32_swap_b32 %s, %s' % (vr(m), vr(m + 2)))
        for h in range(2):
            m = MX + 4 * h
            b('v_max_f32 %s, %s, %s' % (vr(m), vr(m), vr(m + 2)))
        for h in range(2):
            m = MX + 4 * h
            b('v_mul_f32 %s, %s, %s' % (vr(m), sr(sC), vr(m)))
        for h in range(2):
            m = MX + 4 * h
            b('v_mov_b32 %s, %s' % (vr(m + 2), vr(m)))
        for h in range(2):
            m = MX + 4 * h
            b('v_permlane32_swap_b32 %s, %s' % (vr(m), vr(m + 2)))
        for h in range(2):
            m = MX + 4 * h
            b('v_mov_b32 %s, %s' % (vr(m + 1), vr(m)))
            b('v_mov_b32 %s, %s' % (vr(m + 3), vr(m + 2)))
        for h in range(2):
            m = MX + 4 * h
            b('v_permlane16_swap_b32 %s, %s' % (vr(m), vr(m + 1)))
            b('v_permlane16_swap_b32 %s, %s' % (vr(m + 2), vr(m + 3)))
        for t in range(1, 9):
            L = LG + 2 * (t - 1)
            for j in range(2):
                b('v_fma_f32 %s, %s, %s, -%s' % (vr(L + j), vr(L + j), sr(sC), vr(MX + t - 1)))
        for t in range(1, 9):
            L = LG + 2 * (t - 1)
            for j in range(2):
                b('v_exp_f32 %s, %s' % (vr(L + j), vr(L + j)))
        for t in range(1, 9):
            L = LG + 2 * (t - 1)
            b('v_cvt_pk_bf16_f32 %s, %s, %s' % (vr(L), vr(L), vr(L + 1)))
        PF, OA, SM = 0, 32, 84
        for t in range(1, 9):
            L = LG + 2 * (t - 1)
            for i in range(4):
                b('v_perm_b32 %s, %s, %s, %s' % (vr(PF + 4 * (t - 1) + i), vr(L), vr(L), vr(SEL + i)))
            b('%s %s, %s, %s, 0' % (MF, vr(OA + 4 * (t - 1), 4), vr(VP + 2 * (t - 1), 4), vr(PF + 4 * (t - 1), 4)))
            b('%s %s, %s, %s, 0' % (MF, vr(SM + 4 * (t - 1), 4), vr(vONES, 4), vr(PF + 4 * (t - 1), 4)))
        for t in range(1, 9):
            sm = SM + 4 * (t - 1)
            b('v_rcp_f32 %s, %s' % (vr(sm), vr(sm)))
        for t in range(1, 9):
            sm, o = SM + 4 * (t - 1), OA + 4 * (t - 1)
            for h in range(2):
                b('v_pk_mul_f32 %s, %s, %s op_sel:[0,0] op_sel_hi:[1,0]' % (vr(o + 2 * h, 2), vr(o + 2 * h, 2), vr(sm, 2)))
            for h in range(2):
                b('v_cvt_pk_bf16_f32 %s, %s, %s' % (vr(o + h), vr(o + 2 * h), vr(o + 2 * h + 1)))
            b('ds_write_b64 %s, %s offset:%d' % (vr(vOW), vr(o, 2), (t - 1) * 1024), tag='ox')
        b('s_lshr_b32 s54, %s, 1' % sr(sW))
        b('s_lshl_b32 s54, s54, 13')
        b('s_and_b32 s55, %s, 1' % sr(sW))
        b('s_lshl_b32 s56, s55, 12')
        b('s_add_u32 s56, s56, s54')
        b('s_add_u32 s56, s56, %d' % OX)
        b('v_lshlrev_b32 %s, 4, %s' % (vr(a), vr(l)))
        b('v_add_u32 %s, s56, %s' % (vr(c), vr(a)))
        b('s_lshl_b32 s56, %s, 3' % sr(sRB))
        b('s_lshl_b32 s55, s55, 2')
        b('s_add_u32 s56, s56, s55')
        b('s_mul_i32 s56, s56, %d' % NKS)
        b('s_lshl_b32 s55, %s, 1' % sr(sGRP))
        b('s_add_u32 s56, s56, s55')
        b('s_lshr_b32 s55, %s, 1' % sr(sW))
        b('s_add_u32 s56, s56, s55')
        b('s_lshl_b32 s56, s56, 10')
        b('s_add_u32 s56, s56, %d' % (H_OFF + 43 * 1024))
        b.wait_lg('ox')
        b('s_barrier')
        for i in range(4):
            b('ds_read_b128 %s, %s offset:%d' % (vr(4 * i, 4), vr(c), i * 1024), tag='oxr')
        for i in range(4):
            b('s_add_u32 s57, s56, %d' % (i * NKS * 1024))
            b('buffer_store_dwordx4 %s, %s, %s, s57 offen sc1' % (vr(4 * i, 4), vr(a), srd(WS_)), tag='hst')

    def mlp_epilogue(self):
        b = self.b
        l = vL
        a, c, d = T + 4, T + 5, T + 6
        QS = 120
        TM = 128
        PK = 152
        b('v_lshrrev_b32 %s, 4, %s' % (vr(c), vr(l)))
        b('v_lshlrev_b32 %s, 4, %s' % (vr(c), vr(c)))
        b('s_mul_i32 s54, %s, 384' % sr(sW))
        b('s_add_u32 s55, s54, %d' % SX)
        b('v_add_u32 %s, s55, %s' % (vr(d), vr(c)))
        b('s_xor_b32 s54, %s, 1' % sr(sW))
        b('s_mul_i32 s54, s54, 384')
        b('s_add_u32 s55, s54, %d' % SX)
        b('v_add_u32 %s, s55, %s' % (vr(c), vr(c)))
        b('s_mov_b32 exec_lo, 0x00010001')
        b('s_mov_b32 exec_hi, 0x00010001')
        for pt in range(6):
            b('ds_write_b128 %s, %s offset:%d' % (vr(d), vr(96 + 4 * pt, 4), pt * 64), tag='sx')
        b('s_mov_b64 exec, -1')
        b('v_and_b32 %s, 15, %s' % (vr(a), vr(l)))
        b('s_lshl_b32 s54, %s, 6' % sr(sTH))
        b('s_add_u32 s54, s54, 16')
        b('v_add_u32 %s, s54, %s' % (vr(a), vr(a)))
        b('v_lshlrev_b32 %s, 2, %s' % (vr(a), vr(a)))
        b('v_add_u32 %s, %d, %s' % (vr(a), ST, vr(a)))
        for t in range(4):
            b('ds_read2_b32 %s, %s offset0:%d offset1:%d' % (vr(QS + 2 * t, 2), vr(a), 16 * t, 144 + 16 * t), tag='qs')
        b.wait_lg('sx')
        b('s_barrier')
        for pt in range(6):
            b('ds_read_b128 %s, %s offset:%d' % (vr(TM + 4 * pt, 4), vr(c), pt * 64), tag='sxr')
        b('s_lshl_b32 s56, %s, 3' % sr(sRB))
        b('s_lshl_b32 s55, %s, 2' % sr(sTH))
        b('s_add_u32 s56, s56, s55')
        b('s_mul_i32 s56, s56, %d' % NKS)
        b('s_add_u32 s56, s56, s74')
        b('s_lshr_b32 s55, %s, 1' % sr(sW))
        b('s_add_u32 s56, s56, s55')
        b('s_lshl_b32 s56, s56, 10')
        b('s_add_u32 s56, s56, %d' % H_OFF)
        b('v_lshlrev_b32 %s, 4, %s' % (vr(a), vr(l)))
        for pt in range(6):
            for h in range(2):
                r = 96 + 4 * pt + 2 * h
                b('v_pk_add_f32 %s, %s, %s' % (vr(r, 2), vr(r, 2), vr(TM + 4 * pt + 2 * h, 2)))
        k = 0
        skip = None
        for p in range(3):
            if p == 2:
                skip = b.label_name('L_nopair')
                b('s_lshr_b32 s55, %s, 1' % sr(sW))
                b('s_add_u32 s55, s55, 4')
                b('s_cmp_ge_u32 s55, %s' % sr(sNP))
                b('s_cbranch_scc1 %s' % skip)
                b.begin_region()
            for t in range(4):
                st = vr(QS + 2 * t, 2)
                dst = PK + 4 * (k % 4)
                k += 1
                for ti in range(2):
                    acc = 16 * (2 * p + ti) + 4 * t
                    sreg = 96 + 4 * (2 * p + ti)
                    for h in range(2):
                        b('v_pk_fma_f32 %s, %s, %s, %s op_sel:[0,0,0] op_sel_hi:[1,0,1]' % (vr(acc + 2 * h, 2), vr(sreg + 2 * h, 2), st, vr(acc + 2 * h, 2)))
                    for h in range(2):
                        b('v_pk_mul_f32 %s, %s, %s op_sel:[0,1] op_sel_hi:[1,1]' % (vr(acc + 2 * h, 2), vr(acc + 2 * h, 2), st))
                    for h in range(2):
                        b('v_cvt_pk_bf16_f32 %s, %s, %s' % (vr(dst + 2 * ti + h), vr(acc + 2 * h), vr(acc + 2 * h + 1)))
                for i in range(4):
                    b('v_pk_max_i16 %s, %s, 0' % (vr(dst + i), vr(dst + i)))
                b('s_add_u32 s57, s56, %d' % (t * NKS * 1024 + p * 2048))
                b('buffer_store_dwordx4 %s, %s, %s, s57 offen sc1' % (vr(dst, 4), vr(a), srd(WS_)), tag='hst')
        b.end_region()
        b(skip + ':')

    def handoff(self, att):
        b = self.b
        self.ts(3)
        self.w2_read_addr()
        b.wait_vm('w2a')
        self.w2_tr_reads(0, 8)
        b.wait_lg()
        for sl in self.w2_dma_slots(self.w2_round2_steps(), 'w2b'):
            for t, tag in sl:
                b(t, tag=tag)
        n_after = 28
        b('s_waitcnt vmcnt(%d)' % n_after)
        b.vmq = [e for e in b.vmq if e['tag'] == 'w2b']
        assert len(b.vmq) == n_after
        b('s_barrier')
        lab = b.label_name('L_noflag')
        b('s_cmp_lg_u32 %s, 0' % sr(sW))
        b('s_cbranch_scc1 %s' % lab)
        b.begin_region()
        b('s_lshl_b32 s54, %s, 2' % sr(sRB))
        b('s_lshr_b32 s55, %s, 1' % sr(sGRP))
        b('s_add_u32 s54, s54, s55')
        b('s_lshl_b32 s54, s54, 7')
        b('s_and_b32 s55, %s, 1' % sr(sGRP))
        b('s_lshl_b32 s55, s55, 3')
        b('s_add_u32 s54, s54, s55')
        b('s_add_u32 s54, s54, %d' % (WS_D + (16 if att else 0)))
        b('v_mov_b32 %s, %s' % (vr(T), sr(sNON)))
        b('v_mov_b32 %s, %s' % (vr(T + 1), sr(sNON + 1)))
        b('s_mov_b64 exec, 1')
        b('buffer_store_dwordx2 %s, off, %s, s54 sc1' % (vr(T, 2), srd(WS_)), tag='flag')
        b('s_mov_b64 exec, -1')
        b.end_region()
        b(lab + ':')
        self.ts(4)

    def phase2(self):
        b = self.b
        l = vL
        vH, vH2, vD, vXR = T, T + 1, T + 2, T + 3
        RING = 64
        XR = 192
        a, c = T + 4, T + 5
        b('v_and_b32 %s, 15, %s' % (vr(a), vr(l)))
        b('s_lshl_b32 s54, %s, 6' % sr(sRT))
        b('s_lshl_b32 s55, %s, 4' % sr(sW))
        b('s_add_u32 s54, s54, s55')
        b('v_add_u32 %s, s54, %s' % (vr(a), vr(a)))
        b('v_lshlrev_b32 %s, 10, %s' % (vr(a), vr(a)))
        b('v_lshrrev_b32 %s, 4, %s' % (vr(c), vr(l)))
        b('s_lshl_b32 s55, %s, 7' % sr(sCT))
        b('v_lshl_add_u32 %s, %s, 3, %s' % (vr(vXR), vr(c), vr(a)))
        b('v_add_u32 %s, s55, %s' % (vr(vXR), vr(vXR)))
        for cp in range(4):
            b('buffer_load_dwordx2 %s, %s, %s, 0 offen offset:%d' % (vr(XR + 2 * cp, 2), vr(vXR), srd(X_), 32 * cp), tag='res')
        vO = T + 6
        b('v_and_b32 %s, 1, %s' % (vr(vO), vr(c)))
        b('v_lshlrev_b32 %s, 5, %s' % (vr(vO), vr(vO)))
        b('v_lshrrev_b32 %s, 1, %s' % (vr(c), vr(c)))
        b('v_lshl_add_u32 %s, %s, 4, %s' % (vr(vO), vr(c), vr(vO)))
        b('v_add3_u32 %s, %s, %s, s55' % (vr(vO), vr(vO), vr(a)))
        b('s_lshr_b32 s54, %s, 1' % sr(sRT))
        b('s_lshl_b32 s54, s54, 2')
        b('s_add_u32 s54, s54, %s' % sr(sW))
        b('s_lshl_b32 s54, s54, 7')
        b('s_add_u32 %s, s54, %d' % (sr(sT2), WS_D))
        FL = T + 8
        pollm = 'buffer_load_dwordx4 %s, off, %s, %s sc1' % (vr(FL, 4), srd(WS_), sr(sT2))
        polla = 'buffer_load_dwordx4 %s, off, %s, %s offset:16 sc1' % (vr(FL, 4), srd(WS_), sr(sT2))
        b(pollm, tag='poll')
        for tp in range(4):
            b('s_add_u32 s54, %s, %d' % (sr(sW), tp))
            b('s_and_b32 s54, s54, 3')
            b('s_lshl_b32 s55, %s, 2' % sr(sRT))
            b('s_add_u32 s54, s54, s55')
            b('s_mul_i32 s54, s54, %d' % (NKS * 1024))
            b('s_add_u32 %s, s54, %d' % (sr(sHB + tp), H_OFF))
        b('s_mul_i32 s54, %s, %d' % (sr(sW), 11 * 1024))
        b('v_lshlrev_b32 %s, 4, %s' % (vr(vH2), vr(l)))
        b('v_add_u32 %s, s54, %s' % (vr(vH), vr(vH2)))
        b.wait_vm('w2b')
        self.w2_tr_reads(8, 7)
        for cp in range(4):
            for h in range(2):
                x = XR + 2 * cp + h
                b('v_lshlrev_b32 %s, 16, %s' % (vr(4 * cp + 2 * h), vr(x)))
                b('v_and_b32 %s, 0xffff0000, %s' % (vr(4 * cp + 2 * h + 1), vr(x)))

        def check():
            for i, sg in enumerate((54, 55, 74, 57)):
                b('v_readfirstlane_b32 %s, %s' % (sr(sg), vr(FL + i)))
            b('s_xor_b32 s54, s54, %s' % sr(sNON))
            b('s_xor_b32 s55, s55, %s' % sr(sNON + 1))
            b('s_xor_b32 s74, s74, %s' % sr(sNON))
            b('s_xor_b32 s57, s57, %s' % sr(sNON + 1))
            b('s_or_b32 s54, s54, s55')
            b('s_or_b32 s74, s74, s57')
            b('s_or_b32 s54, s54, s74')
            b('s_cmp_eq_u32 s54, 0')
        self.poll_loop(pollm, check, 'L_pm')
        self.ts(5)

        def hload(st):
            out = []
            base = RING + 16 * (st % 8)
            va = vH
            pre = []
            if st == 10:
                pre = ['s_cmp_eq_u32 %s, 3' % sr(sW), 's_cselect_b32 s54, 0x40000000, 0',
                       'v_add_u32 %s, s54, %s' % (vr(a), vr(vH))]
                va = a
            if st == 11:
                pre = ['s_lshl_b32 s54, %s, 12' % sr(sW), 's_add_u32 s54, s54, %d' % (43 * 1024),
                       'v_add_u32 %s, s54, %s' % (vr(vH), vr(vH2))]
            out += pre
            for tp in range(4):
                out.append('buffer_load_dwordx4 %s, %s, %s, %s offen sc1' % (vr(base + 4 * tp, 4), vr(va), srd(WS_), sr(sHB + tp)))
            out.append('v_add_u32 %s, 0x400, %s' % (vr(vH), vr(vH)))
            return out

        for st in range(8):
            for t in hload(st):
                b(t, tag='h%d' % st)
        b.wait_lg('w2tr')
        for st in range(15):
            base = RING + 16 * (st % 8)
            mf = []
            for tp in range(4):
                for cp in range(4):
                    acc = 16 * tp + 4 * cp
                    cin = vr(acc, 4) if (st > 0 or tp == 0) else '0'
                    mf.append('%s %s, %s, %s, %s' % (MF, vr(acc, 4), ar(16 * st + 4 * cp, 4), vr(base + 4 * tp, 4), cin))
            for m in mf:
                b(m)
            if st + 8 < 11:
                for t in hload(st + 8):
                    b(t, tag='h%d' % (st + 8))
            if st == 5:
                b(polla, tag='poll')
            if st == 6:
                self.poll_loop(polla, check, 'L_pa')
                for s2 in range(11, 15):
                    for t in hload(s2):
                        b(t, tag='h%d' % s2)
        self.ts(6)
        vRW, vRR = T + 12, T + 13
        b('v_lshlrev_b32 %s, 4, %s' % (vr(vRW), vr(l)))
        b('s_lshl_b32 s54, %s, 15' % sr(sW))
        b('s_add_u32 s54, s54, %d' % W2S)
        b('v_add_u32 %s, s54, %s' % (vr(vRR), vr(vRW)))
        for tp in range(1, 4):
            for cp in range(4):
                b('ds_write_b128 %s, %s offset:%d' % (vr(vRR), vr(16 * tp + 4 * cp, 4), (tp - 1) * 4096 + cp * 1024), tag='rw')
        for tp in range(1, 4):
            b('s_sub_u32 s54, %s, %d' % (sr(sW), tp))
            b('s_and_b32 s54, s54, 3')
            b('s_lshl_b32 s54, s54, 15')
            b('s_add_u32 s54, s54, %d' % (W2S + (tp - 1) * 4096))
            b('v_add_u32 %s, s54, %s' % (vr(FL + tp), vr(vRW)))
        b.wait_lg('rw')
        b('s_barrier')
        RD = 64
        for tp in range(1, 4):
            for cp in range(4):
                b('ds_read_b128 %s, %s offset:%d' % (vr(RD + 16 * (tp - 1) + 4 * cp, 4), vr(FL + tp), cp * 1024), tag='rr')
        for tp in range(1, 4):
            for cp in range(4):
                for h in range(2):
                    r = 4 * cp + 2 * h
                    b('v_pk_add_f32 %s, %s, %s' % (vr(r, 2), vr(r, 2), vr(RD + 16 * (tp - 1) + r, 2)))
        PK = 16
        for cp in range(4):
            for h in range(2):
                b('v_cvt_pk_bf16_f32 %s, %s, %s' % (vr(PK + 2 * cp + h), vr(4 * cp + 2 * h), vr(4 * cp + 2 * h + 1)))
        OUTR = 24
        for pr in range(2):
            p0, p1 = PK + 4 * pr, PK + 4 * pr + 2
            b('v_permlane16_swap_b32 %s, %s' % (vr(p0), vr(p1)))
            b('v_permlane16_swap_b32 %s, %s' % (vr(p0 + 1), vr(p1 + 1)))
        for pr in range(2):
            p0, p1 = PK + 4 * pr, PK + 4 * pr + 2
            b('buffer_store_dwordx4 %s, %s, %s, 0 offen offset:%d' % (vr(p0, 4), vr(vO), srd(OUT_), 64 * pr), tag='out')
        if OPT['profile']:
            self.ts(7)
            lab = b.label_name('L_nots')
            b('s_cmp_lg_u32 %s, 0' % sr(sW))
            b('s_cbranch_scc1 %s' % lab)
            b('s_lshl_b32 s54, s2, 7')
            b('s_add_u32 s54, s54, %d' % WS_TS)
            b('s_mov_b64 exec, 1')
            for i in range(8):
                b('v_mov_b32 %s, %s' % (vr(32), sr(sTS + 2 * i)))
                b('v_mov_b32 %s, %s' % (vr(33), sr(sTS + 2 * i + 1)))
                b('buffer_store_dwordx2 %s, off, %s, s54 offset:%d' % (vr(32, 2), srd(WS_), 8 * i))
                b('s_waitcnt vmcnt(0)')
            b('s_mov_b64 exec, -1')
            b(lab + ':')

    def kernel(self):
        b = self.b
        self.prologue()
        b('s_cmp_lg_u32 %s, 0' % sr(sROLE))
        b('s_cbranch_scc1 L_mlp')
        st = self.save()
        self.role_setup(True)
        self.main_loop(True)
        self.ts(2)
        self.att_epilogue()
        self.handoff(True)
        end = self.save()
        b('s_branch L_p2')
        b('L_mlp:')
        self.restore(st)
        b('s_nop 7')
        self.role_setup(False)
        self.main_loop(False)
        self.ts(2)
        self.mlp_epilogue()
        self.handoff(False)
        e2 = self.save()
        assert [e['tag'] for e in end[0]] == [e['tag'] for e in e2[0]], ([e['tag'] for e in end[0]], [e['tag'] for e in e2[0]])
        assert not [e for e in end[1]] and not [e for e in e2[1]]
        b('L_p2:')
        b('s_nop 7')
        self.phase2()
        b('L_end:')
        b('s_endpgm')
        b.finalize()
        return b.text()


HEADER = '''; LayerNorm + (dilated sliding-window attention || ReLU MLP) + residual, one persistent launch.
; @launch grid=(256,1,1) block=(256,1,1) lds=%d
.amdgcn_target "amdgcn-amd-amdhsa--gfx950"
.text
.globl %s_kernel
.p2align 8
.type %s_kernel,@function
%s_kernel:
'''
FOOTER = '''.section .rodata,"a"
.p2align 6
.amdhsa_kernel %s_kernel
  .amdhsa_next_free_vgpr 512
  .amdhsa_next_free_sgpr 102
  .amdhsa_accum_offset 256
  .amdhsa_group_segment_fixed_size 0
  .amdhsa_kernarg_size 72
  .amdhsa_user_sgpr_count 2
  .amdhsa_user_sgpr_kernarg_segment_ptr 1
  .amdhsa_system_sgpr_workgroup_id_x 1
.end_amdhsa_kernel
'''


def build(**opt):
    OPT.update(opt)
    g = Gen()
    body = g.kernel()
    return HEADER % (LDS_BYTES, NAME, NAME, NAME) + body + FOOTER % NAME


if __name__ == '__main__':
    out = sys.argv[1] if len(sys.argv) > 1 else 'cdna_kernels/%s.s' % NAME
    opt = {}
    for a in sys.argv[2:]:
        k, v = a.split('=')
        opt[k] = int(v)
    open(out, 'w').write(build(**opt))
    print('wrote', out)
```

```python
import re

REG_RE = re.compile(r'^([vas])(\d+)$')
RNG_RE = re.compile(r'^([vas])\[(\d+):(\d+)\]$')

TRANS = ('v_exp_f32', 'v_log_f32', 'v_rcp_f32', 'v_rsq_f32', 'v_sqrt_f32', 'v_sin_f32', 'v_cos_f32')


def regs_of(tok):
    tok = tok.strip()
    m = REG_RE.match(tok)
    if m:
        return [(m.group(1), int(m.group(2)))]
    m = RNG_RE.match(tok)
    if m:
        return [(m.group(1), i) for i in range(int(m.group(2)), int(m.group(3)) + 1)]
    if tok == 'vcc':
        return [('s', 'vcc')]
    if tok in ('exec', 'exec_lo', 'exec_hi'):
        return [('s', 'exec')]
    if tok == 'm0':
        return [('s', 'm0')]
    return []


class Ins:
    __slots__ = ('text', 'op', 'kind', 'w', 'r', 'region', 'tag', 'srcc', 'srcab', 'dpp', 'states',
                 'lds_dma', 'comment', 'wide_store', 'label', 'raw')

    def __init__(self, text, region=None, tag=None):
        self.text = text
        self.region = region
        self.tag = tag
        self.w = []
        self.r = []
        self.srcc = []
        self.srcab = []
        self.dpp = False
        self.states = 1
        self.lds_dma = False
        self.wide_store = False
        self.label = False
        self.raw = False
        self.parse()

    def parse(self):
        t = self.text.split(';')[0].strip()
        if t.endswith(':'):
            self.kind = 'label'
            self.op = t
            self.states = 0
            self.label = True
            return
        parts = t.split(None, 1)
        op = parts[0]
        self.op = op
        rest = parts[1] if len(parts) > 1 else ''
        ops = []
        depth = 0
        cur = ''
        for ch in rest:
            if ch == '[':
                depth += 1
            if ch == ']':
                depth -= 1
            if ch == ',' and depth == 0:
                ops.append(cur.strip())
                cur = ''
            else:
                cur += ch
        if cur.strip():
            ops.append(cur.strip())
        mods = ''
        if ops:
            lp = ops[-1].split(None, 1)
            ops[-1] = lp[0]
            if len(lp) > 1:
                mods = lp[1]
        R = lambda i: regs_of(ops[i]) if i < len(ops) else []
        if op.startswith('v_mfma'):
            self.kind = 'mfma'
            self.w = R(0)
            self.srcab = R(1) + R(2)
            self.srcc = R(3)
            self.r = self.srcab + self.srcc
        elif op.startswith('v_'):
            self.kind = 'valu'
            if op.startswith('v_dot2'):
                self.kind = 'dot'
            if op.split('_e32')[0].split('_e64')[0] in TRANS:
                self.kind = 'trans'
            self.dpp = ('row_' in mods) or ('quad_perm' in mods) or op.endswith('_dpp')
            if op.startswith('v_permlane'):
                self.kind = 'permlane'
                self.w = R(0) + R(1)
                self.r = R(0) + R(1)
            elif op.startswith('v_readfirstlane') or op.startswith('v_readlane'):
                self.kind = 'readlane'
                self.w = R(0)
                self.r = R(1) + R(2)
            else:
                self.w = R(0)
                for i in range(1, len(ops)):
                    self.r += R(i)
                if op.startswith('v_fmac') or op.startswith('v_pk_fmac') or self.dpp:
                    self.r += R(0)
        elif op.startswith('ds_'):
            self.kind = 'ds'
            if op.startswith('ds_read') or op.startswith('ds_bpermute'):
                self.w = R(0)
                self.r = R(1)
            else:
                for i in range(len(ops)):
                    self.r += R(i)
        elif op.startswith('buffer_') or op.startswith('global_'):
            self.kind = 'vmem'
            allm = ' ' + mods + ' '
            if op.startswith('buffer_load') or op.startswith('global_load'):
                if ' lds ' in allm:
                    self.lds_dma = True
                    for i in range(len(ops)):
                        self.r += R(i)
                    self.r += [('s', 'm0')]
                else:
                    self.w = R(0)
                    for i in range(1, len(ops)):
                        self.r += R(i)
            else:
                for i in range(len(ops)):
                    self.r += R(i)
                if op.endswith('x4') or op.endswith('x3'):
                    self.wide_store = True
        elif op.startswith('s_'):
            self.kind = 'salu'
            if op == 's_nop':
                self.kind = 'nop'
                self.states = int(ops[0], 0) + 1
            elif op == 's_waitcnt':
                self.kind = 'wait'
            elif op in ('s_barrier', 's_endpgm', 's_branch', 's_setprio') or op.startswith('s_cbranch'):
                self.kind = 'ctl'
            elif op.startswith('s_load') or op.startswith('s_buffer_load'):
                self.kind = 'smem'
                self.w = R(0)
                self.r = R(1)
            elif op.startswith('s_cmp') or op.startswith('s_bitcmp'):
                for i in range(len(ops)):
                    self.r += R(i)
            elif op in ('s_memtime', 's_memrealtime'):
                self.kind = 'smem'
                self.w = R(0)
            else:
                self.w = R(0)
                for i in range(1, len(ops)):
                    self.r += R(i)
                if 'saveexec' in op:
                    self.w += [('s', 'exec')]
        else:
            raise ValueError('unknown instruction: ' + t)


class Builder:
    def __init__(self):
        self.ins = []
        self.region = None
        self._rid = 0
        self._lid = 0
        self.vmq = []
        self.lgq = []
        self.smem_pending = []
        self.bg = []
        self.bg_every = 0
        self._bg_cnt = 0
        self._bg_busy = False

    def bg_pop(self, n=1):
        if self._bg_busy:
            return
        self._bg_busy = True
        for _ in range(n):
            if not self.bg:
                break
            it = self.bg.pop(0)
            if callable(it):
                it()
            else:
                for t, tag in it:
                    self(t, tag=tag)
        self._bg_busy = False

    def bg_flush(self):
        while self.bg:
            self.bg_pop()

    def label_name(self, base):
        self._lid += 1
        return '%s_%d' % (base, self._lid)

    def begin_region(self):
        self._rid += 1
        self.region = self._rid
        return self.region

    def end_region(self):
        self.region = None

    def comment(self, s):
        i = Ins('s_nop 0')
        i.kind = 'comment'
        i.text = '; ' + s
        i.states = 0
        i.w = []
        i.r = []
        self.ins.append(i)

    def _count_younger(self, q, idx):
        tgt = q[idx]
        n = 0
        for e in q[idx + 1:]:
            if e['region'] is None or e['region'] == tgt['region'] and e['region'] == self.region:
                n += 1
        return n

    def _emit_wait(self, vm=None, lg=None):
        parts = []
        if vm is not None:
            parts.append('vmcnt(%d)' % min(vm, 63))
        if lg is not None:
            parts.append('lgkmcnt(%d)' % min(lg, 15))
        if parts:
            i = Ins('s_waitcnt ' + ' '.join(parts), region=self.region)
            self.ins.append(i)

    def _need(self, q, pred):
        idx = None
        for k, e in enumerate(q):
            if pred(e):
                idx = k
        return idx

    def _retire(self, q, idx):
        if self.region is None:
            del q[:idx + 1]
        else:
            keep = [e for e in q[:idx + 1] if e['region'] != self.region]
            q[:idx + 1] = keep

    def wait_vm(self, *tags):
        idx = self._need(self.vmq, lambda e: e['tag'] in tags)
        if idx is None:
            return
        n = self._count_younger(self.vmq, idx)
        self._emit_wait(vm=n)
        self._retire(self.vmq, idx)

    def wait_lg(self, *tags):
        idx = self._need(self.lgq, lambda e: (not tags) or e['tag'] in tags)
        if idx is None:
            return
        n = self._count_younger(self.lgq, idx)
        self._emit_wait(lg=n)
        self._retire(self.lgq, idx)

    def wait_all(self, vm=True, lg=True):
        self._emit_wait(vm=0 if vm else None, lg=0 if lg else None)
        if self.region is None:
            if vm:
                self.vmq = []
            if lg:
                self.lgq = []
                self.smem_pending = []

    def __call__(self, text, tag=None):
        for line in text.split('\n'):
            line = line.strip()
            if not line:
                continue
            if line.startswith(';'):
                self.comment(line[1:].strip())
                continue
            self._one(line, tag)

    def _one(self, line, tag):
        i = Ins(line, region=self.region, tag=tag)
        if i.kind == 'wait':
            m = re.search(r'vmcnt\((\d+)\)', line)
            if m and self.region is not None and int(m.group(1)) == 0:
                self.vmq = [e for e in self.vmq if e['region'] != self.region]
            if m and self.region is None:
                n = int(m.group(1))
                while len([e for e in self.vmq if e['region'] is None]) > n or (n == 0 and self.vmq):
                    self.vmq.pop(0)
            m = re.search(r'lgkmcnt\((\d+)\)', line)
            if m and self.region is not None and int(m.group(1)) == 0:
                self.lgq = [e for e in self.lgq if e['region'] != self.region]
            if m and self.region is None:
                n = int(m.group(1))
                while len([e for e in self.lgq if e['region'] is None]) > n or (n == 0 and self.lgq):
                    self.lgq.pop(0)
                if n == 0:
                    self.smem_pending = []
            self.ins.append(i)
            return
        touched = set(i.r) | set(i.w)
        vm = lg = None
        if touched:
            idx = self._need(self.vmq, lambda e: e['regs'] & touched)
            if idx is not None:
                vm = self._count_younger(self.vmq, idx)
                self._retire(self.vmq, idx)
            idx = self._need(self.lgq, lambda e: e['regs'] & touched)
            if idx is not None:
                lg = self._count_younger(self.lgq, idx)
                self._retire(self.lgq, idx)
            if set(self.smem_pending) & touched:
                lg = 0
                if self.region is None:
                    self.smem_pending = []
                    self.lgq = []
        self._emit_wait(vm, lg)
        self.ins.append(i)
        if i.kind == 'vmem':
            self.vmq.append(dict(regs=set(i.w), tag=tag, region=self.region))
        elif i.kind == 'ds':
            assert not self.smem_pending, 'LDS op with scalar load in flight: ' + line
            self.lgq.append(dict(regs=set(i.w), tag=tag, region=self.region))
        elif i.kind == 'smem':
            self.smem_pending += i.w
        if self.bg and self.bg_every and not self._bg_busy and self.region is None and i.kind in ('valu', 'trans'):
            self._bg_cnt += 1
            if self._bg_cnt >= self.bg_every:
                self._bg_cnt = 0
                self.bg_pop()

    def finalize(self):
        out = []
        for ins in self.ins:
            need = self._hazard(out, ins)
            while need > 0:
                n = min(need, 8)
                nop = Ins('s_nop %d' % (n - 1), region=ins.region)
                out.append(nop)
                need -= n
            out.append(ins)
        self.ins = out
        return out

    @staticmethod
    def _isv(regs):
        return [x for x in regs if x[0] in 'va']

    def _hazard(self, out, c):
        if c.kind in ('label', 'comment', 'nop', 'wait'):
            return 0
        need = 0
        dist = 0
        cr = set(c.r)
        cw = set(c.w)
        crw = cr | cw
        valu_like = c.kind in ('valu', 'trans', 'dot', 'permlane', 'readlane')
        k = len(out) - 1
        while k >= 0 and dist < 24:
            p = out[k]
            k -= 1
            if p.kind in ('label', 'comment'):
                continue
            req = 0
            pw = set(p.w)
            p_valu = p.kind in ('valu', 'trans', 'dot', 'permlane', 'readlane')
            if p.kind == 'mfma':
                d = pw
                if c.kind == 'mfma':
                    if d & set(c.srcab):
                        req = max(req, 8)
                    cc = set(c.srcc)
                    if d & cc and cc != d:
                        req = max(req, 6)
                    if d & cw and not (d & cc):
                        req = max(req, 8)
                elif d & crw and c.kind in ('valu', 'trans', 'dot', 'permlane', 'readlane', 'ds', 'vmem'):
                    req = max(req, 8)
                if valu_like and set(p.srcc) & cw:
                    req = max(req, 3)
            if p_valu:
                pv = {x for x in pw if x[0] in 'va'}
                ps = {x for x in pw if x[0] == 's'}
                if c.kind == 'mfma' and pv & cr:
                    req = max(req, 2)
                if (c.dpp or c.kind == 'permlane') and pv & cr:
                    req = max(req, 2)
                if c.kind == 'readlane' and pv & cr:
                    req = max(req, 1)
                if ps and valu_like and ps & cr:
                    req = max(req, 4 if c.kind == 'readlane' else 2)
                if ps and c.kind == 'vmem' and ps & cr:
                    req = max(req, 5)
                if p.kind == 'trans' and valu_like and pv & cr:
                    req = max(req, 1)
                if p.kind == 'dot' and pv & crw and (valu_like or c.kind in ('mfma', 'ds', 'vmem')):
                    if not (c.kind == 'dot' and c.op == p.op and self._dot_chain(p, c)):
                        req = max(req, 3)
            if p.kind == 'salu' and ('s', 'm0') in pw and c.lds_dma:
                req = max(req, 1)
            if p.kind == 'vmem' and p.wide_store:
                data = {x for x in p.r if x[0] in 'va'}
                if data & cw:
                    req = max(req, 2)
            if req > dist:
                need = max(need, req - dist)
            if p.region is None or p.region == c.region:
                dist += p.states
            else:
                dist += self._opt_states(out, k + 1, p)
        return need

    @staticmethod
    def _opt_states(out, k, p):
        return 0

    @staticmethod
    def _dot_chain(p, c):
        t = c.text.split(';')[0]
        ops = [o.strip() for o in t.split(None, 1)[1].split(',')]
        a = set(regs_of(ops[1])) | set(regs_of(ops[2].split()[0]))
        return not (a & set(p.w))

    def text(self):
        lines = []
        for i in self.ins:
            if i.kind == 'label':
                lines.append(i.text)
            elif i.kind == 'comment':
                lines.append('    ' + i.text)
            else:
                lines.append('    ' + i.text)
        return '\n'.join(lines) + '\n'
```

```python
import copy
import sys
from asmb import Builder

NAME = 'parallel_sum__sliding_local_dilated__dense_activation_relu__prompt'

OPT = dict(poll_limit=4000, stamps='', abl=0, poison='even', pf=1, bg_att=4, bg_mlp=3, verbose=0)
WS_FINE = 8 << 20

SLOT0, SLOT, WOFF = 1024, 43008, 18432
REG = 10752
ST = 132096
STR = 576
OX = 134144
SX = 150528
LDS_BYTES = 163840

WS_STATS, WS_D, H_OFF = 0, 32768, 131072
NKS = 59
WS_BYTES = H_OFF + 128 * NKS * 1024
OOB = 0x40000000

X_, W_, WS_, DBG_, W2_, WO_, OUT_ = 4, 8, 12, 16, 20, 24, 28
sW, sRB, sGRP, sROLE = 32, 33, 34, 35
sWOFF = 36
sW2A, sW2B, sW2C, sWOB, sFLC = 36, 37, 38, 39, 41
sXOFF, sXL, sWL, sHL, sWSTEP, sC = 42, 43, 44, 45, 46, 47
sW2L = 44
sHM = 48
sHST, sFL, sU = 50, 51, 53
sNON = 58
sP, sC0, sC1, sZ = 60, 62, 64, 66
sRT, sCT = 68, 69
sHB = 70
sPS, sCNT = 74, 75
sTS = 76
sTH, sNP = 100, 101


def srd(n):
    return 's[%d:%d]' % (n, n + 3)


def vr(a, n=1):
    return 'v%d' % a if n == 1 else 'v[%d:%d]' % (a, a + n - 1)


def ar(a, n=1):
    return 'a%d' % a if n == 1 else 'a[%d:%d]' % (a, a + n - 1)


def sr(a, n=1):
    return 's%d' % a if n == 1 else 's[%d:%d]' % (a, a + n - 1)


vONES = 212
vXA, vXB, vWA, vWB = 216, 217, 218, 219
vDX = 220
vDH, vDW = 224, 225
vSO, vG, vGL = 226, 227, 238
vGR = 228
vLD = 232
vNON = 236
vL = 239
T = 240
vL16 = 240
vHA, vHB_, vFA = 241, 242, 243
vROW = 244
vXR, vPO, vO = 226, 236, 237
vTB2, vTB01 = 228, 232
vFLG = 222
aPOIS = 252

MF = 'v_mfma_f32_16x16x32_bf16'
MF16 = 'v_mfma_f32_16x16x16_bf16'
TPO = [1, 2, 3, 0]


def one(t, tag=None):
    return [(t, tag)]


def size_of(it):
    if callable(it):
        return getattr(it, 'size', 2)
    return len(it)


def blk(fn, size=2):
    def w():
        fn()
    w.size = size
    return w


class Gen:
    def __init__(self):
        self.b = Builder()
        self.slow = []

    def ts(self, name):
        names = OPT['stamps'].split(',') if OPT['stamps'] else []
        if name not in names:
            return
        b = self.b
        b.wait_lg()
        b('s_memrealtime s[98:99]')
        b('s_waitcnt lgkmcnt(0)')
        b('s_mov_b32 %s, s98' % sr(sTS + names.index(name)))

    def save(self):
        b = self.b
        return copy.deepcopy((b.vmq, b.lgq, b.smem_pending))

    def restore(self, st):
        b = self.b
        b.vmq, b.lgq, b.smem_pending = copy.deepcopy(st)

    def emit(self, it):
        if callable(it):
            it()
        else:
            for t, tag in it:
                self.b(t, tag=tag)

    def schedule(self, mf, streams, G, name=''):
        slots = [[] for _ in range(G)]
        load = [0] * G
        for st in streams:
            items = st['items']
            if not items:
                continue
            lo, hi = st.get('lo', 0), min(st.get('hi', G - 1), G - 1)
            mind = st.get('mind', 0)
            n = len(items)
            prev = lo - mind
            for i, it in enumerate(items):
                sz = size_of(it)
                tgt = lo + int((i + st.get('ph', 0.5)) * (hi - lo + 1) / n)
                g0 = max(prev + mind, lo)
                cands = sorted(range(min(g0, G - 1), G), key=lambda g: (abs(g - tgt), g))
                pick = None
                for cap in (2, 3, 4, 99):
                    for g in cands:
                        if abs(g - tgt) > 3 and cap < 99 and g > tgt:
                            continue
                        if g < tgt - 1 and cap < 99:
                            continue
                        if load[g] + sz <= cap or (load[g] == 0 and sz > cap and cap == 2):
                            pick = g
                            break
                    if pick is not None:
                        break
                slots[pick].append(it)
                load[pick] += sz
                prev = pick
        if OPT['verbose']:
            print('%-8s' % name, ''.join(str(min(x, 9)) for x in load), sum(load), file=sys.stderr)
        for i, m in enumerate(mf):
            if callable(m):
                m()
            else:
                self.b(m)
            if i < G:
                for it in slots[i]:
                    self.emit(it)

    def poll_loop(self, load_text, check, name):
        b = self.b
        ok = b.label_name(name + '_ok')
        again = b.label_name(name + '_again')
        check()
        b('s_cbranch_scc1 %s' % ok)
        b.begin_region()
        b('s_mov_b32 %s, 0' % sr(sCNT))
        b(again + ':')
        b('s_sleep 1')
        b(load_text)
        b('s_waitcnt vmcnt(0)')
        check()
        b('s_cbranch_scc1 %s' % ok)
        b('s_add_u32 %s, %s, 1' % (sr(sCNT), sr(sCNT)))
        b('s_cmp_lt_u32 %s, %d' % (sr(sCNT), OPT['poll_limit']))
        b('s_cbranch_scc1 %s' % again)
        b.end_region()
        b(ok + ':')

    def prologue(self):
        b = self.b
        b('s_cmp_ge_u32 s2, 256')
        b('s_cbranch_scc1 L_end')
        b('s_lshr_b32 %s, s2, 4' % sr(sROLE))
        b('s_and_b32 %s, %s, 1' % (sr(sROLE), sr(sROLE)))
        b('s_cmp_eq_u32 %s, 0' % sr(sROLE))
        b('s_cselect_b32 s3, 8, 32')
        b('s_load_dwordx2 s[4:5], s[0:1], 0')
        b('s_load_dwordx2 s[8:9], s[0:1], s3')
        b('s_load_dwordx2 s[12:13], s[0:1], 64')
        b('s_load_dwordx2 s[16:17], s[0:1], 56')
        b('s_load_dwordx2 s[20:21], s[0:1], 40')
        b('s_load_dwordx2 s[24:25], s[0:1], 16')
        b('s_load_dwordx2 s[28:29], s[0:1], 48')
        b('s_memrealtime %s' % sr(sNON, 2))
        vl, L3, L7, g, n, a, c = vL, 1, 2, 3, 4, 5, 6
        self.pv = dict(l=vl, L3=L3, L7=L7, g=g, n=n, a=a, c=c)
        b('v_and_b32 %s, 63, v0' % vr(vl))
        b('v_lshrrev_b32 %s, 6, v0' % vr(a))
        b('v_lshrrev_b32 %s, 3, %s' % (vr(L3), vr(vl)))
        b('v_readfirstlane_b32 %s, %s' % (sr(sW), vr(a)))
        b('v_and_b32 %s, 7, %s' % (vr(L7), vr(vl)))
        b('v_lshrrev_b32 %s, 4, %s' % (vr(g), vr(vl)))
        b('v_and_b32 %s, 15, %s' % (vr(n), vr(vl)))
        b('s_mov_b32 s6, 0x200000')
        b('s_mov_b32 s7, 0x20000')
        b('s_cmp_eq_u32 %s, 0' % sr(sROLE))
        b('s_mov_b32 s10, %d' % (512 * 2752))
        b('s_cselect_b32 s10, %d, s10' % (512 * 3072))
        b('s_mov_b32 s11, 0x20000')
        b('s_and_b32 s54, s2, 7')
        b('s_lshr_b32 s55, s2, 3')
        b('s_and_b32 s56, s54, 1')
        b('s_lshl_b32 s56, s56, 3')
        b('s_lshr_b32 s57, s55, 2')
        b('s_add_u32 %s, s56, s57' % sr(sRB))
        b('s_and_b32 s56, s54, 6')
        b('s_and_b32 s57, s55, 1')
        b('s_add_u32 %s, s56, s57' % sr(sGRP))
        b('s_lshl_b32 s56, s54, 2')
        b('s_lshr_b32 s57, s55, 3')
        b('s_add_u32 %s, s56, s57' % sr(sRT))
        b('s_and_b32 %s, s55, 7' % sr(sCT))
        b('s_lshr_b32 s54, %s, 1' % sr(sGRP))
        b('s_mul_i32 s54, s54, 11')
        b('s_and_b32 s55, %s, 1' % sr(sGRP))
        b('s_mul_i32 s56, s55, 6')
        b('s_add_u32 s54, s54, s56')
        b('s_cmp_eq_u32 %s, 7' % sr(sGRP))
        b('s_subb_u32 %s, s54, 0' % sr(sPS))
        b('s_cmp_eq_u32 %s, 6' % sr(sGRP))
        b('s_cselect_b32 s56, 1, s55')
        b('s_sub_u32 %s, 6, s56' % sr(sNP))
        b('s_lshl_b32 s54, %s, 7' % sr(sRB))
        b('s_lshl_b32 s55, %s, 5' % sr(sW))
        b('s_add_u32 s55, s55, s54')
        b('v_add_u32 %s, s55, %s' % (vr(a), vr(L3)))
        b('v_xor_b32 %s, %s, %s' % (vr(c), vr(L7), vr(g)))
        b('v_lshlrev_b32 %s, 4, %s' % (vr(c), vr(c)))
        b('v_lshl_add_u32 %s, %s, 10, %s' % (vr(vDX), vr(a), vr(c)))
        b('v_add_u32 %s, 0x2000, %s' % (vr(vDX + 1), vr(vDX)))
        b('v_xor_b32 %s, 64, %s' % (vr(vDX + 1), vr(vDX + 1)))
        b('v_add_u32 %s, 0x4000, %s' % (vr(vDX + 2), vr(vDX)))
        b('v_add_u32 %s, 0x4000, %s' % (vr(vDX + 3), vr(vDX + 1)))
        b('s_and_b32 s55, %s, 1' % sr(sW))
        b('s_lshl_b32 s55, s55, 4')
        b('s_lshr_b32 s56, %s, 1' % sr(sW))
        b('s_lshl_b32 s56, s56, 2')
        b('s_add_u32 s55, s55, s56')
        b('v_lshrrev_b32 %s, 5, %s' % (vr(a), vr(vl)))
        b('v_lshlrev_b32 %s, 3, %s' % (vr(a), vr(a)))
        b('v_and_b32 %s, 3, %s' % (vr(c), vr(L3)))
        b('v_add3_u32 %s, %s, %s, s55' % (vr(a), vr(a), vr(c)))
        b('v_lshlrev_b32 %s, 1, %s' % (vr(c), vr(g)))
        b('v_xor_b32 %s, %s, %s' % (vr(c), vr(L7), vr(c)))
        b('v_lshlrev_b32 %s, 4, %s' % (vr(c), vr(c)))
        b('s_cmp_eq_u32 %s, 0' % sr(sROLE))
        b('s_mov_b32 s56, 2752')
        b('s_cselect_b32 s56, 3072, s56')
        b('s_lshl_b32 s57, %s, 7' % sr(sGRP))
        b('s_lshl_b32 s52, %s, 6' % sr(sPS))
        b('s_cmp_eq_u32 %s, 0' % sr(sROLE))
        b('s_cselect_b32 s57, s57, s52')
        b('s_mov_b32 s55, 128')
        b('s_cselect_b32 s55, 1024, s55')
        b('v_add_u32 %s, s57, %s' % (vr(c), vr(c)))
        b('v_mad_u32_u24 %s, %s, s56, %s' % (vr(vDW), vr(a), vr(c)))
        b('s_mov_b32 s36, 0')
        b('s_mov_b32 s37, s55')
        b('s_lshl_b32 s38, s55, 1')
        b('s_lshl_b32 s39, s56, 5')
        b('s_add_u32 s40, s39, s37')
        b('s_add_u32 s41, s39, s38')
        b('s_lshl_b32 %s, s56, 6' % sr(sWSTEP))
        b('s_mov_b32 %s, 0' % sr(sXOFF))
        b('s_lshl_b32 s54, %s, 12' % sr(sW))
        b('s_add_u32 %s, s54, %d' % (sr(sXL), SLOT0 + 2048))
        b('s_mul_i32 s54, %s, 6144' % sr(sW))
        b('s_add_u32 %s, s54, %d' % (sr(sWL), SLOT0 + WOFF))

    def halo_setup(self):
        b = self.b
        pv = self.pv
        L3, L7, g, a, c = (pv[k] for k in ('L3', 'L7', 'g', 'a', 'c'))
        b('s_lshl_b32 s54, %s, 9' % sr(sW))
        b('s_add_u32 %s, s54, %d' % (sr(sHL), SLOT0))
        b('s_lshl_b32 s54, %s, 7' % sr(sRB))
        b('s_lshl_b32 s55, %s, 2' % sr(sW))
        b('s_add_u32 s55, s55, s54')
        b('s_sub_u32 s55, s55, 16')
        b('v_add_u32 %s, s55, %s' % (vr(a), vr(L3)))
        b('v_max_i32 %s, 0, %s' % (vr(a), vr(a)))
        b('s_lshl_b32 s56, %s, 1' % sr(sW))
        b('v_add_u32 %s, s56, %s' % (vr(c), vr(g)))
        b('v_xor_b32 %s, %s, %s' % (vr(c), vr(L7), vr(c)))
        b('v_and_b32 %s, 7, %s' % (vr(c), vr(c)))
        b('v_lshlrev_b32 %s, 4, %s' % (vr(c), vr(c)))
        b('v_lshl_add_u32 %s, %s, 10, %s' % (vr(vDH), vr(a), vr(c)))
        b('s_cmp_eq_u32 %s, 0' % sr(sW))
        b('s_cselect_b32 %s, 0xffffff00, -1' % sr(sHM))
        b('s_mov_b32 %s, 0' % sr(sHM + 1))

    def srd_rest(self):
        return ['s_mov_b32 s14, %d' % WS_BYTES, 's_mov_b32 s15, 0x20000',
                's_mov_b32 s18, 256', 's_mov_b32 s19, 0x20000',
                's_mov_b32 s22, %d' % (1376 * 1024), 's_mov_b32 s23, 0x20000',
                's_mov_b32 s26, %d' % (512 * 1024), 's_mov_b32 s27, 0x20000',
                's_mov_b32 s30, 0x200000', 's_mov_b32 s31, 0x20000']

    def dma_items(self, att, s):
        slot = SLOT * (s % 3)
        tag = 'st%d' % s
        items = []
        for j in range(4):
            items.append((one('s_add_u32 m0, %s, %d' % (sr(sXL), slot + j * 1024)),
                          one('buffer_load_dwordx4 %s, %s, %s offen lds' % (vr(vDX + j), srd(X_), sr(sXOFF)), tag)))
        if att:
            items.append((one('s_add_u32 m0, %s, %d' % (sr(sHL), slot)),
                          [('s_mov_b64 exec, %s' % sr(sHM, 2), None),
                           ('buffer_load_dwordx4 %s, %s, %s offen lds' % (vr(vDH), srd(X_), sr(sXOFF)), tag),
                           ('s_mov_b64 exec, -1', None)]))
        for bb in range(2):
            for p in range(3):
                items.append((one('s_add_u32 m0, %s, %d' % (sr(sWL), slot + (3 * bb + p) * 1024)),
                              one('buffer_load_dwordx4 %s, %s, %s offen lds' % (vr(vDW), srd(W_), sr(sWOFF + 3 * bb + p)), tag)))
        tail = [one('v_add_u32 %s, %s, %s' % (vr(vDW), sr(sWSTEP), vr(vDW))),
                one('s_add_u32 %s, %s, 128' % (sr(sXOFF), sr(sXOFF)))]
        return items, tail

    def dma_half(self, att, s, half):
        items, tail = self.dma_items(att, s)
        k = len(items) - 5
        part = items[:k] if half == 0 else items[k:]
        out = []
        for pre, ld in part:
            out += [pre, ld]
        if half == 1:
            out += tail
        return out

    def stats_items(self):
        t = 252
        s0, s1, q0, q1 = t, t + 1, t + 2, t + 3
        o = []
        for i in range(8):
            x = vr(vROW + i)
            sa = vr(s0 if i % 2 == 0 else s1)
            qa = vr(q0 if i % 2 == 0 else q1)
            o.append('v_dot2_f32_bf16 %s, %s, %s, %s' % (sa, x, vr(vONES), sa if i >= 2 else '0'))
            o.append('v_dot2_f32_bf16 %s, %s, %s, %s' % (qa, x, x, qa if i >= 2 else '0'))
        o.append('v_add_f32 %s, %s, %s' % (vr(s0), vr(s0), vr(s1)))
        o.append('v_add_f32 %s, %s, %s' % (vr(q0), vr(q0), vr(q1)))
        for sh in (8, 4, 2, 1):
            o.append('v_add_f32_dpp %s, %s, %s row_ror:%d row_mask:0xf bank_mask:0xf' % (vr(s0), vr(s0), vr(s0), sh))
            o.append('v_add_f32_dpp %s, %s, %s row_ror:%d row_mask:0xf bank_mask:0xf' % (vr(q0), vr(q0), vr(q0), sh))
        o.append('v_mov_b32 %s, %s' % (vr(s1), vr(s0)))
        o.append('v_mov_b32 %s, %s' % (vr(q1), vr(q0)))
        o.append('v_permlane16_swap_b32 %s, %s' % (vr(s0), vr(s1)))
        o.append('v_permlane16_swap_b32 %s, %s' % (vr(q0), vr(q1)))
        o.append('v_add_f32 %s, %s, %s' % (vr(s0), vr(s0), vr(s1)))
        o.append('v_add_f32 %s, %s, %s' % (vr(q0), vr(q0), vr(q1)))
        o.append('v_mul_f32 %s, 0xbb000000, %s' % (vr(vGR), vr(s0)))
        o.append('v_mul_f32 %s, 0x3b000000, %s' % (vr(q0), vr(q0)))
        o.append('v_fma_f32 %s, -%s, %s, %s' % (vr(q0), vr(vGR), vr(vGR), vr(q0)))
        o.append('v_max_f32 %s, 0, %s' % (vr(q0), vr(q0)))
        o.append('v_add_f32 %s, 0x3727c5ac, %s' % (vr(q0), vr(q0)))
        o.append('v_rsq_f32 %s, %s' % (vr(vGR + 1), vr(q0)))
        return [one(x) for x in o]

    def nonce_text(self):
        return 'buffer_load_dwordx2 %s, off, %s, 0 sc1' % (vr(vNON, 2), srd(DBG_))

    def nonce_and_stats_store(self):
        b = self.b

        def check():
            b('v_readfirstlane_b32 %s, %s' % (sr(sNON), vr(vNON)))
            b('v_readfirstlane_b32 %s, %s' % (sr(sNON + 1), vr(vNON + 1)))
            b('s_cmp_lg_u32 %s, 0' % sr(sNON))
        self.poll_loop(self.nonce_text(), check, 'L_non')
        b('v_mov_b32 %s, %s' % (vr(vGR + 2), sr(sNON)))
        b('v_mov_b32 %s, %s' % (vr(vGR + 3), sr(sNON + 1)))
        b('s_mov_b32 exec_lo, 1')
        b('s_mov_b32 exec_hi, 1')
        b('buffer_store_dwordx4 %s, %s, %s, 0 offen sc1' % (vr(vGR, 4), vr(vSO), srd(WS_)), tag='sst')
        b('s_mov_b64 exec, -1')

    def gather_text(self):
        return 'buffer_load_dwordx4 %s, %s, %s, 0 offen sc1' % (vr(vLD, 4), vr(vG), srd(WS_))

    def gather_check(self):
        b = self.b

        def check():
            b('v_cmp_ne_u32 vcc, %s, %s' % (sr(sNON), vr(vLD + 2)))
            b('v_cmp_ne_u32 %s, %s, %s' % (sr(sZ, 2), sr(sNON + 1), vr(vLD + 3)))
            b('s_or_b64 vcc, vcc, %s' % sr(sZ, 2))
            b('s_cmp_eq_u64 vcc, 0')
        self.poll_loop(self.gather_text(), check, 'L_gat')
        b('ds_write_b32 %s, %s' % (vr(vGL), vr(vLD)), tag='stw')
        b('ds_write_b32 %s, %s offset:%d' % (vr(vGL), vr(vLD + 1), STR), tag='stw')

    def poison_items(self, att):
        out = []
        tmp = 56
        if att:
            for i in range(4):
                out.append([('s_add_u32 %s, %s, %d' % (sr(tmp), sr(sHST), i * NKS * 1024), None),
                            ('buffer_store_dwordx4 %s, %s, %s, %s offen sc1' % (ar(aPOIS, 4), vr(vL16), srd(WS_), sr(tmp)), 'poison')])
        else:
            for p in range(3):
                if p == 2:
                    out.append([('s_lshr_b32 s57, %s, 1' % sr(sW), None),
                                ('s_add_u32 s57, s57, 4', None),
                                ('s_cmp_ge_u32 s57, %s' % sr(sNP), None),
                                ('s_cselect_b32 s57, %d, %s' % (OOB, sr(sHST)), None)])
                for t in range(4):
                    base = 57 if p == 2 else sHST
                    out.append([('s_add_u32 %s, %s, %d' % (sr(tmp), sr(base), t * NKS * 1024 + p * 2048), None),
                                ('buffer_store_dwordx4 %s, %s, %s, %s offen sc1' % (ar(aPOIS, 4), vr(vL16), srd(WS_), sr(tmp)), 'poison')])
        return out

    def flag_store(self):
        b = self.b
        b.wait_vm('poison')
        b('v_mov_b32 %s, %s' % (vr(vLD), sr(sNON)))
        b('v_mov_b32 %s, %s' % (vr(vLD + 1), sr(sNON + 1)))
        b('s_mov_b64 exec, 1')
        b('buffer_store_dwordx2 %s, off, %s, %s sc1' % (vr(vLD, 2), srd(WS_), sr(sFL)), tag='flag')
        b('s_mov_b64 exec, -1')

    def setup_items(self, att):
        pv = self.pv
        l, L3, L7, g, n, a, c = (pv[k] for k in ('l', 'L3', 'L7', 'g', 'n', 'a', 'c'))
        d = 7
        o = []
        A = o.append
        A('s_lshl_b32 s54, %s, 7' % sr(sRB))
        A('s_lshl_b32 s55, %s, 3' % sr(sROLE))
        A('s_add_u32 s55, s55, %s' % sr(sGRP))
        A('s_lshl_b32 s55, s55, 3')
        A('s_add_u32 s55, s55, s54')
        A('s_lshl_b32 s56, %s, 1' % sr(sW))
        A('s_add_u32 s55, s55, s56')
        A('v_lshrrev_b32 %s, 5, %s' % (vr(a), vr(l)))
        A('v_add_u32 %s, s55, %s' % (vr(a), vr(a)))
        A('v_lshlrev_b32 %s, 4, %s' % (vr(vSO), vr(a)))
        A('v_and_b32 %s, 31, %s' % (vr(c), vr(l)))
        A('v_lshlrev_b32 %s, 4, %s' % (vr(c), vr(c)))
        A('v_lshl_add_u32 %s, %s, 10, %s' % (vr(11), vr(a), vr(c)))
        A(('buffer_load_dwordx4 %s, %s, %s, 0 offen' % (vr(vROW, 4), vr(11), srd(X_)), 'srow'))
        A(('buffer_load_dwordx4 %s, %s, %s, 0 offen offset:512' % (vr(vROW + 4, 4), vr(11), srd(X_)), 'srow'))
        first = len(o)
        A('v_lshlrev_b32 %s, 4, %s' % (vr(vL16), vr(l)))
        for i in range(4):
            A('v_mov_b32 %s, 0x3f803f80' % vr(vONES + i))
        if att:
            A('v_add_u32 %s, %d, %s' % (vr(a), 2 * SLOT, vr(vL16)))
            A([('s_mov_b64 exec, 0xff', None),
               ('ds_write_b128 %s, %s offset:%d' % (vr(vL16), vr(vONES, 4), SLOT0), 'ones'),
               ('ds_write_b128 %s, %s offset:%d' % (vr(vL16), vr(vONES, 4), SLOT0 + SLOT), 'ones'),
               ('ds_write_b128 %s, %s offset:%d' % (vr(a), vr(vONES, 4), SLOT0), 'ones'),
               ('s_mov_b64 exec, -1', None)])
        A('v_lshrrev_b32 %s, 1, %s' % (vr(a), vr(n)))
        A('v_xor_b32 %s, %s, %s' % (vr(a), vr(a), vr(g)))
        A('v_lshlrev_b32 %s, 4, %s' % (vr(a), vr(a)))
        A('v_lshl_add_u32 %s, %s, 7, %s' % (vr(a), vr(n), vr(a)))
        if att:
            A('v_add_u32 %s, %d, %s' % (vr(vXA), SLOT0, vr(a)))
        else:
            A('s_and_b32 %s, %s, 1' % (sr(sTH), sr(sW)))
            A('s_lshl_b32 s54, %s, 13' % sr(sTH))
            A('s_add_u32 s54, s54, %d' % (SLOT0 + 2048))
            A('v_add_u32 %s, s54, %s' % (vr(vXA), vr(a)))
        A('v_xor_b32 %s, 64, %s' % (vr(vXB), vr(vXA)))
        r_, cc = d, d + 1
        A('v_bfe_u32 %s, %s, 2, 2' % (vr(r_), vr(l)))
        A('v_and_b32 %s, 3, %s' % (vr(cc), vr(l)))
        A('v_and_b32 %s, 1, %s' % (vr(a), vr(g)))
        A('v_lshl_add_u32 %s, %s, 2, %s' % (vr(a), vr(a), vr(r_)))
        A('v_lshrrev_b32 %s, 1, %s' % (vr(c), vr(a)))
        A('v_lshlrev_b32 %s, 1, %s' % (vr(c), vr(c)))
        if att:
            A('s_lshl_b32 s54, %s, 1' % sr(sW))
        else:
            A('s_and_b32 s54, %s, 2' % sr(sW))
            A('s_lshl_b32 s54, s54, 1')
        A('v_xor_b32 %s, s54, %s' % (vr(c), vr(c)))
        A('v_lshrrev_b32 %s, 1, %s' % (vr(d + 2), vr(cc)))
        A('v_add_u32 %s, %s, %s' % (vr(c), vr(c), vr(d + 2)))
        A('v_lshlrev_b32 %s, 4, %s' % (vr(c), vr(c)))
        A('v_lshl_add_u32 %s, %s, 7, %s' % (vr(c), vr(a), vr(c)))
        A('v_and_b32 %s, 1, %s' % (vr(a), vr(cc)))
        A('v_lshl_add_u32 %s, %s, 3, %s' % (vr(c), vr(a), vr(c)))
        A('v_lshrrev_b32 %s, 1, %s' % (vr(a), vr(g)))
        A('s_mov_b32 s54, 6144')
        A('v_mad_u32_u24 %s, %s, s54, %s' % (vr(c), vr(a), vr(c)))
        A('v_add_u32 %s, %d, %s' % (vr(vWA), SLOT0 + WOFF, vr(c)))
        if not att:
            A('v_xor_b32 %s, 32, %s' % (vr(vWB), vr(vWA)))
        if att:
            A('v_min_u32 %s, 35, %s' % (vr(a), vr(l)))
            A('s_mul_i32 s54, %s, 36' % sr(sW))
        else:
            A('v_min_u32 %s, 31, %s' % (vr(a), vr(l)))
            A('s_lshl_b32 s54, %s, 5' % sr(sW))
            A('s_add_u32 s54, s54, 16')
        A('v_add_u32 %s, s54, %s' % (vr(a), vr(a)))
        A('v_lshlrev_b32 %s, 2, %s' % (vr(c), vr(a)))
        A('v_add_u32 %s, %d, %s' % (vr(vGL), ST, vr(c)))
        A('s_lshl_b32 s54, %s, 7' % sr(sRB))
        A('s_sub_u32 s54, s54, 16')
        A('v_add_u32 %s, s54, %s' % (vr(a), vr(a)))
        A('v_max_i32 %s, 0, %s' % (vr(a), vr(a)))
        A('v_lshlrev_b32 %s, 4, %s' % (vr(vG), vr(a)))
        A('s_lshl_b32 s54, %s, 3' % sr(sRB))
        A('s_and_b32 s55, %s, 1' % sr(sW))
        A('s_lshl_b32 s55, s55, 2')
        A('s_add_u32 s54, s54, s55')
        A('s_mul_i32 s54, s54, %d' % NKS)
        if att:
            A('s_lshl_b32 s55, %s, 1' % sr(sGRP))
            A('s_add_u32 s55, s55, 43')
            A('s_add_u32 s54, s54, s55')
        else:
            A('s_add_u32 s54, s54, %s' % sr(sPS))
        A('s_lshr_b32 s55, %s, 1' % sr(sW))
        A('s_add_u32 s54, s54, s55')
        A('s_lshl_b32 s54, s54, 10')
        A('s_add_u32 %s, s54, %d' % (sr(sHST), H_OFF))
        A('s_lshl_b32 s54, %s, 1' % sr(sRB))
        A('s_and_b32 s55, %s, 1' % sr(sW))
        A('s_add_u32 s54, s54, s55')
        A('s_lshl_b32 s54, s54, 2')
        A('s_lshr_b32 s55, %s, 1' % sr(sGRP))
        A('s_add_u32 s54, s54, s55')
        A('s_lshl_b32 s54, s54, 4')
        A('s_and_b32 s55, %s, 1' % sr(sGRP))
        A('s_lshl_b32 s55, s55, 1')
        A('s_add_u32 s54, s54, s55')
        A('s_lshr_b32 s55, %s, 1' % sr(sW))
        A('s_add_u32 s54, s54, s55')
        A('s_lshl_b32 s54, s54, 3')
        A('s_add_u32 %s, s54, %d' % (sr(sFL), WS_D + (0 if att else 32)))
        for i in range(4):
            A('v_accvgpr_write_b32 %s, -1' % ar(aPOIS + i))
        items = []
        for x in o:
            if isinstance(x, list):
                items.append(x)
            elif isinstance(x, tuple):
                items.append([x])
            else:
                items.append(one(x))
        return items[:first], items[first:]

    def prefetch_items(self):
        l = vL
        o = ['s_lshr_b32 s54, s2, 3', 's_lshl_b32 s54, s54, 2', 's_add_u32 s54, s54, %s' % sr(sW),
             's_mul_i32 s55, s54, %d' % (86 * 128), 's_lshl_b32 s54, s54, 12',
             'v_lshlrev_b32 v12, 7, %s' % vr(l), 'v_and_b32 v13, 0xfff, v12',
             'v_add_u32 v12, s55, v12', 'v_add_u32 v13, s54, v13']
        it = [one(x) for x in o]
        it.append(one('buffer_load_dword a240, v12, %s, 0 offen' % srd(W2_), 'pf'))
        it.append(one('buffer_load_dword a241, v12, %s, 0 offen offset:2816' % srd(W2_), 'pf'))
        it.append(one('buffer_load_dword a242, v13, %s, 0 offen' % srd(WO_), 'pf'))
        return it

    def role_prologue(self, att):
        b = self.b
        if att:
            self.halo_setup()
        b('s_waitcnt lgkmcnt(0)')
        names = OPT['stamps'].split(',')
        if 'start' in names:
            b('s_mov_b32 %s, %s' % (sr(sTS + names.index('start')), sr(sNON)))
        self.ts('karg')
        for it in self.dma_half(att, 0, 0) + self.dma_half(att, 0, 1):
            self.emit(it)
        for x in self.srd_rest():
            b(x)
        if att:
            lab = b.label_name('L_nopub')
            b('s_lshl_b32 s54, s2, 2')
            b('s_or_b32 s54, s54, %s' % sr(sW))
            b('s_cmp_lg_u32 s54, 0')
            b('s_cbranch_scc1 %s' % lab)
            b.begin_region()
            b('s_or_b32 %s, %s, 1' % (sr(sNON), sr(sNON)))
            b('v_mov_b32 %s, %s' % (vr(vGR), sr(sNON)))
            b('v_mov_b32 %s, %s' % (vr(vGR + 1), sr(sNON + 1)))
            b('s_mov_b64 exec, 1')
            b('buffer_store_dwordx2 %s, off, %s, 0 sc1' % (vr(vGR, 2), srd(DBG_)))
            b('s_mov_b64 exec, -1')
            b.end_region()
            b(lab + ':')
        self.ts('st0')
        first, rest = self.setup_items(att)
        units = []
        for s_, half in ((1, 0), (1, 1), (2, 0)):
            items = self.dma_half(att, s_, half)
            npairs = (len(items) - (2 if half else 0)) // 2
            for i in range(npairs):
                units.append([items[2 * i], items[2 * i + 1], []])
            if half:
                units[-1][2] = items[2 * npairs:]
        seq = first + rest
        per = -(-len(seq) // len(units))
        for pre, ld, tail in units:
            self.emit(pre)
            if seq:
                self.emit(seq.pop(0))
            self.emit(ld)
            for it in tail:
                self.emit(it)
            for _ in range(per - 1):
                if seq:
                    self.emit(seq.pop(0))
        assert not seq
        if OPT['poison'] == 'pro':
            for it in self.poison_items(att):
                self.emit(it)
        if OPT['pf']:
            for it in self.prefetch_items():
                self.emit(it)
        self.ts('prol')

    UNIT_SLOT = [2, 0, 1, 2, 0, 1]

    def w2_setup_v(self):
        l = vL
        a, c = 252, 253
        o = ['v_lshrrev_b32 %s, 4, %s' % (vr(a), vr(l)),
             'v_lshlrev_b32 %s, 1, %s' % (vr(a), vr(a)),
             'v_and_b32 %s, 7, %s' % (vr(c), vr(l)),
             'v_xor_b32 %s, %s, %s' % (vr(a), vr(a), vr(c)),
             'v_lshlrev_b32 %s, 4, %s' % (vr(a), vr(a)),
             'v_lshrrev_b32 %s, 3, %s' % (vr(c), vr(l)),
             'v_lshl_add_u32 %s, %s, 10, %s' % (vr(a), vr(c), vr(a)),
             's_lshl_b32 s54, %s, 7' % sr(sCT),
             'v_add_u32 %s, s54, %s' % (vr(vDX), vr(a)),
             'v_add_u32 %s, 7168, %s' % (vr(vDX + 1), vr(vDX))]
        return [one(x) for x in o]

    def w2_setup_s(self):
        o = [['s_mul_i32 %s, %s, %d' % (sr(sW2A), sr(sW), 11 * 32768)],
             ['s_mul_i32 s55, %s, %d' % (sr(sW), REG)],
             ['s_add_u32 %s, s55, %d' % (sr(sW2L), SLOT0)],
             ['s_cmp_eq_u32 %s, 3' % sr(sW),
              's_cselect_b32 %s, 5, 6' % sr(sW2B),
              's_cselect_b32 %s, %d, %s' % (sr(sW2C), OOB, sr(sW2A))],
             ['s_lshl_b32 %s, %s, 15' % (sr(sW2B), sr(sW2B))],
             ['s_add_u32 %s, %s, %s' % (sr(sW2B), sr(sW2B), sr(sW2A))],
             ['s_lshl_b32 %s, %s, 17' % (sr(sWOB), sr(sW))],
             ['s_lshl_b32 s55, %s, 2' % sr(sRT)],
             ['s_add_u32 s55, s55, %s' % sr(sW)],
             ['s_lshl_b32 s55, s55, 7'],
             ['s_add_u32 %s, s55, %d' % (sr(sFLC), WS_D)]]
        return [[(t, None) for t in x] for x in o]

    def tr_base_items(self, dst, slot_off):
        l = vL
        a, c, d, e = 252, 253, 254, 255
        o = ['v_bfe_u32 %s, %s, 2, 2' % (vr(a), vr(l)),
             'v_lshrrev_b32 %s, 4, %s' % (vr(c), vr(l)),
             'v_lshl_add_u32 %s, %s, 2, %s' % (vr(d), vr(c), vr(a)),
             'v_bfe_u32 %s, %s, 1, 2' % (vr(e), vr(d)),
             'v_lshlrev_b32 %s, 5, %s' % (vr(e), vr(e)),
             'v_lshl_add_u32 %s, %s, 7, %s' % (vr(e), vr(d), vr(e)),
             'v_and_b32 %s, 3, %s' % (vr(a), vr(l)),
             'v_lshl_add_u32 %s, %s, 3, %s' % (vr(e), vr(a), vr(e)),
             's_mul_i32 s54, %s, %d' % (sr(sW), REG),
             's_add_u32 s54, s54, %d' % (SLOT0 + slot_off),
             'v_add_u32 %s, s54, %s' % (vr(dst), vr(e))]
        for cp in range(1, 4):
            o.append('v_xor_b32 %s, %d, %s' % (vr(dst + cp), 32 * cp, vr(dst)))
        return [one(x) for x in o]

    def tr_base01_items(self):
        return [one('v_add_u32 %s, %s, %s' % (vr(vTB01 + cp), hex((-2 * SLOT) & 0xffffffff), vr(vTB2 + cp))) for cp in range(4)]

    @staticmethod
    def step_off(j):
        if j >= 11:
            return 'o', j - 11
        c, h, e = j >> 2, (j >> 1) & 1, j & 1
        if j == 9:
            return 'c', 5
        return ('b' if h else 'a'), 2 * c + e

    def w2_dma_unit(self, q):
        j, hh = q >> 1, q & 1
        r, pos = q // 5, q % 5
        kind, off = self.step_off(j)
        base = dict(a=sW2A, b=sW2B, c=sW2C, o=sWOB)[kind]
        sd = WO_ if kind == 'o' else W2_
        tag = 'w2_%d' % r
        lds = self.UNIT_SLOT[r] * SLOT + pos * 2048
        return [[('s_add_u32 %s, %s, %d' % (sr(sU), sr(base), off * 32768 + hh * 16384), None),
                 ('s_add_u32 m0, %s, %d' % (sr(sW2L), lds), None)],
                one('buffer_load_dwordx4 %s, %s, %s offen lds' % (vr(vDX), srd(sd), sr(sU)), tag),
                one('buffer_load_dwordx4 %s, %s, %s offen offset:1024 lds' % (vr(vDX + 1), srd(sd), sr(sU)), tag)]

    def w2_dma(self, q0, q1):
        out = []
        for q in range(q0, q1):
            out += self.w2_dma_unit(q)
        return out

    def w2_tr_unit(self, q):
        j, hh = q >> 1, q & 1
        r, pos = q // 5, q % 5
        sl = self.UNIT_SLOT[r]
        base = vTB2 if sl == 2 else vTB01
        off = pos * 2048 + (0 if sl == 2 else sl * SLOT)
        return [one('ds_read_b64_tr_b16 %s, %s offset:%d' % (ar(16 * j + 4 * cp + 2 * hh, 2), vr(base + cp), off), 'tr%d' % r)
                for cp in range(4)]

    def w2_tr(self, r):
        out = []
        for q in range(5 * r, 5 * r + 5):
            out += self.w2_tr_unit(q)
        return out

    def w2_background(self):
        b = self.b
        pair = lambda xs: [xs[i] + xs[i + 1] for i in range(0, len(xs), 2)]
        o = self.w2_dma(13, 15)
        o.append(lambda: b.wait_lg('tr0'))
        o += self.w2_dma(15, 20)
        o.append(lambda: b.wait_vm('w2_1'))
        o += pair(self.w2_tr(1))
        o.append(self.flags_load_item())
        o.append(lambda: b.wait_lg('tr1'))
        o += self.w2_dma(20, 25)
        o.append(lambda: b.wait_vm('w2_2'))
        o += pair(self.w2_tr(2))
        o.append(lambda: b.wait_lg('tr2'))
        o += self.w2_dma(25, 30)
        return o

    def p2_setup_items(self):
        l = vL
        a, c, d = 252, 253, 254
        o = []
        A = o.append
        A('s_lshl_b32 s55, %s, 2' % sr(sRT))
        for tp in range(4):
            r = sHB + tp
            A('s_add_u32 %s, %s, %d' % (sr(r), sr(sW), tp))
            A('s_and_b32 %s, %s, 3' % (sr(r), sr(r)))
            A('s_add_u32 %s, %s, s55' % (sr(r), sr(r)))
            A('s_mul_i32 %s, %s, %d' % (sr(r), sr(r), NKS * 1024))
            A('s_add_u32 %s, %s, %d' % (sr(r), sr(r), H_OFF))
        A('s_mul_i32 s54, %s, %d' % (sr(sW), 11 * 1024))
        A('v_add_u32 %s, s54, %s' % (vr(vHA), vr(vL16)))
        A(['s_cmp_eq_u32 %s, 3' % sr(sW), 's_cselect_b32 s54, 5, 6'])
        A('v_lshl_add_u32 %s, s54, 10, %s' % (vr(vHB_), vr(vHA)))
        A('v_and_b32 %s, 15, %s' % (vr(a), vr(l)))
        A('s_lshl_b32 s54, %s, 6' % sr(sRT))
        A('s_lshl_b32 s55, %s, 4' % sr(sW))
        A('s_add_u32 s54, s54, s55')
        A('v_add_u32 %s, s54, %s' % (vr(a), vr(a)))
        A('v_lshlrev_b32 %s, 10, %s' % (vr(a), vr(a)))
        A('v_lshrrev_b32 %s, 4, %s' % (vr(c), vr(l)))
        A('s_lshl_b32 s55, %s, 7' % sr(sCT))
        A('v_lshl_add_u32 %s, %s, 3, %s' % (vr(vXR), vr(c), vr(a)))
        A('v_add_u32 %s, s55, %s' % (vr(vXR), vr(vXR)))
        A('v_and_b32 %s, 1, %s' % (vr(vO), vr(c)))
        A('v_lshlrev_b32 %s, 5, %s' % (vr(vO), vr(vO)))
        A('v_lshrrev_b32 %s, 1, %s' % (vr(c), vr(c)))
        A('v_lshl_add_u32 %s, %s, 4, %s' % (vr(vO), vr(c), vr(vO)))
        A('v_add3_u32 %s, %s, %s, s55' % (vr(vO), vr(vO), vr(a)))
        A('v_lshrrev_b32 %s, 3, %s' % (vr(a), vr(l)))
        A('v_and_b32 %s, 6, %s' % (vr(c), vr(a)))
        A('v_and_b32 %s, 1, %s' % (vr(a), vr(a)))
        A('v_bfe_u32 %s, %s, 2, 1' % (vr(d), vr(l)))
        A('v_add_u32 %s, %s, %s' % (vr(c), vr(c), vr(d)))
        A(['s_cmp_eq_u32 %s, 3' % sr(sW), 's_cselect_b32 s54, 5, 6'])
        A('v_mad_u32_u24 %s, %s, s54, %s' % (vr(c), vr(a), vr(c)))
        A('s_mul_i32 s54, %s, 11' % sr(sW))
        A('v_add_u32 %s, s54, %s' % (vr(c), vr(c)))
        A('v_lshrrev_b32 %s, 2, %s' % (vr(a), vr(l)))
        A('s_lshl_b32 s54, %s, 2' % sr(sW))
        A('s_add_u32 s54, s54, 32')
        A('v_add_u32 %s, s54, %s' % (vr(d), vr(a)))
        A(['v_cmp_le_u32 vcc, 11, %s' % vr(a), 'v_cndmask_b32 %s, %s, %s, vcc' % (vr(c), vr(c), vr(d))])
        A('v_and_b32 %s, 3, %s' % (vr(d), vr(l)))
        A('v_add_u32 %s, %s, %s' % (vr(d), sr(sW), vr(d)))
        A('v_and_b32 %s, 3, %s' % (vr(d), vr(d)))
        A('v_mad_u32_u24 %s, %s, %d, %s' % (vr(c), vr(d), NKS, vr(c)))
        A('v_lshlrev_b32 %s, 10, %s' % (vr(c), vr(c)))
        A('s_mul_i32 s54, %s, %d' % (sr(sRT), 4 * NKS * 1024))
        A('s_add_u32 s54, s54, %d' % H_OFF)
        A('v_add_u32 %s, s54, %s' % (vr(c), vr(c)))
        A('v_mov_b32 %s, %d' % (vr(d), OOB))
        A(['s_cmp_eq_u32 %s, 3' % sr(sW), 's_cselect_b32 s54, 9, 15'])
        A(['v_cmp_eq_u32 vcc, s54, %s' % vr(a), 'v_cndmask_b32 %s, %s, %s, vcc' % (vr(c), vr(c), vr(d))])
        A(['v_cmp_eq_u32 vcc, 15, %s' % vr(a), 'v_cndmask_b32 %s, %s, %s, vcc' % (vr(vPO), vr(c), vr(d))])
        A('v_and_b32 %s, 7, %s' % (vr(vFA), vr(l)))
        A('v_lshlrev_b32 %s, 3, %s' % (vr(vFA), vr(vFA)))
        return [[(t, None) for t in x] if isinstance(x, list) else one(x) for x in o]

    def flags_text(self):
        return 'buffer_load_dwordx2 %s, %s, %s, %s offen sc1' % (vr(vFLG, 2), vr(vFA), srd(WS_), sr(sFLC))

    def flags_load_item(self):
        return one(self.flags_text(), 'flg')

    def flags_check(self):
        b = self.b

        def check():
            b('v_cmp_ne_u32 vcc, %s, %s' % (sr(sNON), vr(vFLG)))
            b('v_cmp_ne_u32 s[54:55], %s, %s' % (sr(sNON + 1), vr(vFLG + 1)))
            b('s_or_b64 vcc, vcc, s[54:55]')
            b('s_cmp_eq_u64 vcc, 0')
        self.poll_loop(self.flags_text(), check, 'L_flg')

    def main_loop(self, att):
        b = self.b
        if att:
            F = [116, 164]
            G = 27

            def xreg(f, t):
                return F[f] + 4 * t

            def wreg(f, p):
                return F[f] + 36 + 4 * p

            def reads(f, bb):
                xa = vXB if bb else vXA
                def wr(p):
                    return [('ds_read_b64_tr_b16 %s, %s offset:%d' % (vr(wreg(f, p) + 2 * hh, 2), vr(vWA),
                                                                     hh * 12288 + (3 * bb + p) * 1024), 'fr') for hh in range(2)]
                def xr(t):
                    return [('ds_read_b128 %s, %s offset:%d' % (vr(xreg(f, t), 4), vr(xa), t * 2048), 'fr')]
                out = wr(1) + xr(0) + wr(2) + xr(1) + wr(0)
                for t in range(2, 9):
                    out += xr(t)
                return out

            def mfmas(f, u):
                out = []
                C = lambda r: '0' if u == 0 else vr(r, 4)
                for t in range(9):
                    out.append('%s %s, %s, %s, %s' % (MF, vr(32 + 4 * t, 4), vr(wreg(f, 1), 4), vr(xreg(f, t), 4), C(32 + 4 * t)))
                    out.append('%s %s, %s, %s, %s' % (MF, vr(68 + 4 * t, 4), vr(xreg(f, t), 4), vr(wreg(f, 2), 4), C(68 + 4 * t)))
                    if t >= 1:
                        q = 4 * (t - 1)
                        out.append('%s %s, %s, %s, %s' % (MF, vr(q, 4), vr(wreg(f, 0), 4), vr(xreg(f, t), 4), C(q)))
                out.append('%s %s, %s, %s, %s' % (MF, vr(104, 4), vr(wreg(f, 0), 4), vr(vONES, 4), C(104)))
                return out
        else:
            F = [120, 160]
            G = 24

            def xreg(f, t):
                return F[f] + 4 * t

            def wreg(f, p, ti):
                return F[f] + 16 + 4 * (2 * p + ti)

            def reads(f, bb):
                xa = vXB if bb else vXA
                def wr(p, ti):
                    return [('ds_read_b64_tr_b16 %s, %s offset:%d' % (vr(wreg(f, p, ti) + 2 * hh, 2), vr(vWB if ti else vWA),
                                                                     hh * 12288 + (3 * bb + p) * 1024), 'fr') for hh in range(2)]
                def xr(t):
                    return [('ds_read_b128 %s, %s offset:%d' % (vr(xreg(f, t), 4), vr(xa), t * 2048), 'fr')]
                out = wr(0, 0) + xr(0) + xr(1) + xr(2) + xr(3)
                for pt in range(1, 6):
                    out += wr(pt >> 1, pt & 1)
                return out

            def mfmas(f, u):
                out = []
                C = lambda r: '0' if u == 0 else vr(r, 4)
                for pt in range(6):
                    for t in range(4):
                        acc = 16 * pt + 4 * t
                        out.append('%s %s, %s, %s, %s' % (MF, vr(acc, 4), vr(wreg(f, pt >> 1, pt & 1), 4), vr(xreg(f, t), 4), C(acc)))

                def sblock():
                    lab = b.label_name('L_nos')
                    b('s_cmp_lg_u32 %s, %d' % (sr(sTH), u & 1))
                    b('s_cbranch_scc1 %s' % lab)
                    b.begin_region()
                    for pt in range(6):
                        c = '0' if u < 2 else vr(96 + 4 * pt, 4)
                        b('%s %s, %s, %s, %s' % (MF, vr(96 + 4 * pt, 4), vr(wreg(f, pt >> 1, pt & 1), 4), vr(vONES, 4), c))
                    b.end_region()
                    b(lab + ':')
                out.append(sblock)
                return out

        stats = self.stats_items()
        poison = self.poison_items(att) if OPT['poison'] == 'even' else []
        p2s = self.p2_setup_items()
        b.wait_vm('st0')
        b.wait_lg('ones')
        self.ts('w0')
        b('s_barrier')
        self.ts('bar0')
        for t, tag in reads(0, 0):
            b(t, tag=tag)
        for u in range(16):
            s, bb, f = u >> 1, u & 1, u & 1
            mf = mfmas(f, u)
            streams = []
            first = []
            if bb == 1:
                b.wait_lg('fr', 'stw')
                self.ts('a%d' % u)
                if s + 1 < 8:
                    b.wait_vm('st%d' % (s + 1))
                self.ts('b%d' % u)
                if not OPT['abl'] & 4:
                    b('s_barrier')
                self.ts('c%d' % u)
            rd = []
            if u < 15 and not OPT['abl'] & 2:
                rd = [[x] for x in reads(1 - f, 1 - bb)]
            if bb == 1 and u < 15:
                delta = SLOT if (s % 3) < 2 else -2 * SLOT
                upd = [one('v_add_u32 %s, %s, %s' % (vr(r), hex(delta & 0xffffffff), vr(r)))
                       for r in ([vWA, vXA, vXB] if att else [vWA, vXA, vWB, vXB])]
                rd = upd[:2] + rd[:3] + upd[2:] + rd[3:]
            streams.append(dict(items=rd, lo=0, hi=(G - 3 if bb else (G * 3) // 4)))
            dm = []
            st3 = (u + 5) >> 1
            if u == 0:
                dm = self.dma_half(att, 2, 1)
                dm.insert(len(dm) - 4, one(self.nonce_text(), 'non'))
            elif st3 < 8:
                if not OPT['abl'] & 1:
                    dm = self.dma_half(att, st3, 0 if bb else 1)
                if u == 10:
                    dm.insert(max(len(dm) - 4, 0), one(self.gather_text(), 'gat'))
            elif u == 11:
                dm = self.w2_setup_s() + self.w2_dma(0, 3)
            elif u == 12:
                dm = self.w2_dma(3, 5)
            elif u == 13:
                dm = self.w2_dma(5, 8)
            elif u == 14:
                dm = self.w2_dma(8, 10)
            elif u == 15:
                dm = self.w2_dma(10, 13)
            pz = []
            if poison and u in (2, 4, 6):
                n = 4 if u < 6 or att else len(poison)
                pz, poison = poison[:n], poison[n:]
            if pz:
                streams.append(dict(items=dm, lo=0, hi=(G * 2) // 3, mind=1))
                streams.append(dict(items=pz, lo=(G * 2) // 3 + 2, hi=G - 1))
            else:
                streams.append(dict(items=dm, lo=0, hi=G - 1, mind=1))
            ex = []
            if u < 3:
                k = (len(stats) + 2 - u) // (3 - u)
                if u == 0:
                    k = 8
                ex, stats = stats[:k], stats[k:]
                streams.append(dict(items=ex, lo=(G // 2 if u == 0 else 0), hi=G - 1))
            elif u == 3:
                streams.append(dict(items=[blk(self.nonce_and_stats_store, 8)], lo=1, hi=3))
            elif 4 <= u <= 9:
                k = (len(p2s) + 9 - u) // (10 - u)
                ex, p2s = p2s[:k], p2s[k:]
                streams.append(dict(items=ex, lo=0, hi=G - 1))
                if u == 9:
                    streams.append(dict(items=[blk(self.flag_store, 5)], lo=2, hi=4))
            elif u == 10:
                streams.append(dict(items=self.w2_setup_v(), lo=0, hi=G - 1))
            elif u == 12:
                streams.append(dict(items=self.tr_base_items(vTB2, 2 * SLOT), lo=0, hi=G - 1))
            elif u == 13:
                streams.append(dict(items=[blk(self.gather_check, 8)], lo=1, hi=3))
            elif u == 14:
                streams.append(dict(items=self.tr_base01_items(), lo=0, hi=G - 1))
            elif u == 15:
                tr = self.w2_tr(0)
                tr.insert(0, blk(lambda: b.wait_vm('w2_0'), 0))
                streams.append(dict(items=tr, lo=G // 3, hi=G - 1))
            self.schedule(mf, streams, G, '%s%d' % ('a' if att else 'm', u))
        assert not stats and not poison and not p2s

    def att_epilogue(self):
        b = self.b
        l = vL
        QS = 116
        VS = 134
        VP, KP, QP = 158, 176, 194
        a, c, d = T + 4, T + 5, T + 6
        vNEG = T + 7
        SEL = T + 8
        vAq, vAq2, vAv = T + 12, T + 13, T + 14
        vOW = T + 15
        b.bg = self.w2_background()
        b.bg_every = OPT['bg_att']
        b('v_and_b32 %s, 15, %s' % (vr(a), vr(l)))
        b('v_lshrrev_b32 %s, 4, %s' % (vr(c), vr(l)))
        b('v_lshlrev_b32 %s, 2, %s' % (vr(vAq), vr(a)))
        b('v_add_u32 %s, %d, %s' % (vr(vAq), ST, vr(vAq)))
        b('v_add_u32 %s, 256, %s' % (vr(vAq2), vr(vAq)))
        b('v_lshlrev_b32 %s, 4, %s' % (vr(vAv), vr(c)))
        b('v_add_u32 %s, %d, %s' % (vr(vAv), ST, vr(vAv)))
        for t in range(9):
            if t < 7:
                b('ds_read2_b32 %s, %s offset0:%d offset1:%d' % (vr(QS + 2 * t, 2), vr(vAq), 16 * t, 144 + 16 * t), tag='qs')
            else:
                b('ds_read2_b32 %s, %s offset0:%d offset1:%d' % (vr(QS + 2 * t, 2), vr(vAq2), 16 * t - 64, 80 + 16 * t), tag='qs')

        def vstat_read(t):
            base = VS + 8 * (t % 3)
            b('ds_read_b128 %s, %s offset:%d' % (vr(base, 4), vr(vAv), 64 * t), tag='vs')
            b('ds_read_b128 %s, %s offset:%d' % (vr(base + 4, 4), vr(vAv), STR + 64 * t), tag='vs')
        for t in range(3):
            vstat_read(t)
        for i in range(4):
            b('v_mov_b32_dpp %s, %s row_newbcast:0 row_mask:0xf bank_mask:0xf' % (vr(108 + i), vr(32 + i)))
        b('v_mov_b32 %s, %s' % (vr(112), vr(68)))
        b('v_mov_b32 %s, %s' % (vr(113), vr(68)))
        b('v_and_b32 %s, 1, %s' % (vr(d), vr(a)))
        b('v_permlane16_swap_b32 %s, %s' % (vr(112), vr(113)))
        b('v_cmp_eq_u32 %s, 1, %s' % (sr(sP, 2), vr(d)))
        b('v_lshl_add_u32 %s, %s, 2, %s' % (vr(c), vr(c), vr(d)))
        b('v_mov_b32 %s, %s' % (vr(113), vr(112)))
        b('v_cmp_le_u32 %s, %s, %s' % (sr(sC0, 2), vr(c), vr(a)))
        b('v_add_u32 %s, 2, %s' % (vr(c), vr(c)))
        b('v_permlane32_swap_b32 %s, %s' % (vr(112), vr(113)))
        b('v_cmp_le_u32 %s, %s, %s' % (sr(sC1, 2), vr(c), vr(a)))
        b('v_mov_b32 %s, 0x0c0c0100' % vr(a))
        b('v_mov_b32 %s, 0x01000c0c' % vr(c))
        b('v_cndmask_b32 %s, %s, %s, %s' % (vr(a), vr(a), vr(c), sr(sP, 2)))
        b('v_mov_b32 %s, 0x0c0c0302' % vr(c))
        b('v_mov_b32 %s, 0x03020c0c' % vr(d))
        b('v_cndmask_b32 %s, %s, %s, %s' % (vr(c), vr(c), vr(d), sr(sP, 2)))
        b('v_mov_b32 %s, 0x0c0c0c0c' % vr(d))
        b('v_cndmask_b32 %s, %s, %s, %s' % (vr(SEL + 0), vr(a), vr(d), sr(sC0, 2)))
        b('v_cndmask_b32 %s, %s, %s, %s' % (vr(SEL + 1), vr(c), vr(d), sr(sC1, 2)))
        b('v_cndmask_b32 %s, %s, %s, %s' % (vr(SEL + 2), vr(d), vr(a), sr(sC0, 2)))
        b('v_cndmask_b32 %s, %s, %s, %s' % (vr(SEL + 3), vr(d), vr(c), sr(sC1, 2)))
        b('v_mov_b32 %s, 0xcf6e6b28' % vr(vNEG))
        b('s_cmp_eq_u32 %s, 0' % sr(sRB))
        b('s_cselect_b64 %s, -1, 0' % sr(sZ, 2))
        b('s_mov_b32 %s, 0x3eb8aa3b' % sr(sC))
        b('s_lshr_b32 s54, %s, 1' % sr(sW))
        b('s_lshl_b32 s54, s54, 13')
        b('s_and_b32 s55, %s, 1' % sr(sW))
        b('s_lshl_b32 s56, s55, 3')
        b('s_add_u32 s56, s56, s54')
        b('s_add_u32 s56, s56, %d' % OX)
        b('v_add_u32 %s, s56, %s' % (vr(vOW), vr(vL16)))

        def norm_qk(acc, sreg, t, dst):
            st = vr(QS + 2 * t, 2)
            for h in range(2):
                b('v_pk_fma_f32 %s, %s, %s, %s op_sel:[0,0,0] op_sel_hi:[1,0,1]' % (vr(acc + 2 * h, 2), vr(sreg + 2 * h, 2), st, vr(acc + 2 * h, 2)))
            for h in range(2):
                b('v_pk_mul_f32 %s, %s, %s op_sel:[0,1] op_sel_hi:[1,1]' % (vr(acc + 2 * h, 2), vr(acc + 2 * h, 2), st))
            for h in range(2):
                b('v_cvt_pk_bf16_f32 %s, %s, %s' % (vr(dst + h), vr(acc + 2 * h), vr(acc + 2 * h + 1)))

        def norm_v(t):
            acc = 68 + 4 * t
            base = VS + 8 * (t % 3)
            for h in range(2):
                b('v_pk_fma_f32 %s, %s, %s, %s op_sel_hi:[1,0,1]' % (vr(acc + 2 * h, 2), vr(base + 2 * h, 2), vr(112, 2), vr(acc + 2 * h, 2)))
            for h in range(2):
                b('v_pk_mul_f32 %s, %s, %s' % (vr(acc + 2 * h, 2), vr(acc + 2 * h, 2), vr(base + 4 + 2 * h, 2)))
            for h in range(2):
                b('v_cvt_pk_bf16_f32 %s, %s, %s' % (vr(VP + 2 * t + h), vr(acc + 2 * h), vr(acc + 2 * h + 1)))
            if t + 3 < 9:
                vstat_read(t + 3)

        for t in range(9):
            norm_qk(32 + 4 * t, 108, t, KP + 2 * t)
        for t in range(1, 9):
            norm_qk(4 * (t - 1), 104, t, QP + 2 * (t - 1))
        for t in range(1, 9):
            D = 8 * (t - 1)
            b('%s %s, %s, %s, 0' % (MF16, vr(D, 4), vr(KP + 2 * (t - 1), 2), vr(QP + 2 * (t - 1), 2)))
            b('%s %s, %s, %s, 0' % (MF16, vr(D + 4, 4), vr(KP + 2 * t, 2), vr(QP + 2 * (t - 1), 2)))
        for t in range(9):
            norm_v(t)
        LG, MX = 64, 80
        for t in range(1, 9):
            D = 8 * (t - 1)
            for j in range(2):
                b('v_cndmask_b32 %s, %s, %s, %s' % (vr(D + 2 * j), vr(D + 2 * j), vr(D + 2 * j + 1), sr(sP, 2)))
                b('v_cndmask_b32 %s, %s, %s, %s' % (vr(D + 4 + 2 * j), vr(D + 4 + 2 * j), vr(D + 4 + 2 * j + 1), sr(sP, 2)))
            if t == 1:
                for j in range(2):
                    b('v_cndmask_b32 %s, %s, %s, %s' % (vr(D + 2 * j), vr(D + 2 * j), vr(vNEG), sr(sZ, 2)))
            b('v_cndmask_b32 %s, %s, %s, %s' % (vr(LG + 2 * (t - 1)), vr(D), vr(D + 4), sr(sC0, 2)))
            b('v_cndmask_b32 %s, %s, %s, %s' % (vr(LG + 2 * (t - 1) + 1), vr(D + 2), vr(D + 6), sr(sC1, 2)))
            b('v_max_f32 %s, %s, %s' % (vr(MX + t - 1), vr(LG + 2 * (t - 1)), vr(LG + 2 * (t - 1) + 1)))
        for h in range(2):
            m = MX + 4 * h
            b('v_permlane16_swap_b32 %s, %s' % (vr(m), vr(m + 1)))
            b('v_permlane16_swap_b32 %s, %s' % (vr(m + 2), vr(m + 3)))
        for h in range(2):
            m = MX + 4 * h
            b('v_max_f32 %s, %s, %s' % (vr(m), vr(m), vr(m + 1)))
            b('v_max_f32 %s, %s, %s' % (vr(m + 2), vr(m + 2), vr(m + 3)))
        for h in range(2):
            m = MX + 4 * h
            b('v_permlane32_swap_b32 %s, %s' % (vr(m), vr(m + 2)))
        for h in range(2):
            m = MX + 4 * h
            b('v_max_f32 %s, %s, %s' % (vr(m), vr(m), vr(m + 2)))
        for h in range(2):
            m = MX + 4 * h
            b('v_mul_f32 %s, %s, %s' % (vr(m), sr(sC), vr(m)))
        for h in range(2):
            m = MX + 4 * h
            b('v_mov_b32 %s, %s' % (vr(m + 2), vr(m)))
        for h in range(2):
            m = MX + 4 * h
            b('v_permlane32_swap_b32 %s, %s' % (vr(m), vr(m + 2)))
        for h in range(2):
            m = MX + 4 * h
            b('v_mov_b32 %s, %s' % (vr(m + 1), vr(m)))
            b('v_mov_b32 %s, %s' % (vr(m + 3), vr(m + 2)))
        for h in range(2):
            m = MX + 4 * h
            b('v_permlane16_swap_b32 %s, %s' % (vr(m), vr(m + 1)))
            b('v_permlane16_swap_b32 %s, %s' % (vr(m + 2), vr(m + 3)))
        for t in range(1, 9):
            L = LG + 2 * (t - 1)
            for j in range(2):
                b('v_fma_f32 %s, %s, %s, -%s' % (vr(L + j), vr(L + j), sr(sC), vr(MX + t - 1)))
        for t in range(1, 9):
            L = LG + 2 * (t - 1)
            for j in range(2):
                b('v_exp_f32 %s, %s' % (vr(L + j), vr(L + j)))
        for t in range(1, 9):
            L = LG + 2 * (t - 1)
            b('v_cvt_pk_bf16_f32 %s, %s, %s' % (vr(L), vr(L), vr(L + 1)))
        PF, OA, SM = 0, 32, 84
        for t in range(1, 9):
            L = LG + 2 * (t - 1)
            for i in range(4):
                b('v_perm_b32 %s, %s, %s, %s' % (vr(PF + 4 * (t - 1) + i), vr(L), vr(L), vr(SEL + i)))
            b('%s %s, %s, %s, 0' % (MF, vr(OA + 4 * (t - 1), 4), vr(VP + 2 * (t - 1), 4), vr(PF + 4 * (t - 1), 4)))
            b('%s %s, %s, %s, 0' % (MF, vr(SM + 4 * (t - 1), 4), vr(vONES, 4), vr(PF + 4 * (t - 1), 4)))
        for t in range(1, 9):
            sm = SM + 4 * (t - 1)
            b('v_rcp_f32 %s, %s' % (vr(sm), vr(sm)))
        for t in range(1, 9):
            sm, o = SM + 4 * (t - 1), OA + 4 * (t - 1)
            for h in range(2):
                b('v_pk_mul_f32 %s, %s, %s op_sel:[0,0] op_sel_hi:[1,0]' % (vr(o + 2 * h, 2), vr(o + 2 * h, 2), vr(sm, 2)))
            for h in range(2):
                b('v_cvt_pk_bf16_f32 %s, %s, %s' % (vr(o + h), vr(o + 2 * h), vr(o + 2 * h + 1)))
            b('ds_write_b64 %s, %s offset:%d' % (vr(vOW), vr(o, 2), (t - 1) * 1024), tag='ox')
        b.bg_flush()
        b.bg_every = 0
        self.ts('epi')
        b('s_lshr_b32 s54, %s, 1' % sr(sW))
        b('s_lshl_b32 s54, s54, 13')
        b('s_and_b32 s55, %s, 1' % sr(sW))
        b('s_lshl_b32 s56, s55, 12')
        b('s_add_u32 s56, s56, s54')
        b('s_add_u32 s56, s56, %d' % OX)
        b('v_add_u32 %s, s56, %s' % (vr(c), vr(vL16)))
        b.wait_lg('ox')
        b('s_barrier')
        for i in range(4):
            b('ds_read_b128 %s, %s offset:%d' % (vr(4 * i, 4), vr(c), i * 1024), tag='oxr')
        self.p2_issue()
        for i in range(4):
            b('s_add_u32 s57, %s, %d' % (sr(sHST), i * NKS * 1024))
            b('buffer_store_dwordx4 %s, %s, %s, s57 offen sc1' % (vr(4 * i, 4), vr(vL16), srd(WS_)), tag='hst')

    def mlp_epilogue(self):
        b = self.b
        l = vL
        a, c, d = T + 4, T + 5, T + 6
        QS = 120
        TM = 128
        PK = 152
        b.bg = self.w2_background()
        b('v_lshrrev_b32 %s, 4, %s' % (vr(c), vr(l)))
        b('v_lshlrev_b32 %s, 4, %s' % (vr(c), vr(c)))
        b('s_mul_i32 s54, %s, 384' % sr(sW))
        b('s_add_u32 s55, s54, %d' % SX)
        b('v_add_u32 %s, s55, %s' % (vr(d), vr(c)))
        b('s_xor_b32 s54, %s, 1' % sr(sW))
        b('s_mul_i32 s54, s54, 384')
        b('s_add_u32 s55, s54, %d' % SX)
        b('v_add_u32 %s, s55, %s' % (vr(c), vr(c)))
        b('s_mov_b32 exec_lo, 0x00010001')
        b('s_mov_b32 exec_hi, 0x00010001')
        for pt in range(6):
            b('ds_write_b128 %s, %s offset:%d' % (vr(d), vr(96 + 4 * pt, 4), pt * 64), tag='sx')
        b('s_mov_b64 exec, -1')
        b.bg_every = OPT['bg_mlp']
        b('v_and_b32 %s, 15, %s' % (vr(a), vr(l)))
        b('s_lshl_b32 s54, %s, 6' % sr(sTH))
        b('s_add_u32 s54, s54, 16')
        b('v_add_u32 %s, s54, %s' % (vr(a), vr(a)))
        b('v_lshlrev_b32 %s, 2, %s' % (vr(a), vr(a)))
        b('v_add_u32 %s, %d, %s' % (vr(a), ST, vr(a)))
        for t in range(4):
            b('ds_read2_b32 %s, %s offset0:%d offset1:%d' % (vr(QS + 2 * t, 2), vr(a), 16 * t, 144 + 16 * t), tag='qs')
        b.bg_pop(4)
        b.wait_lg('sx')
        b('s_barrier')
        for pt in range(6):
            b('ds_read_b128 %s, %s offset:%d' % (vr(TM + 4 * pt, 4), vr(c), pt * 64), tag='sxr')
        b.bg_pop(4)
        for pt in range(6):
            for h in range(2):
                r = 96 + 4 * pt + 2 * h
                b('v_pk_add_f32 %s, %s, %s' % (vr(r, 2), vr(r, 2), vr(TM + 4 * pt + 2 * h, 2)))
        k = 0
        skip = None
        for p in range(3):
            if p == 2:
                b.bg_flush()
                b.bg_every = 0
                skip = b.label_name('L_nopair')
                b('s_lshr_b32 s55, %s, 1' % sr(sW))
                b('s_add_u32 s55, s55, 4')
                b('s_cmp_ge_u32 s55, %s' % sr(sNP))
                b('s_cbranch_scc1 %s' % skip)
                b.begin_region()
            for t in range(4):
                st = vr(QS + 2 * t, 2)
                dst = PK + 4 * (k % 4)
                k += 1
                for ti in range(2):
                    acc = 16 * (2 * p + ti) + 4 * t
                    sreg = 96 + 4 * (2 * p + ti)
                    for h in range(2):
                        b('v_pk_fma_f32 %s, %s, %s, %s op_sel:[0,0,0] op_sel_hi:[1,0,1]' % (vr(acc + 2 * h, 2), vr(sreg + 2 * h, 2), st, vr(acc + 2 * h, 2)))
                    for h in range(2):
                        b('v_pk_mul_f32 %s, %s, %s op_sel:[0,1] op_sel_hi:[1,1]' % (vr(acc + 2 * h, 2), vr(acc + 2 * h, 2), st))
                    for h in range(2):
                        b('v_cvt_pk_bf16_f32 %s, %s, %s' % (vr(dst + 2 * ti + h), vr(acc + 2 * h), vr(acc + 2 * h + 1)))
                for i in range(4):
                    b('v_pk_max_i16 %s, %s, 0' % (vr(dst + i), vr(dst + i)))
                b('s_add_u32 s57, %s, %d' % (sr(sHST), t * NKS * 1024 + p * 2048))
                b('buffer_store_dwordx4 %s, %s, %s, s57 offen sc1' % (vr(dst, 4), vr(vL16), srd(WS_)), tag='hst')
        b.end_region()
        b(skip + ':')
        self.ts('epi')
        self.p2_issue()

    RING, XR = 64, 192
    vHT, vH8, vH9, vH10, vP = 243, 244, 245, 246, 247

    def hload(self, j, tp):
        base = self.RING + 16 * (j % 8) + 4 * tp
        kind, off = self.step_off(j)
        if j < 8:
            va, o = (vHB_ if kind == 'b' else vHA), off * 1024
        elif j < 11:
            va, o = {8: self.vH8, 9: self.vH9, 10: self.vH10}[j], 0
        else:
            va, o = self.vHT, off * 1024
        return 'buffer_load_dwordx4 %s, %s, %s, %s offen offset:%d sc1' % (vr(base, 4), vr(va), srd(WS_), sr(sHB + tp), o)

    def p2_issue(self):
        b = self.b
        self.flags_check()
        for cp in range(4):
            b('buffer_load_dwordx2 %s, %s, %s, 0 offen offset:%d' % (vr(self.XR + 2 * cp, 2), vr(vXR), srd(X_), 32 * cp), tag='res')
        for j in range(8):
            for tp in TPO:
                b(self.hload(j, tp), tag='h%d_%d' % (j, tp))
        self.ts('ring')

    def verify_items(self, j, role):
        b = self.b
        base = self.RING + 16 * (j % 8)
        t = 248
        slow, back = 'L_slow_%s_%d' % (role, j), 'L_back_%s_%d' % (role, j)

        def p1():
            b('v_max3_u32 %s, %s, %s, %s' % (vr(t), vr(base), vr(base + 4), vr(base + 8)))

        def p2():
            b('v_max_u32 %s, %s, %s' % (vr(t), vr(t), vr(base + 12)))

        def p3():
            b('v_cmp_eq_u32 vcc, -1, %s' % vr(t))
            b('s_cbranch_vccnz %s' % slow)
            snap = [e['tag'] for e in b.vmq]
            b(back + ':')
            self.slow.append((j, slow, back, snap))
        return [blk(p1, 1), blk(p2, 1), blk(p3, 2)]

    def emit_slow(self):
        b = self.b
        for j, slow, back, snap in self.slow:
            b.vmq, b.lgq, b.smem_pending = [], [], []
            base = self.RING + 16 * (j % 8)
            end = 4 if j < 4 else 8 if j < 8 else 11 if j < 11 else 15
            mask = sum(1 << i for i in range(4 * j, 4 * end))
            again, ready = slow + '_a', slow + '_r'
            b('s_nop 0')
            b(slow + ':')
            b('s_mov_b32 %s, 0' % sr(sCNT))
            b(again + ':')
            b('buffer_load_dword %s, %s, %s, 0 offen sc1' % (vr(self.vP), vr(vPO), srd(WS_)))
            b('s_waitcnt vmcnt(0)')
            b('v_cmp_eq_u32 vcc, -1, %s' % vr(self.vP))
            b('s_and_b32 s54, vcc_lo, 0x%x' % (mask & 0xffffffff))
            b('s_and_b32 s55, vcc_hi, 0x%x' % (mask >> 32))
            b('s_or_b32 s54, s54, s55')
            b('s_cbranch_scc0 %s' % ready)
            b('s_add_u32 %s, %s, 1' % (sr(sCNT), sr(sCNT)))
            b('s_cmp_lt_u32 %s, %d' % (sr(sCNT), OPT['poll_limit']))
            b('s_cbranch_scc1 %s' % again)
            b(ready + ':')
            b.begin_region()
            for tp in TPO:
                b(self.hload(j, tp))
            for tag in snap:
                if tag and tag.startswith('h') and '_' in tag and tag[1].isdigit():
                    jj, tp = tag[1:].split('_')
                    b(self.hload(int(jj), int(tp)))
                else:
                    b('buffer_load_dword %s, off, %s, 0' % (vr(249), srd(WS_)))
            b.end_region()
            b.vmq = []
            b('s_waitcnt vmcnt(%d)' % min(len(snap), 63))
            b('v_max3_u32 %s, %s, %s, %s' % (vr(248), vr(base), vr(base + 4), vr(base + 8)))
            b('v_max_u32 %s, %s, %s' % (vr(248), vr(248), vr(base + 12)))
            b('v_cmp_eq_u32 vcc, -1, %s' % vr(248))
            b('s_cbranch_vccz %s' % back)
            b('s_add_u32 %s, %s, 1' % (sr(sCNT), sr(sCNT)))
            b('s_cmp_lt_u32 %s, %d' % (sr(sCNT), OPT['poll_limit']))
            b('s_cbranch_scc1 %s' % again)
            b('s_branch %s' % back)
        self.slow = []

    def phase2(self, role):
        b = self.b
        RING, XR = self.RING, self.XR
        for it in self.verify_items(0, role):
            it()
        self.ts('ver0')
        tr = self.w2_tr(3) + self.w2_tr(4) + self.w2_tr(5)
        for j in range(15):
            base = RING + 16 * (j % 8)
            mf = []
            for tp in TPO:
                for cp in range(4):
                    acc = 16 * tp + 4 * cp
                    cin = vr(acc, 4) if (j > 0 or tp == 0) else '0'
                    mf.append('%s %s, %s, %s, %s' % (MF, vr(acc, 4), ar(16 * j + 4 * cp, 4), vr(base + 4 * tp, 4), cin))
            G = 16
            slots = [[] for _ in range(G)]
            if j == 0:
                adr = ['v_add_u32 %s, 0x1000, %s' % (vr(self.vH8), vr(vHA)),
                       'v_add_u32 %s, 0x1000, %s' % (vr(self.vH10), vr(vHB_)),
                       's_cmp_eq_u32 %s, 3' % sr(sW),
                       's_cselect_b32 s54, %d, 1024' % OOB,
                       'v_add_u32 %s, s54, %s' % (vr(self.vH9), vr(self.vH8)),
                       's_lshl_b32 s54, %s, 12' % sr(sW),
                       's_add_u32 s54, s54, %d' % (43 * 1024),
                       'v_add_u32 %s, s54, %s' % (vr(self.vHT), vr(vL16))]
                slots[0] += [one(adr[0])]
                res = []
                for cp in range(4):
                    for h in range(2):
                        x = XR + 2 * cp + h
                        res.append(one('v_lshlrev_b32 %s, 16, %s' % (vr(4 * cp + 2 * h), vr(x))))
                        res.append(one('v_and_b32 %s, 0xffff0000, %s' % (vr(4 * cp + 2 * h + 1), vr(x))))
                k = 0
                for g in (0, 1, 1, 2, 2, 4, 4, 5, 5, 6, 6, 8, 8, 9, 9, 10):
                    slots[g].append(res[k])
                    k += 1
                slots[12] += [one(adr[1]), one(adr[2]) + one(adr[3]) + one(adr[4])]
                slots[13] += [one(adr[5]) + one(adr[6]) + one(adr[7])]
            if j + 8 < 15:
                for i, tp in enumerate(TPO):
                    slots[4 * i + 3].append(one(self.hload(j + 8, tp), 'h%d_%d' % (j + 8, tp)))
            if 1 <= j <= 10:
                mine, tr = tr[:6], tr[6:]
                for g, it in zip((0, 1, 2, 4, 5, 6), mine):
                    slots[g].append(it)
            if j < 14:
                v = self.verify_items(j + 1, role)
                slots[12].insert(0, v[0])
                slots[13].insert(0, v[1])
                slots[14].insert(0, v[2])
            for i, m in enumerate(mf):
                b(m)
                for it in slots[i]:
                    self.emit(it)
        assert not tr
        self.ts('p2loop')
        vRR = T + 13
        FL = T + 8
        b('v_add_u32 %s, %s, %s' % (vr(vRR), sr(sW2L), vr(vL16)))
        b('v_add_u32 %s, %d, %s' % (vr(vRR + 1), 2 * SLOT, vr(vRR)))
        for tp in range(1, 4):
            for cp in range(4):
                if tp < 3:
                    b('ds_write_b128 %s, %s offset:%d' % (vr(vRR), vr(16 * tp + 4 * cp, 4), (tp - 1) * SLOT + cp * 1024), tag='rw')
                else:
                    b('ds_write_b128 %s, %s offset:%d' % (vr(vRR + 1), vr(16 * tp + 4 * cp, 4), cp * 1024), tag='rw')
        for tp in range(1, 4):
            b('s_sub_u32 s54, %s, %d' % (sr(sW), tp))
            b('s_and_b32 s54, s54, 3')
            b('s_mul_i32 s54, s54, %d' % REG)
            b('s_add_u32 s54, s54, %d' % (SLOT0 + (tp - 1) * SLOT))
            b('v_add_u32 %s, s54, %s' % (vr(FL + tp), vr(vL16)))
        b.wait_lg('rw')
        b('s_barrier')
        RD = 64
        for tp in range(1, 4):
            for cp in range(4):
                b('ds_read_b128 %s, %s offset:%d' % (vr(RD + 16 * (tp - 1) + 4 * cp, 4), vr(FL + tp), cp * 1024), tag='rr')
        for tp in range(1, 4):
            for cp in range(4):
                for h in range(2):
                    r = 4 * cp + 2 * h
                    b('v_pk_add_f32 %s, %s, %s' % (vr(r, 2), vr(r, 2), vr(RD + 16 * (tp - 1) + r, 2)))
        PK = 16
        for cp in range(4):
            for h in range(2):
                b('v_cvt_pk_bf16_f32 %s, %s, %s' % (vr(PK + 2 * cp + h), vr(4 * cp + 2 * h), vr(4 * cp + 2 * h + 1)))
        for pr in range(2):
            p0, p1 = PK + 4 * pr, PK + 4 * pr + 2
            b('v_permlane16_swap_b32 %s, %s' % (vr(p0), vr(p1)))
            b('v_permlane16_swap_b32 %s, %s' % (vr(p0 + 1), vr(p1 + 1)))
        for pr in range(2):
            p0 = PK + 4 * pr
            b('buffer_store_dwordx4 %s, %s, %s, 0 offen offset:%d' % (vr(p0, 4), vr(vO), srd(OUT_), 64 * pr), tag='out')
        if OPT['stamps']:
            self.ts('end')
            n = len(OPT['stamps'].split(','))
            b('s_lshl_b32 s54, s2, 2')
            b('s_add_u32 s54, s54, %s' % sr(sW))
            b('s_lshl_b32 s54, s54, 7')
            b('s_add_u32 s54, s54, %d' % WS_FINE)
            b('s_mov_b32 s14, %d' % (WS_FINE + (1 << 20)))
            b('s_mov_b64 exec, 1')
            for i in range(n):
                b('v_mov_b32 %s, %s' % (vr(32 + i), sr(sTS + i)))
                b('buffer_store_dword %s, off, %s, s54 offset:%d' % (vr(32 + i), srd(WS_), 4 * i))
            b('s_mov_b64 exec, -1')
        b('s_endpgm')

    def kernel(self):
        b = self.b
        self.prologue()
        b('s_cmp_lg_u32 %s, 0' % sr(sROLE))
        b('s_cbranch_scc1 L_mlp')
        st = self.save()
        for att, role in ((True, 'a'), (False, 'm')):
            if not att:
                b('L_mlp:')
                self.restore(st)
                b('s_nop 7')
            b.comment('attention workgroups' if att else 'MLP workgroups')
            self.role_prologue(att)
            self.main_loop(att)
            self.ts('loop')
            if att:
                self.att_epilogue()
            else:
                self.mlp_epilogue()
            self.phase2(role)
            self.emit_slow()
        b('L_end:')
        b('s_endpgm')
        b.finalize()
        return b.text()


HEADER = '''; LayerNorm + (dilated sliding-window attention || ReLU MLP) + residual, one persistent launch.
; @launch grid=(256,1,1) block=(256,1,1) lds=%d
.amdgcn_target "amdgcn-amd-amdhsa--gfx950"
.text
.globl %s_kernel
.p2align 8
.type %s_kernel,@function
%s_kernel:
'''
FOOTER = '''.section .rodata,"a"
.p2align 6
.amdhsa_kernel %s_kernel
  .amdhsa_next_free_vgpr 512
  .amdhsa_next_free_sgpr 102
  .amdhsa_accum_offset 256
  .amdhsa_group_segment_fixed_size 0
  .amdhsa_kernarg_size 72
  .amdhsa_user_sgpr_count 2
  .amdhsa_user_sgpr_kernarg_segment_ptr 1
  .amdhsa_system_sgpr_workgroup_id_x 1
.end_amdhsa_kernel
'''


def build(**opt):
    OPT.update(opt)
    g = Gen()
    body = g.kernel()
    extra = '; stamps: %s\n' % OPT['stamps'] if OPT['stamps'] else ''
    return extra + HEADER % (LDS_BYTES, NAME, NAME, NAME) + body + FOOTER % NAME


if __name__ == '__main__':
    out = sys.argv[1] if len(sys.argv) > 1 else 'k2.s'
    opt = {}
    for a in sys.argv[2:]:
        k, v = a.split('=')
        opt[k] = v if k in ('stamps', 'poison') else int(v)
    open(out, 'w').write(build(**opt))
    print('wrote', out)
```

```python
import copy
import sys
from asmb import Builder

NAME = 'parallel_sum__sliding_local_dilated__dense_activation_relu__prompt'

OPT = dict(hld='sc1', hstf='sc1', pfu=(4, 6, 8), fst=0, poll_limit=4000, stamps='', abl=0, poison='even', pf=0, bg_att=4, bg_mlp=3, verbose=0)
WS_FINE = 8 << 20

SLOT0, SLOT, WOFF = 1024, 43008, 18432
REG = 10752
ST = 132096
STR = 576
OX = 134144
SX = 150528
LDS_BYTES = 163840

WS_STATS, WS_D, H_OFF = 0, 32768, 131072
NKS = 59
WS_BYTES = H_OFF + 128 * NKS * 1024
OOB = 0x40000000

X_, W_, WS_, DBG_, W2_, WO_, OUT_ = 4, 8, 12, 16, 20, 24, 28
sW, sRB, sGRP, sROLE = 32, 33, 34, 35
sWOFF = 36
sW2A, sW2B, sW2C, sWOB, sFLC = 36, 37, 38, 39, 41
sXOFF, sXL, sWL, sHL, sWSTEP, sC = 42, 43, 44, 45, 46, 47
sW2L = 44
sHM = 48
sHST, sFL, sU = 50, 51, 53
sNON = 58
sP, sC0, sC1, sZ = 60, 62, 64, 66
sRT, sCT = 68, 69
sHB = 70
sPS, sCNT = 74, 75
sTS = 76
sTH, sNP = 100, 101


def srd(n):
    return 's[%d:%d]' % (n, n + 3)


def vr(a, n=1):
    return 'v%d' % a if n == 1 else 'v[%d:%d]' % (a, a + n - 1)


def ar(a, n=1):
    return 'a%d' % a if n == 1 else 'a[%d:%d]' % (a, a + n - 1)


def sr(a, n=1):
    return 's%d' % a if n == 1 else 's[%d:%d]' % (a, a + n - 1)


vONES = 212
vXA, vXB, vWA, vWB = 216, 217, 218, 219
vDX = 220
vDH, vDW = 224, 225
vSO, vG, vGL = 226, 227, 238
vGR = 228
vLD = 232
vNON = 236
vL = 239
T = 240
vL16 = 240
vHA, vHB_, vFA = 241, 242, 243
vROW = 244
vXR, vPO, vO = 226, 236, 237
vTB2, vTB01 = 228, 232
vFLG = 222
aPOIS = 252

MF = 'v_mfma_f32_16x16x32_bf16'
MF16 = 'v_mfma_f32_16x16x16_bf16'
TPO = [1, 2, 3, 0]


def one(t, tag=None):
    return [(t, tag)]


def size_of(it):
    if callable(it):
        return getattr(it, 'size', 2)
    return len(it)


def blk(fn, size=2):
    def w():
        fn()
    w.size = size
    return w


class Gen:
    def __init__(self):
        self.b = Builder()
        self.slow = []

    def ts(self, name):
        names = OPT['stamps'].split(',') if OPT['stamps'] else []
        if name + '@' in names and OPT['fst']:
            from asmb import Ins
            k = sTS + 2 * names.index(name + '@')
            i = Ins('s_memtime s[%d:%d]' % (k, k + 1), region=self.b.region)
            i.w = []
            self.b.ins.append(i)
        if name not in names:
            return
        b = self.b
        if OPT['fst']:
            from asmb import Ins
            k = sTS + 2 * names.index(name)
            i = Ins('%s s[%d:%d]' % ('s_memtime' if OPT['fst'] == 2 else 's_memrealtime', k, k + 1), region=b.region)
            i.w = []
            b.ins.append(i)
            return
        b.wait_lg()
        b('s_memrealtime s[98:99]')
        b('s_waitcnt lgkmcnt(0)')
        b('s_mov_b32 %s, s98' % sr(sTS + names.index(name)))

    def save(self):
        b = self.b
        return copy.deepcopy((b.vmq, b.lgq, b.smem_pending))

    def restore(self, st):
        b = self.b
        b.vmq, b.lgq, b.smem_pending = copy.deepcopy(st)

    def emit(self, it):
        if callable(it):
            it()
        else:
            for t, tag in it:
                self.b(t, tag=tag)

    def schedule(self, mf, streams, G, name=''):
        slots = [[] for _ in range(G)]
        load = [0] * G
        for st in streams:
            items = st['items']
            if not items:
                continue
            lo, hi = st.get('lo', 0), min(st.get('hi', G - 1), G - 1)
            mind = st.get('mind', 0)
            n = len(items)
            prev = lo - mind
            for i, it in enumerate(items):
                sz = size_of(it)
                tgt = lo + int((i + st.get('ph', 0.5)) * (hi - lo + 1) / n)
                g0 = max(prev + mind, lo)
                cands = sorted(range(min(g0, G - 1), G), key=lambda g: (abs(g - tgt), g))
                pick = None
                for cap in (2, 3, 4, 99):
                    for g in cands:
                        if abs(g - tgt) > 3 and cap < 99 and g > tgt:
                            continue
                        if g < tgt - 1 and cap < 99:
                            continue
                        if load[g] + sz <= cap or (load[g] == 0 and sz > cap and cap == 2):
                            pick = g
                            break
                    if pick is not None:
                        break
                slots[pick].append(it)
                load[pick] += sz
                prev = pick
        if OPT['verbose']:
            print('%-8s' % name, ''.join(str(min(x, 9)) for x in load), sum(load), file=sys.stderr)
        for i, m in enumerate(mf):
            if callable(m):
                m()
            else:
                self.b(m)
            if i < G:
                for it in slots[i]:
                    self.emit(it)

    def poll_loop(self, load_text, check, name):
        b = self.b
        ok = b.label_name(name + '_ok')
        again = b.label_name(name + '_again')
        check()
        b('s_cbranch_scc1 %s' % ok)
        b.begin_region()
        b('s_mov_b32 %s, 0' % sr(sCNT))
        b(again + ':')
        b('s_sleep 1')
        b(load_text)
        b('s_waitcnt vmcnt(0)')
        check()
        b('s_cbranch_scc1 %s' % ok)
        b('s_add_u32 %s, %s, 1' % (sr(sCNT), sr(sCNT)))
        b('s_cmp_lt_u32 %s, %d' % (sr(sCNT), OPT['poll_limit']))
        b('s_cbranch_scc1 %s' % again)
        b.end_region()
        b(ok + ':')

    def prologue(self):
        b = self.b
        b('s_cmp_ge_u32 s2, 256')
        b('s_cbranch_scc1 L_end')
        b('s_lshr_b32 %s, s2, 4' % sr(sROLE))
        b('s_and_b32 %s, %s, 1' % (sr(sROLE), sr(sROLE)))
        b('s_cmp_eq_u32 %s, 0' % sr(sROLE))
        b('s_cselect_b32 s3, 8, 32')
        b('s_load_dwordx2 s[4:5], s[0:1], 0')
        b('s_load_dwordx2 s[8:9], s[0:1], s3')
        b('s_load_dwordx2 s[12:13], s[0:1], 64')
        b('s_load_dwordx2 s[16:17], s[0:1], 56')
        b('s_load_dwordx2 s[20:21], s[0:1], 40')
        b('s_load_dwordx2 s[24:25], s[0:1], 16')
        b('s_load_dwordx2 s[28:29], s[0:1], 48')
        b('s_memrealtime %s' % sr(sNON, 2))
        vl, L3, L7, g, n, a, c = vL, 1, 2, 3, 4, 5, 6
        self.pv = dict(l=vl, L3=L3, L7=L7, g=g, n=n, a=a, c=c)
        b('v_and_b32 %s, 63, v0' % vr(vl))
        b('v_lshrrev_b32 %s, 6, v0' % vr(a))
        b('v_lshrrev_b32 %s, 3, %s' % (vr(L3), vr(vl)))
        b('v_readfirstlane_b32 %s, %s' % (sr(sW), vr(a)))
        b('v_and_b32 %s, 7, %s' % (vr(L7), vr(vl)))
        b('v_lshrrev_b32 %s, 4, %s' % (vr(g), vr(vl)))
        b('v_and_b32 %s, 15, %s' % (vr(n), vr(vl)))
        b('s_mov_b32 s6, 0x200000')
        b('s_mov_b32 s7, 0x20000')
        b('s_cmp_eq_u32 %s, 0' % sr(sROLE))
        b('s_mov_b32 s10, %d' % (512 * 2752))
        b('s_cselect_b32 s10, %d, s10' % (512 * 3072))
        b('s_mov_b32 s11, 0x20000')
        b('s_and_b32 s54, s2, 7')
        b('s_lshr_b32 s55, s2, 3')
        b('s_and_b32 s56, s54, 1')
        b('s_lshl_b32 s56, s56, 3')
        b('s_lshr_b32 s57, s55, 2')
        b('s_add_u32 %s, s56, s57' % sr(sRB))
        b('s_and_b32 s56, s54, 6')
        b('s_and_b32 s57, s55, 1')
        b('s_add_u32 %s, s56, s57' % sr(sGRP))
        b('s_lshl_b32 s56, s54, 2')
        b('s_lshr_b32 s57, s55, 3')
        b('s_add_u32 %s, s56, s57' % sr(sRT))
        b('s_and_b32 %s, s55, 7' % sr(sCT))
        b('s_lshr_b32 s54, %s, 1' % sr(sGRP))
        b('s_mul_i32 s54, s54, 11')
        b('s_and_b32 s55, %s, 1' % sr(sGRP))
        b('s_mul_i32 s56, s55, 6')
        b('s_add_u32 s54, s54, s56')
        b('s_cmp_eq_u32 %s, 7' % sr(sGRP))
        b('s_subb_u32 %s, s54, 0' % sr(sPS))
        b('s_cmp_eq_u32 %s, 6' % sr(sGRP))
        b('s_cselect_b32 s56, 1, s55')
        b('s_sub_u32 %s, 6, s56' % sr(sNP))
        b('s_lshl_b32 s54, %s, 7' % sr(sRB))
        b('s_lshl_b32 s55, %s, 5' % sr(sW))
        b('s_add_u32 s55, s55, s54')
        b('v_add_u32 %s, s55, %s' % (vr(a), vr(L3)))
        b('v_xor_b32 %s, %s, %s' % (vr(c), vr(L7), vr(g)))
        b('v_lshlrev_b32 %s, 4, %s' % (vr(c), vr(c)))
        b('v_lshl_add_u32 %s, %s, 10, %s' % (vr(vDX), vr(a), vr(c)))
        b('v_add_u32 %s, 0x2000, %s' % (vr(vDX + 1), vr(vDX)))
        b('v_xor_b32 %s, 64, %s' % (vr(vDX + 1), vr(vDX + 1)))
        b('v_add_u32 %s, 0x4000, %s' % (vr(vDX + 2), vr(vDX)))
        b('v_add_u32 %s, 0x4000, %s' % (vr(vDX + 3), vr(vDX + 1)))
        b('s_and_b32 s55, %s, 1' % sr(sW))
        b('s_lshl_b32 s55, s55, 4')
        b('s_lshr_b32 s56, %s, 1' % sr(sW))
        b('s_lshl_b32 s56, s56, 2')
        b('s_add_u32 s55, s55, s56')
        b('v_lshrrev_b32 %s, 5, %s' % (vr(a), vr(vl)))
        b('v_lshlrev_b32 %s, 3, %s' % (vr(a), vr(a)))
        b('v_and_b32 %s, 3, %s' % (vr(c), vr(L3)))
        b('v_add3_u32 %s, %s, %s, s55' % (vr(a), vr(a), vr(c)))
        b('v_lshlrev_b32 %s, 1, %s' % (vr(c), vr(g)))
        b('v_xor_b32 %s, %s, %s' % (vr(c), vr(L7), vr(c)))
        b('v_lshlrev_b32 %s, 4, %s' % (vr(c), vr(c)))
        b('s_cmp_eq_u32 %s, 0' % sr(sROLE))
        b('s_mov_b32 s56, 2752')
        b('s_cselect_b32 s56, 3072, s56')
        b('s_lshl_b32 s57, %s, 7' % sr(sGRP))
        b('s_lshl_b32 s52, %s, 6' % sr(sPS))
        b('s_cmp_eq_u32 %s, 0' % sr(sROLE))
        b('s_cselect_b32 s57, s57, s52')
        b('s_mov_b32 s55, 128')
        b('s_cselect_b32 s55, 1024, s55')
        b('v_add_u32 %s, s57, %s' % (vr(c), vr(c)))
        b('v_mad_u32_u24 %s, %s, s56, %s' % (vr(vDW), vr(a), vr(c)))
        b('s_mov_b32 s36, 0')
        b('s_mov_b32 s37, s55')
        b('s_lshl_b32 s38, s55, 1')
        b('s_lshl_b32 s39, s56, 5')
        b('s_add_u32 s40, s39, s37')
        b('s_add_u32 s41, s39, s38')
        b('s_lshl_b32 %s, s56, 6' % sr(sWSTEP))
        b('s_mov_b32 %s, 0' % sr(sXOFF))
        b('s_lshl_b32 s54, %s, 12' % sr(sW))
        b('s_add_u32 %s, s54, %d' % (sr(sXL), SLOT0 + 2048))
        b('s_mul_i32 s54, %s, 6144' % sr(sW))
        b('s_add_u32 %s, s54, %d' % (sr(sWL), SLOT0 + WOFF))

    def halo_setup(self):
        b = self.b
        pv = self.pv
        L3, L7, g, a, c = (pv[k] for k in ('L3', 'L7', 'g', 'a', 'c'))
        b('s_lshl_b32 s54, %s, 9' % sr(sW))
        b('s_add_u32 %s, s54, %d' % (sr(sHL), SLOT0))
        b('s_lshl_b32 s54, %s, 7' % sr(sRB))
        b('s_lshl_b32 s55, %s, 2' % sr(sW))
        b('s_add_u32 s55, s55, s54')
        b('s_sub_u32 s55, s55, 16')
        b('v_add_u32 %s, s55, %s' % (vr(a), vr(L3)))
        b('v_max_i32 %s, 0, %s' % (vr(a), vr(a)))
        b('s_lshl_b32 s56, %s, 1' % sr(sW))
        b('v_add_u32 %s, s56, %s' % (vr(c), vr(g)))
        b('v_xor_b32 %s, %s, %s' % (vr(c), vr(L7), vr(c)))
        b('v_and_b32 %s, 7, %s' % (vr(c), vr(c)))
        b('v_lshlrev_b32 %s, 4, %s' % (vr(c), vr(c)))
        b('v_lshl_add_u32 %s, %s, 10, %s' % (vr(vDH), vr(a), vr(c)))
        b('s_cmp_eq_u32 %s, 0' % sr(sW))
        b('s_cselect_b32 %s, 0xffffff00, -1' % sr(sHM))
        b('s_mov_b32 %s, 0' % sr(sHM + 1))

    def srd_rest(self):
        return ['s_mov_b32 s14, %d' % WS_BYTES, 's_mov_b32 s15, 0x20000',
                's_mov_b32 s18, 256', 's_mov_b32 s19, 0x20000',
                's_mov_b32 s22, %d' % (1376 * 1024), 's_mov_b32 s23, 0x20000',
                's_mov_b32 s26, %d' % (512 * 1024), 's_mov_b32 s27, 0x20000',
                's_mov_b32 s30, 0x200000', 's_mov_b32 s31, 0x20000']

    def dma_items(self, att, s):
        slot = SLOT * (s % 3)
        tag = 'st%d' % s
        items = []
        for j in range(4):
            items.append((one('s_add_u32 m0, %s, %d' % (sr(sXL), slot + j * 1024)),
                          one('buffer_load_dwordx4 %s, %s, %s offen lds' % (vr(vDX + j), srd(X_), sr(sXOFF)), tag)))
        if att:
            items.append((one('s_add_u32 m0, %s, %d' % (sr(sHL), slot)),
                          [('s_mov_b64 exec, %s' % sr(sHM, 2), None),
                           ('buffer_load_dwordx4 %s, %s, %s offen lds' % (vr(vDH), srd(X_), sr(sXOFF)), tag),
                           ('s_mov_b64 exec, -1', None)]))
        for bb in range(2):
            for p in range(3):
                items.append((one('s_add_u32 m0, %s, %d' % (sr(sWL), slot + (3 * bb + p) * 1024)),
                              one('buffer_load_dwordx4 %s, %s, %s offen lds' % (vr(vDW), srd(W_), sr(sWOFF + 3 * bb + p)), tag)))
        tail = [one('v_add_u32 %s, %s, %s' % (vr(vDW), sr(sWSTEP), vr(vDW))),
                one('s_add_u32 %s, %s, 128' % (sr(sXOFF), sr(sXOFF)))]
        return items, tail

    def dma_half(self, att, s, half):
        items, tail = self.dma_items(att, s)
        k = len(items) - 5
        part = items[:k] if half == 0 else items[k:]
        out = []
        for pre, ld in part:
            out += [pre, ld]
        if half == 1:
            out += tail
        return out

    def stats_items(self):
        t = 252
        s0, s1, q0, q1 = t, t + 1, t + 2, t + 3
        o = []
        for i in range(8):
            x = vr(vROW + i)
            sa = vr(s0 if i % 2 == 0 else s1)
            qa = vr(q0 if i % 2 == 0 else q1)
            o.append('v_dot2_f32_bf16 %s, %s, %s, %s' % (sa, x, vr(vONES), sa if i >= 2 else '0'))
            o.append('v_dot2_f32_bf16 %s, %s, %s, %s' % (qa, x, x, qa if i >= 2 else '0'))
        o.append('v_add_f32 %s, %s, %s' % (vr(s0), vr(s0), vr(s1)))
        o.append('v_add_f32 %s, %s, %s' % (vr(q0), vr(q0), vr(q1)))
        for sh in (8, 4, 2, 1):
            o.append('v_add_f32_dpp %s, %s, %s row_ror:%d row_mask:0xf bank_mask:0xf' % (vr(s0), vr(s0), vr(s0), sh))
            o.append('v_add_f32_dpp %s, %s, %s row_ror:%d row_mask:0xf bank_mask:0xf' % (vr(q0), vr(q0), vr(q0), sh))
        o.append('v_mov_b32 %s, %s' % (vr(s1), vr(s0)))
        o.append('v_mov_b32 %s, %s' % (vr(q1), vr(q0)))
        o.append('v_permlane16_swap_b32 %s, %s' % (vr(s0), vr(s1)))
        o.append('v_permlane16_swap_b32 %s, %s' % (vr(q0), vr(q1)))
        o.append('v_add_f32 %s, %s, %s' % (vr(s0), vr(s0), vr(s1)))
        o.append('v_add_f32 %s, %s, %s' % (vr(q0), vr(q0), vr(q1)))
        o.append('v_mul_f32 %s, 0xbb000000, %s' % (vr(vGR), vr(s0)))
        o.append('v_mul_f32 %s, 0x3b000000, %s' % (vr(q0), vr(q0)))
        o.append('v_fma_f32 %s, -%s, %s, %s' % (vr(q0), vr(vGR), vr(vGR), vr(q0)))
        o.append('v_max_f32 %s, 0, %s' % (vr(q0), vr(q0)))
        o.append('v_add_f32 %s, 0x3727c5ac, %s' % (vr(q0), vr(q0)))
        o.append('v_rsq_f32 %s, %s' % (vr(vGR + 1), vr(q0)))
        return [one(x) for x in o]

    def nonce_text(self):
        return 'buffer_load_dwordx2 %s, off, %s, 0 sc1' % (vr(vNON, 2), srd(DBG_))

    def nonce_and_stats_store(self):
        b = self.b

        def check():
            b('v_readfirstlane_b32 %s, %s' % (sr(sNON), vr(vNON)))
            b('v_readfirstlane_b32 %s, %s' % (sr(sNON + 1), vr(vNON + 1)))
            b('s_cmp_lg_u32 %s, 0' % sr(sNON))
        self.poll_loop(self.nonce_text(), check, 'L_non')
        b('v_mov_b32 %s, %s' % (vr(vGR + 2), sr(sNON)))
        b('v_mov_b32 %s, %s' % (vr(vGR + 3), sr(sNON + 1)))
        b('s_mov_b32 exec_lo, 1')
        b('s_mov_b32 exec_hi, 1')
        b('buffer_store_dwordx4 %s, %s, %s, 0 offen sc1' % (vr(vGR, 4), vr(vSO), srd(WS_)), tag='sst')
        b('s_mov_b64 exec, -1')

    def gather_text(self):
        return 'buffer_load_dwordx4 %s, %s, %s, 0 offen sc1' % (vr(vLD, 4), vr(vG), srd(WS_))

    def gather_check(self):
        b = self.b

        def check():
            b('v_cmp_ne_u32 vcc, %s, %s' % (sr(sNON), vr(vLD + 2)))
            b('v_cmp_ne_u32 %s, %s, %s' % (sr(sZ, 2), sr(sNON + 1), vr(vLD + 3)))
            b('s_or_b64 vcc, vcc, %s' % sr(sZ, 2))
            b('s_cmp_eq_u64 vcc, 0')
        self.poll_loop(self.gather_text(), check, 'L_gat')
        b('ds_write_b32 %s, %s' % (vr(vGL), vr(vLD)), tag='stw')
        b('ds_write_b32 %s, %s offset:%d' % (vr(vGL), vr(vLD + 1), STR), tag='stw')

    def poison_items(self, att):
        out = []
        tmp = 56
        if att:
            for i in range(4):
                out.append([('s_add_u32 %s, %s, %d' % (sr(tmp), sr(sHST), i * NKS * 1024), None),
                            ('buffer_store_dwordx4 %s, %s, %s, %s offen sc1' % (ar(aPOIS, 4), vr(vL16), srd(WS_), sr(tmp)), 'poison')])
        else:
            for p in range(3):
                if p == 2:
                    out.append([('s_lshr_b32 s57, %s, 1' % sr(sW), None),
                                ('s_add_u32 s57, s57, 4', None),
                                ('s_cmp_ge_u32 s57, %s' % sr(sNP), None),
                                ('s_cselect_b32 s57, %d, %s' % (OOB, sr(sHST)), None)])
                for t in range(4):
                    base = 57 if p == 2 else sHST
                    out.append([('s_add_u32 %s, %s, %d' % (sr(tmp), sr(base), t * NKS * 1024 + p * 2048), None),
                                ('buffer_store_dwordx4 %s, %s, %s, %s offen sc1' % (ar(aPOIS, 4), vr(vL16), srd(WS_), sr(tmp)), 'poison')])
        return out

    def flag_store(self):
        b = self.b
        b.wait_vm('poison')
        b('v_mov_b32 %s, %s' % (vr(vLD), sr(sNON)))
        b('v_mov_b32 %s, %s' % (vr(vLD + 1), sr(sNON + 1)))
        b('s_mov_b64 exec, 1')
        b('buffer_store_dwordx2 %s, off, %s, %s sc1' % (vr(vLD, 2), srd(WS_), sr(sFL)), tag='flag')
        b('s_mov_b64 exec, -1')

    def setup_items(self, att):
        pv = self.pv
        l, L3, L7, g, n, a, c = (pv[k] for k in ('l', 'L3', 'L7', 'g', 'n', 'a', 'c'))
        d = 7
        o = []
        A = o.append
        A('s_lshl_b32 s54, %s, 7' % sr(sRB))
        A('s_lshl_b32 s55, %s, 3' % sr(sROLE))
        A('s_add_u32 s55, s55, %s' % sr(sGRP))
        A('s_lshl_b32 s55, s55, 3')
        A('s_add_u32 s55, s55, s54')
        A('s_lshl_b32 s56, %s, 1' % sr(sW))
        A('s_add_u32 s55, s55, s56')
        A('v_lshrrev_b32 %s, 5, %s' % (vr(a), vr(l)))
        A('v_add_u32 %s, s55, %s' % (vr(a), vr(a)))
        A('v_lshlrev_b32 %s, 4, %s' % (vr(vSO), vr(a)))
        A('v_and_b32 %s, 31, %s' % (vr(c), vr(l)))
        A('v_lshlrev_b32 %s, 4, %s' % (vr(c), vr(c)))
        A('v_lshl_add_u32 %s, %s, 10, %s' % (vr(11), vr(a), vr(c)))
        A(('buffer_load_dwordx4 %s, %s, %s, 0 offen' % (vr(vROW, 4), vr(11), srd(X_)), 'srow'))
        A(('buffer_load_dwordx4 %s, %s, %s, 0 offen offset:512' % (vr(vROW + 4, 4), vr(11), srd(X_)), 'srow'))
        first = len(o)
        A('v_lshlrev_b32 %s, 4, %s' % (vr(vL16), vr(l)))
        for i in range(4):
            A('v_mov_b32 %s, 0x3f803f80' % vr(vONES + i))
        if att:
            A('v_add_u32 %s, %d, %s' % (vr(a), 2 * SLOT, vr(vL16)))
            A([('s_mov_b64 exec, 0xff', None),
               ('ds_write_b128 %s, %s offset:%d' % (vr(vL16), vr(vONES, 4), SLOT0), 'ones'),
               ('ds_write_b128 %s, %s offset:%d' % (vr(vL16), vr(vONES, 4), SLOT0 + SLOT), 'ones'),
               ('ds_write_b128 %s, %s offset:%d' % (vr(a), vr(vONES, 4), SLOT0), 'ones'),
               ('s_mov_b64 exec, -1', None)])
        A('v_lshrrev_b32 %s, 1, %s' % (vr(a), vr(n)))
        A('v_xor_b32 %s, %s, %s' % (vr(a), vr(a), vr(g)))
        A('v_lshlrev_b32 %s, 4, %s' % (vr(a), vr(a)))
        A('v_lshl_add_u32 %s, %s, 7, %s' % (vr(a), vr(n), vr(a)))
        if att:
            A('v_add_u32 %s, %d, %s' % (vr(vXA), SLOT0, vr(a)))
        else:
            A('s_and_b32 %s, %s, 1' % (sr(sTH), sr(sW)))
            A('s_lshl_b32 s54, %s, 13' % sr(sTH))
            A('s_add_u32 s54, s54, %d' % (SLOT0 + 2048))
            A('v_add_u32 %s, s54, %s' % (vr(vXA), vr(a)))
        A('v_xor_b32 %s, 64, %s' % (vr(vXB), vr(vXA)))
        r_, cc = d, d + 1
        A('v_bfe_u32 %s, %s, 2, 2' % (vr(r_), vr(l)))
        A('v_and_b32 %s, 3, %s' % (vr(cc), vr(l)))
        A('v_and_b32 %s, 1, %s' % (vr(a), vr(g)))
        A('v_lshl_add_u32 %s, %s, 2, %s' % (vr(a), vr(a), vr(r_)))
        A('v_lshrrev_b32 %s, 1, %s' % (vr(c), vr(a)))
        A('v_lshlrev_b32 %s, 1, %s' % (vr(c), vr(c)))
        if att:
            A('s_lshl_b32 s54, %s, 1' % sr(sW))
        else:
            A('s_and_b32 s54, %s, 2' % sr(sW))
            A('s_lshl_b32 s54, s54, 1')
        A('v_xor_b32 %s, s54, %s' % (vr(c), vr(c)))
        A('v_lshrrev_b32 %s, 1, %s' % (vr(d + 2), vr(cc)))
        A('v_add_u32 %s, %s, %s' % (vr(c), vr(c), vr(d + 2)))
        A('v_lshlrev_b32 %s, 4, %s' % (vr(c), vr(c)))
        A('v_lshl_add_u32 %s, %s, 7, %s' % (vr(c), vr(a), vr(c)))
        A('v_and_b32 %s, 1, %s' % (vr(a), vr(cc)))
        A('v_lshl_add_u32 %s, %s, 3, %s' % (vr(c), vr(a), vr(c)))
        A('v_lshrrev_b32 %s, 1, %s' % (vr(a), vr(g)))
        A('s_mov_b32 s54, 6144')
        A('v_mad_u32_u24 %s, %s, s54, %s' % (vr(c), vr(a), vr(c)))
        A('v_add_u32 %s, %d, %s' % (vr(vWA), SLOT0 + WOFF, vr(c)))
        if not att:
            A('v_xor_b32 %s, 32, %s' % (vr(vWB), vr(vWA)))
        if att:
            A('v_min_u32 %s, 35, %s' % (vr(a), vr(l)))
            A('s_mul_i32 s54, %s, 36' % sr(sW))
        else:
            A('v_min_u32 %s, 31, %s' % (vr(a), vr(l)))
            A('s_lshl_b32 s54, %s, 5' % sr(sW))
            A('s_add_u32 s54, s54, 16')
        A('v_add_u32 %s, s54, %s' % (vr(a), vr(a)))
        A('v_lshlrev_b32 %s, 2, %s' % (vr(c), vr(a)))
        A('v_add_u32 %s, %d, %s' % (vr(vGL), ST, vr(c)))
        A('s_lshl_b32 s54, %s, 7' % sr(sRB))
        A('s_sub_u32 s54, s54, 16')
        A('v_add_u32 %s, s54, %s' % (vr(a), vr(a)))
        A('v_max_i32 %s, 0, %s' % (vr(a), vr(a)))
        A('v_lshlrev_b32 %s, 4, %s' % (vr(vG), vr(a)))
        A('s_lshl_b32 s54, %s, 3' % sr(sRB))
        A('s_and_b32 s55, %s, 1' % sr(sW))
        A('s_lshl_b32 s55, s55, 2')
        A('s_add_u32 s54, s54, s55')
        A('s_mul_i32 s54, s54, %d' % NKS)
        if att:
            A('s_lshl_b32 s55, %s, 1' % sr(sGRP))
            A('s_add_u32 s55, s55, 43')
            A('s_add_u32 s54, s54, s55')
        else:
            A('s_add_u32 s54, s54, %s' % sr(sPS))
        A('s_lshr_b32 s55, %s, 1' % sr(sW))
        A('s_add_u32 s54, s54, s55')
        A('s_lshl_b32 s54, s54, 10')
        A('s_add_u32 %s, s54, %d' % (sr(sHST), H_OFF))
        A('s_lshl_b32 s54, %s, 1' % sr(sRB))
        A('s_and_b32 s55, %s, 1' % sr(sW))
        A('s_add_u32 s54, s54, s55')
        A('s_lshl_b32 s54, s54, 2')
        A('s_lshr_b32 s55, %s, 1' % sr(sGRP))
        A('s_add_u32 s54, s54, s55')
        A('s_lshl_b32 s54, s54, 4')
        A('s_and_b32 s55, %s, 1' % sr(sGRP))
        A('s_lshl_b32 s55, s55, 1')
        A('s_add_u32 s54, s54, s55')
        A('s_lshr_b32 s55, %s, 1' % sr(sW))
        A('s_add_u32 s54, s54, s55')
        A('s_lshl_b32 s54, s54, 3')
        A('s_add_u32 %s, s54, %d' % (sr(sFL), WS_D + (0 if att else 32)))
        for i in range(4):
            A('v_accvgpr_write_b32 %s, -1' % ar(aPOIS + i))
        items = []
        for x in o:
            if isinstance(x, list):
                items.append(x)
            elif isinstance(x, tuple):
                items.append([x])
            else:
                items.append(one(x))
        return items[:first], items[first:]

    def prefetch_items(self, att):
        l = vL
        vPF = 108 if att else 200
        o = ['s_lshr_b32 s54, s2, 3', 's_lshl_b32 s54, s54, 2', 's_add_u32 s54, s54, %s' % sr(sW),
             's_mul_i32 s55, s54, %d' % (86 * 128), 's_lshl_b32 s54, s54, 12',
             'v_lshlrev_b32 %s, 7, %s' % (vr(vPF), vr(l)), 'v_and_b32 %s, 0xfff, %s' % (vr(vPF + 1), vr(vPF)),
             'v_add_u32 %s, s55, %s' % (vr(vPF), vr(vPF)), 'v_add_u32 %s, s54, %s' % (vr(vPF + 1), vr(vPF + 1))]
        it = [one(x) for x in o]
        it.append(one('buffer_load_dword a240, %s, %s, 0 offen' % (vr(vPF), srd(W2_)), 'pf'))
        it.append(one('buffer_load_dword a241, %s, %s, 0 offen offset:2816' % (vr(vPF), srd(W2_)), 'pf'))
        it.append(one('buffer_load_dword a242, %s, %s, 0 offen' % (vr(vPF + 1), srd(WO_)), 'pf'))
        return it

    def role_prologue(self, att):
        b = self.b
        if att:
            self.halo_setup()
        b('s_waitcnt lgkmcnt(0)')
        names = OPT['stamps'].split(',')
        if 'start' in names:
            b('s_mov_b32 %s, %s' % (sr(sTS + (2 if OPT['fst'] else 1) * names.index('start')), sr(sNON)))
        self.ts('karg')
        for it in self.dma_half(att, 0, 0) + self.dma_half(att, 0, 1):
            self.emit(it)
        for x in self.srd_rest():
            b(x)
        if att:
            lab = b.label_name('L_nopub')
            b('s_lshl_b32 s54, s2, 2')
            b('s_or_b32 s54, s54, %s' % sr(sW))
            b('s_cmp_lg_u32 s54, 0')
            b('s_cbranch_scc1 %s' % lab)
            b.begin_region()
            b('s_or_b32 %s, %s, 1' % (sr(sNON), sr(sNON)))
            b('v_mov_b32 %s, %s' % (vr(vGR), sr(sNON)))
            b('v_mov_b32 %s, %s' % (vr(vGR + 1), sr(sNON + 1)))
            b('s_mov_b64 exec, 1')
            b('buffer_store_dwordx2 %s, off, %s, 0 sc1' % (vr(vGR, 2), srd(DBG_)))
            b('s_mov_b64 exec, -1')
            b.end_region()
            b(lab + ':')
        self.ts('st0')
        first, rest = self.setup_items(att)
        units = []
        for s_, half in ((1, 0), (1, 1), (2, 0)):
            items = self.dma_half(att, s_, half)
            npairs = (len(items) - (2 if half else 0)) // 2
            for i in range(npairs):
                units.append([items[2 * i], items[2 * i + 1], []])
            if half:
                units[-1][2] = items[2 * npairs:]
        seq = first + rest
        per = -(-len(seq) // len(units))
        for pre, ld, tail in units:
            self.emit(pre)
            if seq:
                self.emit(seq.pop(0))
            self.emit(ld)
            for it in tail:
                self.emit(it)
            for _ in range(per - 1):
                if seq:
                    self.emit(seq.pop(0))
        assert not seq
        if OPT['poison'] == 'pro':
            for it in self.poison_items(att):
                self.emit(it)
        if OPT['pf'] == 1:
            for it in self.prefetch_items(att):
                self.emit(it)
        elif OPT['pf'] == 2:
            for it in self.prefetch_items(att)[:-3]:
                self.emit(it)
        self.ts('prol')

    UNIT_SLOT = [2, 0, 1, 2, 0, 1]

    def w2_setup_v(self):
        l = vL
        a, c = 252, 253
        o = ['v_lshrrev_b32 %s, 4, %s' % (vr(a), vr(l)),
             'v_lshlrev_b32 %s, 1, %s' % (vr(a), vr(a)),
             'v_and_b32 %s, 7, %s' % (vr(c), vr(l)),
             'v_xor_b32 %s, %s, %s' % (vr(a), vr(a), vr(c)),
             'v_lshlrev_b32 %s, 4, %s' % (vr(a), vr(a)),
             'v_lshrrev_b32 %s, 3, %s' % (vr(c), vr(l)),
             'v_lshl_add_u32 %s, %s, 10, %s' % (vr(a), vr(c), vr(a)),
             's_lshl_b32 s54, %s, 7' % sr(sCT),
             'v_add_u32 %s, s54, %s' % (vr(vDX), vr(a)),
             'v_add_u32 %s, 7168, %s' % (vr(vDX + 1), vr(vDX))]
        return [one(x) for x in o]

    def w2_setup_s(self):
        o = [['s_mul_i32 %s, %s, %d' % (sr(sW2A), sr(sW), 11 * 32768)],
             ['s_mul_i32 s55, %s, %d' % (sr(sW), REG)],
             ['s_add_u32 %s, s55, %d' % (sr(sW2L), SLOT0)],
             ['s_cmp_eq_u32 %s, 3' % sr(sW),
              's_cselect_b32 %s, 5, 6' % sr(sW2B),
              's_cselect_b32 %s, %d, %s' % (sr(sW2C), OOB, sr(sW2A))],
             ['s_lshl_b32 %s, %s, 15' % (sr(sW2B), sr(sW2B))],
             ['s_add_u32 %s, %s, %s' % (sr(sW2B), sr(sW2B), sr(sW2A))],
             ['s_lshl_b32 %s, %s, 17' % (sr(sWOB), sr(sW))],
             ['s_lshl_b32 s55, %s, 2' % sr(sRT)],
             ['s_add_u32 s55, s55, %s' % sr(sW)],
             ['s_lshl_b32 s55, s55, 7'],
             ['s_add_u32 %s, s55, %d' % (sr(sFLC), WS_D)]]
        return [[(t, None) for t in x] for x in o]

    def tr_base_items(self, dst, slot_off):
        l = vL
        a, c, d, e = 252, 253, 254, 255
        o = ['v_bfe_u32 %s, %s, 2, 2' % (vr(a), vr(l)),
             'v_lshrrev_b32 %s, 4, %s' % (vr(c), vr(l)),
             'v_lshl_add_u32 %s, %s, 2, %s' % (vr(d), vr(c), vr(a)),
             'v_bfe_u32 %s, %s, 1, 2' % (vr(e), vr(d)),
             'v_lshlrev_b32 %s, 5, %s' % (vr(e), vr(e)),
             'v_lshl_add_u32 %s, %s, 7, %s' % (vr(e), vr(d), vr(e)),
             'v_and_b32 %s, 3, %s' % (vr(a), vr(l)),
             'v_lshl_add_u32 %s, %s, 3, %s' % (vr(e), vr(a), vr(e)),
             's_mul_i32 s54, %s, %d' % (sr(sW), REG),
             's_add_u32 s54, s54, %d' % (SLOT0 + slot_off),
             'v_add_u32 %s, s54, %s' % (vr(dst), vr(e))]
        for cp in range(1, 4):
            o.append('v_xor_b32 %s, %d, %s' % (vr(dst + cp), 32 * cp, vr(dst)))
        return [one(x) for x in o]

    def tr_base01_items(self):
        return [one('v_add_u32 %s, %s, %s' % (vr(vTB01 + cp), hex((-2 * SLOT) & 0xffffffff), vr(vTB2 + cp))) for cp in range(4)]

    @staticmethod
    def step_off(j):
        if j >= 11:
            return 'o', j - 11
        c, h, e = j >> 2, (j >> 1) & 1, j & 1
        if j == 9:
            return 'c', 5
        return ('b' if h else 'a'), 2 * c + e

    def w2_dma_unit(self, q):
        j, hh = q >> 1, q & 1
        r, pos = q // 5, q % 5
        kind, off = self.step_off(j)
        base = dict(a=sW2A, b=sW2B, c=sW2C, o=sWOB)[kind]
        sd = WO_ if kind == 'o' else W2_
        tag = 'w2_%d' % r
        lds = self.UNIT_SLOT[r] * SLOT + pos * 2048
        return [[('s_add_u32 %s, %s, %d' % (sr(sU), sr(base), off * 32768 + hh * 16384), None),
                 ('s_add_u32 m0, %s, %d' % (sr(sW2L), lds), None)],
                one('buffer_load_dwordx4 %s, %s, %s offen lds' % (vr(vDX), srd(sd), sr(sU)), tag),
                one('buffer_load_dwordx4 %s, %s, %s offen offset:1024 lds' % (vr(vDX + 1), srd(sd), sr(sU)), tag)]

    def w2_dma(self, q0, q1):
        out = []
        for q in range(q0, q1):
            out += self.w2_dma_unit(q)
        return out

    def w2_tr_unit(self, q):
        j, hh = q >> 1, q & 1
        r, pos = q // 5, q % 5
        sl = self.UNIT_SLOT[r]
        base = vTB2 if sl == 2 else vTB01
        off = pos * 2048 + (0 if sl == 2 else sl * SLOT)
        return [one('ds_read_b64_tr_b16 %s, %s offset:%d' % (ar(16 * j + 4 * cp + 2 * hh, 2), vr(base + cp), off), 'tr%d' % r)
                for cp in range(4)]

    def w2_tr(self, r):
        out = []
        for q in range(5 * r, 5 * r + 5):
            out += self.w2_tr_unit(q)
        return out

    def w2_background(self):
        b = self.b
        pair = lambda xs: [xs[i] + xs[i + 1] for i in range(0, len(xs), 2)]
        o = self.w2_dma(13, 15)
        o.append(lambda: b.wait_lg('tr0'))
        o += self.w2_dma(15, 20)
        o.append(lambda: b.wait_vm('w2_1'))
        o += pair(self.w2_tr(1))
        o.append(self.flags_load_item())
        o.append(lambda: b.wait_lg('tr1'))
        o += self.w2_dma(20, 25)
        o.append(lambda: b.wait_vm('w2_2'))
        o += pair(self.w2_tr(2))
        o.append(lambda: b.wait_lg('tr2'))
        o += self.w2_dma(25, 30)
        return o

    def p2_setup_items(self):
        l = vL
        a, c, d = 252, 253, 254
        o = []
        A = o.append
        A('s_lshl_b32 s55, %s, 2' % sr(sRT))
        for tp in range(4):
            r = sHB + tp
            A('s_add_u32 %s, %s, %d' % (sr(r), sr(sW), tp))
            A('s_and_b32 %s, %s, 3' % (sr(r), sr(r)))
            A('s_add_u32 %s, %s, s55' % (sr(r), sr(r)))
            A('s_mul_i32 %s, %s, %d' % (sr(r), sr(r), NKS * 1024))
            A('s_add_u32 %s, %s, %d' % (sr(r), sr(r), H_OFF))
        A('s_mul_i32 s54, %s, %d' % (sr(sW), 11 * 1024))
        A('v_add_u32 %s, s54, %s' % (vr(vHA), vr(vL16)))
        A(['s_cmp_eq_u32 %s, 3' % sr(sW), 's_cselect_b32 s54, 5, 6'])
        A('v_lshl_add_u32 %s, s54, 10, %s' % (vr(vHB_), vr(vHA)))
        A('v_and_b32 %s, 15, %s' % (vr(a), vr(l)))
        A('s_lshl_b32 s54, %s, 6' % sr(sRT))
        A('s_lshl_b32 s55, %s, 4' % sr(sW))
        A('s_add_u32 s54, s54, s55')
        A('v_add_u32 %s, s54, %s' % (vr(a), vr(a)))
        A('v_lshlrev_b32 %s, 10, %s' % (vr(a), vr(a)))
        A('v_lshrrev_b32 %s, 4, %s' % (vr(c), vr(l)))
        A('s_lshl_b32 s55, %s, 7' % sr(sCT))
        A('v_lshl_add_u32 %s, %s, 3, %s' % (vr(vXR), vr(c), vr(a)))
        A('v_add_u32 %s, s55, %s' % (vr(vXR), vr(vXR)))
        A('v_and_b32 %s, 1, %s' % (vr(vO), vr(c)))
        A('v_lshlrev_b32 %s, 5, %s' % (vr(vO), vr(vO)))
        A('v_lshrrev_b32 %s, 1, %s' % (vr(c), vr(c)))
        A('v_lshl_add_u32 %s, %s, 4, %s' % (vr(vO), vr(c), vr(vO)))
        A('v_add3_u32 %s, %s, %s, s55' % (vr(vO), vr(vO), vr(a)))
        A('v_lshrrev_b32 %s, 3, %s' % (vr(a), vr(l)))
        A('v_and_b32 %s, 6, %s' % (vr(c), vr(a)))
        A('v_and_b32 %s, 1, %s' % (vr(a), vr(a)))
        A('v_bfe_u32 %s, %s, 2, 1' % (vr(d), vr(l)))
        A('v_add_u32 %s, %s, %s' % (vr(c), vr(c), vr(d)))
        A(['s_cmp_eq_u32 %s, 3' % sr(sW), 's_cselect_b32 s54, 5, 6'])
        A('v_mad_u32_u24 %s, %s, s54, %s' % (vr(c), vr(a), vr(c)))
        A('s_mul_i32 s54, %s, 11' % sr(sW))
        A('v_add_u32 %s, s54, %s' % (vr(c), vr(c)))
        A('v_lshrrev_b32 %s, 2, %s' % (vr(a), vr(l)))
        A('s_lshl_b32 s54, %s, 2' % sr(sW))
        A('s_add_u32 s54, s54, 32')
        A('v_add_u32 %s, s54, %s' % (vr(d), vr(a)))
        A(['v_cmp_le_u32 vcc, 11, %s' % vr(a), 'v_cndmask_b32 %s, %s, %s, vcc' % (vr(c), vr(c), vr(d))])
        A('v_and_b32 %s, 3, %s' % (vr(d), vr(l)))
        A('v_add_u32 %s, %s, %s' % (vr(d), sr(sW), vr(d)))
        A('v_and_b32 %s, 3, %s' % (vr(d), vr(d)))
        A('v_mad_u32_u24 %s, %s, %d, %s' % (vr(c), vr(d), NKS, vr(c)))
        A('v_lshlrev_b32 %s, 10, %s' % (vr(c), vr(c)))
        A('s_mul_i32 s54, %s, %d' % (sr(sRT), 4 * NKS * 1024))
        A('s_add_u32 s54, s54, %d' % H_OFF)
        A('v_add_u32 %s, s54, %s' % (vr(c), vr(c)))
        A('v_mov_b32 %s, %d' % (vr(d), OOB))
        A(['s_cmp_eq_u32 %s, 3' % sr(sW), 's_cselect_b32 s54, 9, 15'])
        A(['v_cmp_eq_u32 vcc, s54, %s' % vr(a), 'v_cndmask_b32 %s, %s, %s, vcc' % (vr(c), vr(c), vr(d))])
        A(['v_cmp_eq_u32 vcc, 15, %s' % vr(a), 'v_cndmask_b32 %s, %s, %s, vcc' % (vr(vPO), vr(c), vr(d))])
        A('v_and_b32 %s, 7, %s' % (vr(vFA), vr(l)))
        A('v_lshlrev_b32 %s, 3, %s' % (vr(vFA), vr(vFA)))
        return [[(t, None) for t in x] if isinstance(x, list) else one(x) for x in o]

    def flags_text(self):
        return 'buffer_load_dwordx2 %s, %s, %s, %s offen sc1' % (vr(vFLG, 2), vr(vFA), srd(WS_), sr(sFLC))

    def flags_load_item(self):
        return one(self.flags_text(), 'flg')

    def flags_check(self):
        b = self.b

        def check():
            b('v_cmp_ne_u32 vcc, %s, %s' % (sr(sNON), vr(vFLG)))
            b('v_cmp_ne_u32 s[54:55], %s, %s' % (sr(sNON + 1), vr(vFLG + 1)))
            b('s_or_b64 vcc, vcc, s[54:55]')
            b('s_cmp_eq_u64 vcc, 0')
        self.poll_loop(self.flags_text(), check, 'L_flg')

    def main_loop(self, att):
        b = self.b
        if att:
            F = [116, 164]
            G = 27

            def xreg(f, t):
                return F[f] + 4 * t

            def wreg(f, p):
                return F[f] + 36 + 4 * p

            def reads(f, bb):
                xa = vXB if bb else vXA
                def wr(p):
                    return [('ds_read_b64_tr_b16 %s, %s offset:%d' % (vr(wreg(f, p) + 2 * hh, 2), vr(vWA),
                                                                     hh * 12288 + (3 * bb + p) * 1024), 'fr') for hh in range(2)]
                def xr(t):
                    return [('ds_read_b128 %s, %s offset:%d' % (vr(xreg(f, t), 4), vr(xa), t * 2048), 'fr')]
                out = wr(1) + xr(0) + wr(2) + xr(1) + wr(0)
                for t in range(2, 9):
                    out += xr(t)
                return out

            def mfmas(f, u):
                out = []
                C = lambda r: '0' if u == 0 else vr(r, 4)
                for t in range(9):
                    out.append('%s %s, %s, %s, %s' % (MF, vr(32 + 4 * t, 4), vr(wreg(f, 1), 4), vr(xreg(f, t), 4), C(32 + 4 * t)))
                    out.append('%s %s, %s, %s, %s' % (MF, vr(68 + 4 * t, 4), vr(xreg(f, t), 4), vr(wreg(f, 2), 4), C(68 + 4 * t)))
                    if t >= 1:
                        q = 4 * (t - 1)
                        out.append('%s %s, %s, %s, %s' % (MF, vr(q, 4), vr(wreg(f, 0), 4), vr(xreg(f, t), 4), C(q)))
                out.append('%s %s, %s, %s, %s' % (MF, vr(104, 4), vr(wreg(f, 0), 4), vr(vONES, 4), C(104)))
                return out
        else:
            F = [120, 160]
            G = 24

            def xreg(f, t):
                return F[f] + 4 * t

            def wreg(f, p, ti):
                return F[f] + 16 + 4 * (2 * p + ti)

            def reads(f, bb):
                xa = vXB if bb else vXA
                def wr(p, ti):
                    return [('ds_read_b64_tr_b16 %s, %s offset:%d' % (vr(wreg(f, p, ti) + 2 * hh, 2), vr(vWB if ti else vWA),
                                                                     hh * 12288 + (3 * bb + p) * 1024), 'fr') for hh in range(2)]
                def xr(t):
                    return [('ds_read_b128 %s, %s offset:%d' % (vr(xreg(f, t), 4), vr(xa), t * 2048), 'fr')]
                out = wr(0, 0) + xr(0) + xr(1) + xr(2) + xr(3)
                for pt in range(1, 6):
                    out += wr(pt >> 1, pt & 1)
                return out

            def mfmas(f, u):
                out = []
                C = lambda r: '0' if u == 0 else vr(r, 4)
                for pt in range(6):
                    for t in range(4):
                        acc = 16 * pt + 4 * t
                        out.append('%s %s, %s, %s, %s' % (MF, vr(acc, 4), vr(wreg(f, pt >> 1, pt & 1), 4), vr(xreg(f, t), 4), C(acc)))

                def sblock():
                    lab = b.label_name('L_nos')
                    b('s_cmp_lg_u32 %s, %d' % (sr(sTH), u & 1))
                    b('s_cbranch_scc1 %s' % lab)
                    b.begin_region()
                    for pt in range(6):
                        c = '0' if u < 2 else vr(96 + 4 * pt, 4)
                        b('%s %s, %s, %s, %s' % (MF, vr(96 + 4 * pt, 4), vr(wreg(f, pt >> 1, pt & 1), 4), vr(vONES, 4), c))
                    b.end_region()
                    b(lab + ':')
                out.append(sblock)
                return out

        stats = self.stats_items()
        poison = self.poison_items(att) if OPT['poison'] == 'even' or (OPT['poison'] == 'att' and att) else []
        p2s = self.p2_setup_items()
        b.wait_vm('st0')
        b.wait_lg('ones')
        self.ts('w0')
        b('s_barrier')
        self.ts('bar0')
        for t, tag in reads(0, 0):
            b(t, tag=tag)
        for u in range(16):
            s, bb, f = u >> 1, u & 1, u & 1
            mf = mfmas(f, u)
            streams = []
            first = []
            if bb == 1:
                b.wait_lg('fr', 'stw')
                self.ts('a%d' % u)
                if s + 1 < 8:
                    b.wait_vm('st%d' % (s + 1))
                self.ts('b%d' % u)
                if not OPT['abl'] & 4:
                    b('s_barrier')
                self.ts('c%d' % u)
            rd = []
            if u < 15 and not OPT['abl'] & 2:
                rd = [[x] for x in reads(1 - f, 1 - bb)]
            if bb == 1 and u < 15:
                delta = SLOT if (s % 3) < 2 else -2 * SLOT
                upd = [one('v_add_u32 %s, %s, %s' % (vr(r), hex(delta & 0xffffffff), vr(r)))
                       for r in ([vWA, vXA, vXB] if att else [vWA, vXA, vWB, vXB])]
                rd = upd[:2] + rd[:3] + upd[2:] + rd[3:]
            streams.append(dict(items=rd, lo=0, hi=(G - 3 if bb else (G * 3) // 4)))
            dm = []
            st3 = (u + 5) >> 1
            if u == 0:
                dm = self.dma_half(att, 2, 1)
                dm.insert(len(dm) - 4, one(self.nonce_text(), 'non'))
            elif st3 < 8:
                if not OPT['abl'] & 1:
                    dm = self.dma_half(att, st3, 0 if bb else 1)
                if u == 10:
                    dm.insert(max(len(dm) - 4, 0), one(self.gather_text(), 'gat'))
            elif u == 11:
                dm = self.w2_setup_s() + self.w2_dma(0, 3)
            elif u == 12:
                dm = self.w2_dma(3, 5)
            elif u == 13:
                dm = self.w2_dma(5, 8)
            elif u == 14:
                dm = self.w2_dma(8, 10)
            elif u == 15:
                dm = self.w2_dma(10, 13)
            pz = []
            if poison and u in (2, 4, 6):
                n = 4 if u < 6 or att else len(poison)
                pz, poison = poison[:n], poison[n:]
            if OPT['pf'] == 2 and u in OPT['pfu']:
                pz = pz + [self.prefetch_items(att)[-3 + OPT['pfu'].index(u)]]
            if pz:
                streams.append(dict(items=dm, lo=0, hi=(G * 2) // 3, mind=1))
                streams.append(dict(items=pz, lo=(G * 2) // 3 + 2, hi=G - 1))
            else:
                streams.append(dict(items=dm, lo=0, hi=G - 1, mind=1))
            ex = []
            if u < 3:
                k = (len(stats) + 2 - u) // (3 - u)
                if u == 0:
                    k = 8
                ex, stats = stats[:k], stats[k:]
                streams.append(dict(items=ex, lo=(G // 2 if u == 0 else 0), hi=G - 1))
            elif u == 3:
                streams.append(dict(items=[blk(self.nonce_and_stats_store, 8)], lo=1, hi=3))
            elif 4 <= u <= 9:
                k = (len(p2s) + 9 - u) // (10 - u)
                ex, p2s = p2s[:k], p2s[k:]
                streams.append(dict(items=ex, lo=0, hi=G - 1))
                if u == 9:
                    streams.append(dict(items=[blk(self.flag_store, 5)], lo=2, hi=4))
            elif u == 10:
                streams.append(dict(items=self.w2_setup_v(), lo=0, hi=G - 1))
            elif u == 12:
                streams.append(dict(items=self.tr_base_items(vTB2, 2 * SLOT), lo=0, hi=G - 1))
            elif u == 13:
                streams.append(dict(items=[blk(self.gather_check, 8)], lo=1, hi=3))
            elif u == 14:
                streams.append(dict(items=self.tr_base01_items(), lo=0, hi=G - 1))
            elif u == 15:
                tr = self.w2_tr(0)
                tr.insert(0, blk(lambda: b.wait_vm('w2_0'), 0))
                streams.append(dict(items=tr, lo=G // 3, hi=G - 1))
            self.schedule(mf, streams, G, '%s%d' % ('a' if att else 'm', u))
        assert not stats and not poison and not p2s

    def att_epilogue(self):
        b = self.b
        l = vL
        QS = 116
        VS = 134
        VP, KP, QP = 158, 176, 194
        a, c, d = T + 4, T + 5, T + 6
        vNEG = T + 7
        SEL = T + 8
        vAq, vAq2, vAv = T + 12, T + 13, T + 14
        vOW = T + 15
        b.bg = self.w2_background()
        b.bg_every = OPT['bg_att']
        b('v_and_b32 %s, 15, %s' % (vr(a), vr(l)))
        b('v_lshrrev_b32 %s, 4, %s' % (vr(c), vr(l)))
        b('v_lshlrev_b32 %s, 2, %s' % (vr(vAq), vr(a)))
        b('v_add_u32 %s, %d, %s' % (vr(vAq), ST, vr(vAq)))
        b('v_add_u32 %s, 256, %s' % (vr(vAq2), vr(vAq)))
        b('v_lshlrev_b32 %s, 4, %s' % (vr(vAv), vr(c)))
        b('v_add_u32 %s, %d, %s' % (vr(vAv), ST, vr(vAv)))
        for t in range(9):
            if t < 7:
                b('ds_read2_b32 %s, %s offset0:%d offset1:%d' % (vr(QS + 2 * t, 2), vr(vAq), 16 * t, 144 + 16 * t), tag='qs')
            else:
                b('ds_read2_b32 %s, %s offset0:%d offset1:%d' % (vr(QS + 2 * t, 2), vr(vAq2), 16 * t - 64, 80 + 16 * t), tag='qs')

        def vstat_read(t):
            base = VS + 8 * (t % 3)
            b('ds_read_b128 %s, %s offset:%d' % (vr(base, 4), vr(vAv), 64 * t), tag='vs')
            b('ds_read_b128 %s, %s offset:%d' % (vr(base + 4, 4), vr(vAv), STR + 64 * t), tag='vs')
        for t in range(3):
            vstat_read(t)
        for i in range(4):
            b('v_mov_b32_dpp %s, %s row_newbcast:0 row_mask:0xf bank_mask:0xf' % (vr(108 + i), vr(32 + i)))
        b('v_mov_b32 %s, %s' % (vr(112), vr(68)))
        b('v_mov_b32 %s, %s' % (vr(113), vr(68)))
        b('v_and_b32 %s, 1, %s' % (vr(d), vr(a)))
        b('v_permlane16_swap_b32 %s, %s' % (vr(112), vr(113)))
        b('v_cmp_eq_u32 %s, 1, %s' % (sr(sP, 2), vr(d)))
        b('v_lshl_add_u32 %s, %s, 2, %s' % (vr(c), vr(c), vr(d)))
        b('v_mov_b32 %s, %s' % (vr(113), vr(112)))
        b('v_cmp_le_u32 %s, %s, %s' % (sr(sC0, 2), vr(c), vr(a)))
        b('v_add_u32 %s, 2, %s' % (vr(c), vr(c)))
        b('v_permlane32_swap_b32 %s, %s' % (vr(112), vr(113)))
        b('v_cmp_le_u32 %s, %s, %s' % (sr(sC1, 2), vr(c), vr(a)))
        b('v_mov_b32 %s, 0x0c0c0100' % vr(a))
        b('v_mov_b32 %s, 0x01000c0c' % vr(c))
        b('v_cndmask_b32 %s, %s, %s, %s' % (vr(a), vr(a), vr(c), sr(sP, 2)))
        b('v_mov_b32 %s, 0x0c0c0302' % vr(c))
        b('v_mov_b32 %s, 0x03020c0c' % vr(d))
        b('v_cndmask_b32 %s, %s, %s, %s' % (vr(c), vr(c), vr(d), sr(sP, 2)))
        b('v_mov_b32 %s, 0x0c0c0c0c' % vr(d))
        b('v_cndmask_b32 %s, %s, %s, %s' % (vr(SEL + 0), vr(a), vr(d), sr(sC0, 2)))
        b('v_cndmask_b32 %s, %s, %s, %s' % (vr(SEL + 1), vr(c), vr(d), sr(sC1, 2)))
        b('v_cndmask_b32 %s, %s, %s, %s' % (vr(SEL + 2), vr(d), vr(a), sr(sC0, 2)))
        b('v_cndmask_b32 %s, %s, %s, %s' % (vr(SEL + 3), vr(d), vr(c), sr(sC1, 2)))
        b('v_mov_b32 %s, 0xcf6e6b28' % vr(vNEG))
        b('s_cmp_eq_u32 %s, 0' % sr(sRB))
        b('s_cselect_b64 %s, -1, 0' % sr(sZ, 2))
        b('s_mov_b32 %s, 0x3eb8aa3b' % sr(sC))
        b('s_lshr_b32 s54, %s, 1' % sr(sW))
        b('s_lshl_b32 s54, s54, 13')
        b('s_and_b32 s55, %s, 1' % sr(sW))
        b('s_lshl_b32 s56, s55, 3')
        b('s_add_u32 s56, s56, s54')
        b('s_add_u32 s56, s56, %d' % OX)
        b('v_add_u32 %s, s56, %s' % (vr(vOW), vr(vL16)))

        def norm_qk(acc, sreg, t, dst):
            st = vr(QS + 2 * t, 2)
            for h in range(2):
                b('v_pk_fma_f32 %s, %s, %s, %s op_sel:[0,0,0] op_sel_hi:[1,0,1]' % (vr(acc + 2 * h, 2), vr(sreg + 2 * h, 2), st, vr(acc + 2 * h, 2)))
            for h in range(2):
                b('v_pk_mul_f32 %s, %s, %s op_sel:[0,1] op_sel_hi:[1,1]' % (vr(acc + 2 * h, 2), vr(acc + 2 * h, 2), st))
            for h in range(2):
                b('v_cvt_pk_bf16_f32 %s, %s, %s' % (vr(dst + h), vr(acc + 2 * h), vr(acc + 2 * h + 1)))

        def norm_v(t):
            acc = 68 + 4 * t
            base = VS + 8 * (t % 3)
            for h in range(2):
                b('v_pk_fma_f32 %s, %s, %s, %s op_sel_hi:[1,0,1]' % (vr(acc + 2 * h, 2), vr(base + 2 * h, 2), vr(112, 2), vr(acc + 2 * h, 2)))
            for h in range(2):
                b('v_pk_mul_f32 %s, %s, %s' % (vr(acc + 2 * h, 2), vr(acc + 2 * h, 2), vr(base + 4 + 2 * h, 2)))
            for h in range(2):
                b('v_cvt_pk_bf16_f32 %s, %s, %s' % (vr(VP + 2 * t + h), vr(acc + 2 * h), vr(acc + 2 * h + 1)))
            if t + 3 < 9:
                vstat_read(t + 3)

        for t in range(9):
            norm_qk(32 + 4 * t, 108, t, KP + 2 * t)
        for t in range(1, 9):
            norm_qk(4 * (t - 1), 104, t, QP + 2 * (t - 1))
        for t in range(1, 9):
            D = 8 * (t - 1)
            b('%s %s, %s, %s, 0' % (MF16, vr(D, 4), vr(KP + 2 * (t - 1), 2), vr(QP + 2 * (t - 1), 2)))
            b('%s %s, %s, %s, 0' % (MF16, vr(D + 4, 4), vr(KP + 2 * t, 2), vr(QP + 2 * (t - 1), 2)))
        for t in range(9):
            norm_v(t)
        LG, MX = 64, 80
        for t in range(1, 9):
            D = 8 * (t - 1)
            for j in range(2):
                b('v_cndmask_b32 %s, %s, %s, %s' % (vr(D + 2 * j), vr(D + 2 * j), vr(D + 2 * j + 1), sr(sP, 2)))
                b('v_cndmask_b32 %s, %s, %s, %s' % (vr(D + 4 + 2 * j), vr(D + 4 + 2 * j), vr(D + 4 + 2 * j + 1), sr(sP, 2)))
            if t == 1:
                for j in range(2):
                    b('v_cndmask_b32 %s, %s, %s, %s' % (vr(D + 2 * j), vr(D + 2 * j), vr(vNEG), sr(sZ, 2)))
            b('v_cndmask_b32 %s, %s, %s, %s' % (vr(LG + 2 * (t - 1)), vr(D), vr(D + 4), sr(sC0, 2)))
            b('v_cndmask_b32 %s, %s, %s, %s' % (vr(LG + 2 * (t - 1) + 1), vr(D + 2), vr(D + 6), sr(sC1, 2)))
            b('v_max_f32 %s, %s, %s' % (vr(MX + t - 1), vr(LG + 2 * (t - 1)), vr(LG + 2 * (t - 1) + 1)))
        for h in range(2):
            m = MX + 4 * h
            b('v_permlane16_swap_b32 %s, %s' % (vr(m), vr(m + 1)))
            b('v_permlane16_swap_b32 %s, %s' % (vr(m + 2), vr(m + 3)))
        for h in range(2):
            m = MX + 4 * h
            b('v_max_f32 %s, %s, %s' % (vr(m), vr(m), vr(m + 1)))
            b('v_max_f32 %s, %s, %s' % (vr(m + 2), vr(m + 2), vr(m + 3)))
        for h in range(2):
            m = MX + 4 * h
            b('v_permlane32_swap_b32 %s, %s' % (vr(m), vr(m + 2)))
        for h in range(2):
            m = MX + 4 * h
            b('v_max_f32 %s, %s, %s' % (vr(m), vr(m), vr(m + 2)))
        for h in range(2):
            m = MX + 4 * h
            b('v_mul_f32 %s, %s, %s' % (vr(m), sr(sC), vr(m)))
        for h in range(2):
            m = MX + 4 * h
            b('v_mov_b32 %s, %s' % (vr(m + 2), vr(m)))
        for h in range(2):
            m = MX + 4 * h
            b('v_permlane32_swap_b32 %s, %s' % (vr(m), vr(m + 2)))
        for h in range(2):
            m = MX + 4 * h
            b('v_mov_b32 %s, %s' % (vr(m + 1), vr(m)))
            b('v_mov_b32 %s, %s' % (vr(m + 3), vr(m + 2)))
        for h in range(2):
            m = MX + 4 * h
            b('v_permlane16_swap_b32 %s, %s' % (vr(m), vr(m + 1)))
            b('v_permlane16_swap_b32 %s, %s' % (vr(m + 2), vr(m + 3)))
        for t in range(1, 9):
            L = LG + 2 * (t - 1)
            for j in range(2):
                b('v_fma_f32 %s, %s, %s, -%s' % (vr(L + j), vr(L + j), sr(sC), vr(MX + t - 1)))
        for t in range(1, 9):
            L = LG + 2 * (t - 1)
            for j in range(2):
                b('v_exp_f32 %s, %s' % (vr(L + j), vr(L + j)))
        for t in range(1, 9):
            L = LG + 2 * (t - 1)
            b('v_cvt_pk_bf16_f32 %s, %s, %s' % (vr(L), vr(L), vr(L + 1)))
        PF, OA, SM = 0, 32, 84
        for t in range(1, 9):
            L = LG + 2 * (t - 1)
            for i in range(4):
                b('v_perm_b32 %s, %s, %s, %s' % (vr(PF + 4 * (t - 1) + i), vr(L), vr(L), vr(SEL + i)))
            b('%s %s, %s, %s, 0' % (MF, vr(OA + 4 * (t - 1), 4), vr(VP + 2 * (t - 1), 4), vr(PF + 4 * (t - 1), 4)))
            b('%s %s, %s, %s, 0' % (MF, vr(SM + 4 * (t - 1), 4), vr(vONES, 4), vr(PF + 4 * (t - 1), 4)))
        for t in range(1, 9):
            sm = SM + 4 * (t - 1)
            b('v_rcp_f32 %s, %s' % (vr(sm), vr(sm)))
        for t in range(1, 9):
            sm, o = SM + 4 * (t - 1), OA + 4 * (t - 1)
            for h in range(2):
                b('v_pk_mul_f32 %s, %s, %s op_sel:[0,0] op_sel_hi:[1,0]' % (vr(o + 2 * h, 2), vr(o + 2 * h, 2), vr(sm, 2)))
            for h in range(2):
                b('v_cvt_pk_bf16_f32 %s, %s, %s' % (vr(o + h), vr(o + 2 * h), vr(o + 2 * h + 1)))
            b('ds_write_b64 %s, %s offset:%d' % (vr(vOW), vr(o, 2), (t - 1) * 1024), tag='ox')
        b.bg_flush()
        b.bg_every = 0
        self.ts('epi')
        b('s_lshr_b32 s54, %s, 1' % sr(sW))
        b('s_lshl_b32 s54, s54, 13')
        b('s_and_b32 s55, %s, 1' % sr(sW))
        b('s_lshl_b32 s56, s55, 12')
        b('s_add_u32 s56, s56, s54')
        b('s_add_u32 s56, s56, %d' % OX)
        b('v_add_u32 %s, s56, %s' % (vr(c), vr(vL16)))
        b.wait_lg('ox')
        b('s_barrier')
        for i in range(4):
            b('ds_read_b128 %s, %s offset:%d' % (vr(4 * i, 4), vr(c), i * 1024), tag='oxr')
        self.p2_issue()
        for i in range(4):
            b('s_add_u32 s57, %s, %d' % (sr(sHST), i * NKS * 1024))
            b('buffer_store_dwordx4 %s, %s, %s, s57 offen %s' % (vr(4 * i, 4), vr(vL16), srd(WS_), OPT['hstf']), tag='hst')

    def mlp_epilogue(self):
        b = self.b
        l = vL
        a, c, d = T + 4, T + 5, T + 6
        QS = 120
        TM = 128
        PK = 152
        b.bg = self.w2_background()
        b('v_lshrrev_b32 %s, 4, %s' % (vr(c), vr(l)))
        b('v_lshlrev_b32 %s, 4, %s' % (vr(c), vr(c)))
        b('s_mul_i32 s54, %s, 384' % sr(sW))
        b('s_add_u32 s55, s54, %d' % SX)
        b('v_add_u32 %s, s55, %s' % (vr(d), vr(c)))
        b('s_xor_b32 s54, %s, 1' % sr(sW))
        b('s_mul_i32 s54, s54, 384')
        b('s_add_u32 s55, s54, %d' % SX)
        b('v_add_u32 %s, s55, %s' % (vr(c), vr(c)))
        b('s_mov_b32 exec_lo, 0x00010001')
        b('s_mov_b32 exec_hi, 0x00010001')
        for pt in range(6):
            b('ds_write_b128 %s, %s offset:%d' % (vr(d), vr(96 + 4 * pt, 4), pt * 64), tag='sx')
        b('s_mov_b64 exec, -1')
        b.bg_every = OPT['bg_mlp']
        b('v_and_b32 %s, 15, %s' % (vr(a), vr(l)))
        b('s_lshl_b32 s54, %s, 6' % sr(sTH))
        b('s_add_u32 s54, s54, 16')
        b('v_add_u32 %s, s54, %s' % (vr(a), vr(a)))
        b('v_lshlrev_b32 %s, 2, %s' % (vr(a), vr(a)))
        b('v_add_u32 %s, %d, %s' % (vr(a), ST, vr(a)))
        for t in range(4):
            b('ds_read2_b32 %s, %s offset0:%d offset1:%d' % (vr(QS + 2 * t, 2), vr(a), 16 * t, 144 + 16 * t), tag='qs')
        b.bg_pop(4)
        b.wait_lg('sx')
        b('s_barrier')
        self.ts('e0')
        for pt in range(6):
            b('ds_read_b128 %s, %s offset:%d' % (vr(TM + 4 * pt, 4), vr(c), pt * 64), tag='sxr')
        b.bg_pop(4)
        for pt in range(6):
            for h in range(2):
                r = 96 + 4 * pt + 2 * h
                b('v_pk_add_f32 %s, %s, %s' % (vr(r, 2), vr(r, 2), vr(TM + 4 * pt + 2 * h, 2)))
        k = 0
        skip = None
        for p in range(3):
            self.ts('e%d' % (p + 1))
            if p == 2:
                b.bg_flush()
                b.bg_every = 0
                skip = b.label_name('L_nopair')
                b('s_lshr_b32 s55, %s, 1' % sr(sW))
                b('s_add_u32 s55, s55, 4')
                b('s_cmp_ge_u32 s55, %s' % sr(sNP))
                b('s_cbranch_scc1 %s' % skip)
                b.begin_region()
            for t in range(4):
                st = vr(QS + 2 * t, 2)
                dst = PK + 4 * (k % 4)
                k += 1
                for ti in range(2):
                    acc = 16 * (2 * p + ti) + 4 * t
                    sreg = 96 + 4 * (2 * p + ti)
                    for h in range(2):
                        b('v_pk_fma_f32 %s, %s, %s, %s op_sel:[0,0,0] op_sel_hi:[1,0,1]' % (vr(acc + 2 * h, 2), vr(sreg + 2 * h, 2), st, vr(acc + 2 * h, 2)))
                    for h in range(2):
                        b('v_pk_mul_f32 %s, %s, %s op_sel:[0,1] op_sel_hi:[1,1]' % (vr(acc + 2 * h, 2), vr(acc + 2 * h, 2), st))
                    for h in range(2):
                        b('v_cvt_pk_bf16_f32 %s, %s, %s' % (vr(dst + 2 * ti + h), vr(acc + 2 * h), vr(acc + 2 * h + 1)))
                for i in range(4):
                    b('v_pk_max_i16 %s, %s, 0' % (vr(dst + i), vr(dst + i)))
                b('s_add_u32 s57, %s, %d' % (sr(sHST), t * NKS * 1024 + p * 2048))
                b('buffer_store_dwordx4 %s, %s, %s, s57 offen %s' % (vr(dst, 4), vr(vL16), srd(WS_), OPT['hstf']), tag='hst')
        b.end_region()
        b(skip + ':')
        self.ts('epi')
        self.p2_issue()

    RING, XR = 64, 192
    vHT, vH8, vH9, vH10, vP = 243, 244, 245, 246, 247

    def hload(self, j, tp):
        base = self.RING + 16 * (j % 8) + 4 * tp
        kind, off = self.step_off(j)
        if j < 8:
            va, o = (vHB_ if kind == 'b' else vHA), off * 1024
        elif j < 11:
            va, o = {8: self.vH8, 9: self.vH9, 10: self.vH10}[j], 0
        else:
            va, o = self.vHT, off * 1024
        return 'buffer_load_dwordx4 %s, %s, %s, %s offen offset:%d %s' % (vr(base, 4), vr(va), srd(WS_), sr(sHB + tp), o, OPT['hld'])

    def p2_issue(self):
        b = self.b
        self.flags_check()
        for cp in range(4):
            b('buffer_load_dwordx2 %s, %s, %s, 0 offen offset:%d' % (vr(self.XR + 2 * cp, 2), vr(vXR), srd(X_), 32 * cp), tag='res')
        for j in range(8):
            for tp in TPO:
                b(self.hload(j, tp), tag='h%d_%d' % (j, tp))
        self.ts('ring')

    def verify_items(self, j, role):
        b = self.b
        base = self.RING + 16 * (j % 8)
        t = 248
        slow, back = 'L_slow_%s_%d' % (role, j), 'L_back_%s_%d' % (role, j)

        def p1():
            b('v_max3_u32 %s, %s, %s, %s' % (vr(t), vr(base), vr(base + 4), vr(base + 8)))

        def p2():
            b('v_max_u32 %s, %s, %s' % (vr(t), vr(t), vr(base + 12)))

        def p3():
            b('v_cmp_eq_u32 vcc, -1, %s' % vr(t))
            b('s_cbranch_vccnz %s' % slow)
            snap = [e['tag'] for e in b.vmq]
            b(back + ':')
            self.slow.append((j, slow, back, snap))
        return [blk(p1, 1), blk(p2, 1), blk(p3, 2)]

    def emit_slow(self):
        b = self.b
        for j, slow, back, snap in self.slow:
            b.vmq, b.lgq, b.smem_pending = [], [], []
            base = self.RING + 16 * (j % 8)
            end = 4 if j < 4 else 8 if j < 8 else 11 if j < 11 else 15
            mask = sum(1 << i for i in range(4 * j, 4 * end))
            again, ready = slow + '_a', slow + '_r'
            b('s_nop 0')
            b(slow + ':')
            b('s_mov_b32 %s, 0' % sr(sCNT))
            b(again + ':')
            b('buffer_load_dword %s, %s, %s, 0 offen sc1' % (vr(self.vP), vr(vPO), srd(WS_)))
            b('s_waitcnt vmcnt(0)')
            b('v_cmp_eq_u32 vcc, -1, %s' % vr(self.vP))
            b('s_and_b32 s54, vcc_lo, 0x%x' % (mask & 0xffffffff))
            b('s_and_b32 s55, vcc_hi, 0x%x' % (mask >> 32))
            b('s_or_b32 s54, s54, s55')
            b('s_cbranch_scc0 %s' % ready)
            b('s_add_u32 %s, %s, 1' % (sr(sCNT), sr(sCNT)))
            b('s_cmp_lt_u32 %s, %d' % (sr(sCNT), OPT['poll_limit']))
            b('s_cbranch_scc1 %s' % again)
            b(ready + ':')
            b.begin_region()
            for tp in TPO:
                b(self.hload(j, tp))
            for tag in snap:
                if tag and tag.startswith('h') and '_' in tag and tag[1].isdigit():
                    jj, tp = tag[1:].split('_')
                    b(self.hload(int(jj), int(tp)))
                else:
                    b('buffer_load_dword %s, off, %s, 0' % (vr(249), srd(WS_)))
            b.end_region()
            b.vmq = []
            b('s_waitcnt vmcnt(%d)' % min(len(snap), 63))
            b('v_max3_u32 %s, %s, %s, %s' % (vr(248), vr(base), vr(base + 4), vr(base + 8)))
            b('v_max_u32 %s, %s, %s' % (vr(248), vr(248), vr(base + 12)))
            b('v_cmp_eq_u32 vcc, -1, %s' % vr(248))
            b('s_cbranch_vccz %s' % back)
            b('s_add_u32 %s, %s, 1' % (sr(sCNT), sr(sCNT)))
            b('s_cmp_lt_u32 %s, %d' % (sr(sCNT), OPT['poll_limit']))
            b('s_cbranch_scc1 %s' % again)
            b('s_branch %s' % back)
        self.slow = []

    def phase2(self, role):
        b = self.b
        RING, XR = self.RING, self.XR
        for it in self.verify_items(0, role):
            it()
        self.ts('ver0')
        tr = self.w2_tr(3) + self.w2_tr(4) + self.w2_tr(5)
        for j in range(15):
            base = RING + 16 * (j % 8)
            self.ts('p%d' % j)
            mf = []
            for tp in TPO:
                for cp in range(4):
                    acc = 16 * tp + 4 * cp
                    cin = vr(acc, 4) if (j > 0 or tp == 0) else '0'
                    mf.append('%s %s, %s, %s, %s' % (MF, vr(acc, 4), ar(16 * j + 4 * cp, 4), vr(base + 4 * tp, 4), cin))
            G = 16
            slots = [[] for _ in range(G)]
            if j == 0:
                adr = ['v_add_u32 %s, 0x1000, %s' % (vr(self.vH8), vr(vHA)),
                       'v_add_u32 %s, 0x1000, %s' % (vr(self.vH10), vr(vHB_)),
                       's_cmp_eq_u32 %s, 3' % sr(sW),
                       's_cselect_b32 s54, %d, 1024' % OOB,
                       'v_add_u32 %s, s54, %s' % (vr(self.vH9), vr(self.vH8)),
                       's_lshl_b32 s54, %s, 12' % sr(sW),
                       's_add_u32 s54, s54, %d' % (43 * 1024),
                       'v_add_u32 %s, s54, %s' % (vr(self.vHT), vr(vL16))]
                slots[0] += [one(adr[0])]
                res = []
                for cp in range(4):
                    for h in range(2):
                        x = XR + 2 * cp + h
                        res.append(one('v_lshlrev_b32 %s, 16, %s' % (vr(4 * cp + 2 * h), vr(x))))
                        res.append(one('v_and_b32 %s, 0xffff0000, %s' % (vr(4 * cp + 2 * h + 1), vr(x))))
                k = 0
                for g in (0, 1, 1, 2, 2, 4, 4, 5, 5, 6, 6, 8, 8, 9, 9, 10):
                    slots[g].append(res[k])
                    k += 1
                slots[12] += [one(adr[1]), one(adr[2]) + one(adr[3]) + one(adr[4])]
                slots[13] += [one(adr[5]) + one(adr[6]) + one(adr[7])]
            if j + 8 < 15:
                for i, tp in enumerate(TPO):
                    slots[4 * i + 3].append(one(self.hload(j + 8, tp), 'h%d_%d' % (j + 8, tp)))
            if 1 <= j <= 10:
                mine, tr = tr[:6], tr[6:]
                for g, it in zip((0, 1, 2, 4, 5, 6), mine):
                    slots[g].append(it)
            if j < 14:
                v = self.verify_items(j + 1, role)
                slots[12].insert(0, v[0])
                slots[13].insert(0, v[1])
                slots[14].insert(0, v[2])
            for i, m in enumerate(mf):
                b(m)
                for it in slots[i]:
                    self.emit(it)
        assert not tr
        self.ts('p2loop')
        vRR = T + 13
        FL = T + 8
        b('v_add_u32 %s, %s, %s' % (vr(vRR), sr(sW2L), vr(vL16)))
        b('v_add_u32 %s, %d, %s' % (vr(vRR + 1), 2 * SLOT, vr(vRR)))
        for tp in range(1, 4):
            for cp in range(4):
                if tp < 3:
                    b('ds_write_b128 %s, %s offset:%d' % (vr(vRR), vr(16 * tp + 4 * cp, 4), (tp - 1) * SLOT + cp * 1024), tag='rw')
                else:
                    b('ds_write_b128 %s, %s offset:%d' % (vr(vRR + 1), vr(16 * tp + 4 * cp, 4), cp * 1024), tag='rw')
        for tp in range(1, 4):
            b('s_sub_u32 s54, %s, %d' % (sr(sW), tp))
            b('s_and_b32 s54, s54, 3')
            b('s_mul_i32 s54, s54, %d' % REG)
            b('s_add_u32 s54, s54, %d' % (SLOT0 + (tp - 1) * SLOT))
            b('v_add_u32 %s, s54, %s' % (vr(FL + tp), vr(vL16)))
        b.wait_lg('rw')
        b('s_barrier')
        RD = 64
        for tp in range(1, 4):
            for cp in range(4):
                b('ds_read_b128 %s, %s offset:%d' % (vr(RD + 16 * (tp - 1) + 4 * cp, 4), vr(FL + tp), cp * 1024), tag='rr')
        for tp in range(1, 4):
            for cp in range(4):
                for h in range(2):
                    r = 4 * cp + 2 * h
                    b('v_pk_add_f32 %s, %s, %s' % (vr(r, 2), vr(r, 2), vr(RD + 16 * (tp - 1) + r, 2)))
        PK = 16
        for cp in range(4):
            for h in range(2):
                b('v_cvt_pk_bf16_f32 %s, %s, %s' % (vr(PK + 2 * cp + h), vr(4 * cp + 2 * h), vr(4 * cp + 2 * h + 1)))
        for pr in range(2):
            p0, p1 = PK + 4 * pr, PK + 4 * pr + 2
            b('v_permlane16_swap_b32 %s, %s' % (vr(p0), vr(p1)))
            b('v_permlane16_swap_b32 %s, %s' % (vr(p0 + 1), vr(p1 + 1)))
        for pr in range(2):
            p0 = PK + 4 * pr
            b('buffer_store_dwordx4 %s, %s, %s, 0 offen offset:%d' % (vr(p0, 4), vr(vO), srd(OUT_), 64 * pr), tag='out')
        if OPT['stamps']:
            self.ts('end')
            n = len(OPT['stamps'].split(','))
            b('s_lshl_b32 s54, s2, 2')
            b('s_add_u32 s54, s54, %s' % sr(sW))
            b('s_lshl_b32 s54, s54, 7')
            b('s_add_u32 s54, s54, %d' % WS_FINE)
            b('s_mov_b32 s14, %d' % (WS_FINE + (1 << 20)))
            b('s_mov_b64 exec, 1')
            b('s_waitcnt lgkmcnt(0)')
            for i in range(n):
                b('v_mov_b32 %s, %s' % (vr(32 + i), sr(sTS + (2 if OPT['fst'] else 1) * i)))
                b('buffer_store_dword %s, off, %s, s54 offset:%d' % (vr(32 + i), srd(WS_), 4 * i))
            b('s_mov_b64 exec, -1')
        b('s_endpgm')

    def kernel(self):
        b = self.b
        self.prologue()
        b('s_cmp_lg_u32 %s, 0' % sr(sROLE))
        b('s_cbranch_scc1 L_mlp')
        st = self.save()
        for att, role in ((True, 'a'), (False, 'm')):
            if not att:
                b('L_mlp:')
                self.restore(st)
                b('s_nop 7')
            b.comment('attention workgroups' if att else 'MLP workgroups')
            self.role_prologue(att)
            self.main_loop(att)
            self.ts('loop')
            if att:
                self.att_epilogue()
            else:
                self.mlp_epilogue()
            self.phase2(role)
            self.emit_slow()
        b('L_end:')
        b('s_endpgm')
        b.finalize()
        return b.text()


HEADER = '''; LayerNorm + (dilated sliding-window attention || ReLU MLP) + residual, one persistent launch.
; @launch grid=(256,1,1) block=(256,1,1) lds=%d
.amdgcn_target "amdgcn-amd-amdhsa--gfx950"
.text
.globl %s_kernel
.p2align 8
.type %s_kernel,@function
%s_kernel:
'''
FOOTER = '''.section .rodata,"a"
.p2align 6
.amdhsa_kernel %s_kernel
  .amdhsa_next_free_vgpr 512
  .amdhsa_next_free_sgpr 102
  .amdhsa_accum_offset 256
  .amdhsa_group_segment_fixed_size 0
  .amdhsa_kernarg_size 72
  .amdhsa_user_sgpr_count 2
  .amdhsa_user_sgpr_kernarg_segment_ptr 1
  .amdhsa_system_sgpr_workgroup_id_x 1
.end_amdhsa_kernel
'''


def build(**opt):
    OPT.update(opt)
    g = Gen()
    body = g.kernel()
    extra = '; stamps: %s\n' % OPT['stamps'] if OPT['stamps'] else ''
    return extra + HEADER % (LDS_BYTES, NAME, NAME, NAME) + body + FOOTER % NAME


if __name__ == '__main__':
    out = sys.argv[1] if len(sys.argv) > 1 else 'k2.s'
    opt = {}
    for a in sys.argv[2:]:
        k, v = a.split('=')
        opt[k] = v if k in ('stamps', 'poison', 'hld', 'hstf') else tuple(int(x) for x in v.split(',')) if k == 'pfu' else int(v)
    open(out, 'w').write(build(**opt))
    print('wrote', out)
```

```python
import copy
import sys
from asmb import Builder

NAME = 'parallel_sum__sliding_local_dilated__dense_activation_relu__prompt'

OPT = dict(hld='sc1', hstf='sc1', pfu=(4, 6, 8), fst=0, poll_limit=4000, stamps='', abl=0, poison='even', pf=0, bg_att=4, bg_mlp=3, verbose=0)
WS_FINE = 8 << 20

SLOT0, SLOT, WOFF = 1024, 43008, 18432
REG = 10752
ST = 132096
STR = 576
OX = 134144
SX = 150528
LDS_BYTES = 163840

WS_STATS, WS_D, H_OFF = 0, 32768, 131072
NKS = 59
WS_BYTES = H_OFF + 128 * NKS * 1024
OOB = 0x40000000

X_, W_, WS_, DBG_, W2_, WO_, OUT_ = 4, 8, 12, 16, 20, 24, 28
sW, sRB, sGRP, sROLE = 32, 33, 34, 35
sWOFF = 36
sW2A, sW2B, sW2C, sWOB, sFLC = 36, 37, 38, 39, 41
sXOFF, sXL, sWL, sHL, sWSTEP, sC = 42, 43, 44, 45, 46, 47
sW2L = 44
sHM = 48
sHST, sFL, sU = 50, 51, 53
sNON = 58
sP, sC0, sC1, sZ = 60, 62, 64, 66
sRT, sCT = 68, 69
sHB = 70
sPS, sCNT = 74, 75
sTS = 76
sTH, sNP = 100, 101


def srd(n):
    return 's[%d:%d]' % (n, n + 3)


def vr(a, n=1):
    return 'v%d' % a if n == 1 else 'v[%d:%d]' % (a, a + n - 1)


def ar(a, n=1):
    return 'a%d' % a if n == 1 else 'a[%d:%d]' % (a, a + n - 1)


def sr(a, n=1):
    return 's%d' % a if n == 1 else 's[%d:%d]' % (a, a + n - 1)


vONES = 212
vXA, vXB, vWA, vWB = 216, 217, 218, 219
vDX = 220
vDH, vDW = 224, 225
vSO, vG, vGL = 226, 227, 238
vGR = 228
vLD = 232
vNON = 236
vL = 239
T = 240
vL16 = 240
vHA, vHB_, vFA = 241, 242, 243
vROW = 244
vXR, vPO, vO = 226, 236, 237
vTB2, vTB01 = 228, 232
vFLG = 222
aPOIS = 252

MF = 'v_mfma_f32_16x16x32_bf16'
MF16 = 'v_mfma_f32_16x16x16_bf16'
TPO = [1, 2, 3, 0]


def one(t, tag=None):
    return [(t, tag)]


def size_of(it):
    if callable(it):
        return getattr(it, 'size', 2)
    return len(it)


def blk(fn, size=2):
    def w():
        fn()
    w.size = size
    return w


class Gen:
    def __init__(self):
        self.b = Builder()
        self.slow = []

    def ts(self, name):
        names = OPT['stamps'].split(',') if OPT['stamps'] else []
        if name + '@' in names and OPT['fst']:
            from asmb import Ins
            k = sTS + 2 * names.index(name + '@')
            i = Ins('s_memtime s[%d:%d]' % (k, k + 1), region=self.b.region)
            i.w = []
            self.b.ins.append(i)
        if name not in names:
            return
        b = self.b
        if OPT['fst']:
            from asmb import Ins
            k = sTS + 2 * names.index(name)
            i = Ins('%s s[%d:%d]' % ('s_memtime' if OPT['fst'] == 2 else 's_memrealtime', k, k + 1), region=b.region)
            i.w = []
            b.ins.append(i)
            return
        b.wait_lg()
        b('s_memrealtime s[98:99]')
        b('s_waitcnt lgkmcnt(0)')
        b('s_mov_b32 %s, s98' % sr(sTS + names.index(name)))

    def save(self):
        b = self.b
        return copy.deepcopy((b.vmq, b.lgq, b.smem_pending))

    def restore(self, st):
        b = self.b
        b.vmq, b.lgq, b.smem_pending = copy.deepcopy(st)

    def emit(self, it):
        if callable(it):
            it()
        else:
            for t, tag in it:
                self.b(t, tag=tag)

    def schedule(self, mf, streams, G, name=''):
        slots = [[] for _ in range(G)]
        load = [0] * G
        for st in streams:
            items = st['items']
            if not items:
                continue
            lo, hi = st.get('lo', 0), min(st.get('hi', G - 1), G - 1)
            mind = st.get('mind', 0)
            n = len(items)
            prev = lo - mind
            for i, it in enumerate(items):
                sz = size_of(it)
                tgt = lo + int((i + st.get('ph', 0.5)) * (hi - lo + 1) / n)
                g0 = max(prev + mind, lo)
                cands = sorted(range(min(g0, G - 1), G), key=lambda g: (abs(g - tgt), g))
                pick = None
                for cap in (2, 3, 4, 99):
                    for g in cands:
                        if abs(g - tgt) > 3 and cap < 99 and g > tgt:
                            continue
                        if g < tgt - 1 and cap < 99:
                            continue
                        if load[g] + sz <= cap or (load[g] == 0 and sz > cap and cap == 2):
                            pick = g
                            break
                    if pick is not None:
                        break
                slots[pick].append(it)
                load[pick] += sz
                prev = pick
        if OPT['verbose']:
            print('%-8s' % name, ''.join(str(min(x, 9)) for x in load), sum(load), file=sys.stderr)
        for i, m in enumerate(mf):
            if callable(m):
                m()
            else:
                self.b(m)
            if i < G:
                for it in slots[i]:
                    self.emit(it)

    def poll_loop(self, load_text, check, name):
        b = self.b
        ok = b.label_name(name + '_ok')
        again = b.label_name(name + '_again')
        check()
        b('s_cbranch_scc1 %s' % ok)
        b.begin_region()
        b('s_mov_b32 %s, 0' % sr(sCNT))
        b(again + ':')
        b('s_sleep 1')
        b(load_text)
        b('s_waitcnt vmcnt(0)')
        check()
        b('s_cbranch_scc1 %s' % ok)
        b('s_add_u32 %s, %s, 1' % (sr(sCNT), sr(sCNT)))
        b('s_cmp_lt_u32 %s, %d' % (sr(sCNT), OPT['poll_limit']))
        b('s_cbranch_scc1 %s' % again)
        b.end_region()
        b(ok + ':')

    def prologue(self):
        b = self.b
        b('s_cmp_ge_u32 s2, 256')
        b('s_cbranch_scc1 L_end')
        b('s_lshr_b32 %s, s2, 4' % sr(sROLE))
        b('s_and_b32 %s, %s, 1' % (sr(sROLE), sr(sROLE)))
        b('s_cmp_eq_u32 %s, 0' % sr(sROLE))
        b('s_cselect_b32 s3, 8, 32')
        b('s_load_dwordx2 s[4:5], s[0:1], 0')
        b('s_load_dwordx2 s[8:9], s[0:1], s3')
        b('s_load_dwordx2 s[12:13], s[0:1], 64')
        b('s_load_dwordx2 s[16:17], s[0:1], 56')
        b('s_load_dwordx2 s[20:21], s[0:1], 40')
        b('s_load_dwordx2 s[24:25], s[0:1], 16')
        b('s_load_dwordx2 s[28:29], s[0:1], 48')
        b('s_memrealtime %s' % sr(sNON, 2))
        vl, L3, L7, g, n, a, c = vL, 1, 2, 3, 4, 5, 6
        self.pv = dict(l=vl, L3=L3, L7=L7, g=g, n=n, a=a, c=c)
        b('v_and_b32 %s, 63, v0' % vr(vl))
        b('v_lshrrev_b32 %s, 6, v0' % vr(a))
        b('v_lshrrev_b32 %s, 3, %s' % (vr(L3), vr(vl)))
        b('v_readfirstlane_b32 %s, %s' % (sr(sW), vr(a)))
        b('v_and_b32 %s, 7, %s' % (vr(L7), vr(vl)))
        b('v_lshrrev_b32 %s, 4, %s' % (vr(g), vr(vl)))
        b('v_and_b32 %s, 15, %s' % (vr(n), vr(vl)))
        b('s_mov_b32 s6, 0x200000')
        b('s_mov_b32 s7, 0x20000')
        b('s_cmp_eq_u32 %s, 0' % sr(sROLE))
        b('s_mov_b32 s10, %d' % (512 * 2752))
        b('s_cselect_b32 s10, %d, s10' % (512 * 3072))
        b('s_mov_b32 s11, 0x20000')
        b('s_and_b32 s54, s2, 7')
        b('s_lshr_b32 s55, s2, 3')
        b('s_and_b32 s56, s54, 1')
        b('s_lshl_b32 s56, s56, 3')
        b('s_lshr_b32 s57, s55, 2')
        b('s_add_u32 %s, s56, s57' % sr(sRB))
        b('s_and_b32 s56, s54, 6')
        b('s_and_b32 s57, s55, 1')
        b('s_add_u32 %s, s56, s57' % sr(sGRP))
        b('s_lshl_b32 s56, s54, 2')
        b('s_lshr_b32 s57, s55, 3')
        b('s_add_u32 %s, s56, s57' % sr(sRT))
        b('s_and_b32 %s, s55, 7' % sr(sCT))
        b('s_lshr_b32 s54, %s, 1' % sr(sGRP))
        b('s_mul_i32 s54, s54, 11')
        b('s_and_b32 s55, %s, 1' % sr(sGRP))
        b('s_mul_i32 s56, s55, 6')
        b('s_add_u32 s54, s54, s56')
        b('s_cmp_eq_u32 %s, 7' % sr(sGRP))
        b('s_subb_u32 %s, s54, 0' % sr(sPS))
        b('s_cmp_eq_u32 %s, 6' % sr(sGRP))
        b('s_cselect_b32 s56, 1, s55')
        b('s_sub_u32 %s, 6, s56' % sr(sNP))
        b('s_lshl_b32 s54, %s, 7' % sr(sRB))
        b('s_lshl_b32 s55, %s, 5' % sr(sW))
        b('s_add_u32 s55, s55, s54')
        b('v_add_u32 %s, s55, %s' % (vr(a), vr(L3)))
        b('v_xor_b32 %s, %s, %s' % (vr(c), vr(L7), vr(g)))
        b('v_lshlrev_b32 %s, 4, %s' % (vr(c), vr(c)))
        b('v_lshl_add_u32 %s, %s, 10, %s' % (vr(vDX), vr(a), vr(c)))
        b('v_add_u32 %s, 0x2000, %s' % (vr(vDX + 1), vr(vDX)))
        b('v_xor_b32 %s, 64, %s' % (vr(vDX + 1), vr(vDX + 1)))
        b('v_add_u32 %s, 0x4000, %s' % (vr(vDX + 2), vr(vDX)))
        b('v_add_u32 %s, 0x4000, %s' % (vr(vDX + 3), vr(vDX + 1)))
        b('s_and_b32 s55, %s, 1' % sr(sW))
        b('s_lshl_b32 s55, s55, 4')
        b('s_lshr_b32 s56, %s, 1' % sr(sW))
        b('s_lshl_b32 s56, s56, 2')
        b('s_add_u32 s55, s55, s56')
        b('v_lshrrev_b32 %s, 5, %s' % (vr(a), vr(vl)))
        b('v_lshlrev_b32 %s, 3, %s' % (vr(a), vr(a)))
        b('v_and_b32 %s, 3, %s' % (vr(c), vr(L3)))
        b('v_add3_u32 %s, %s, %s, s55' % (vr(a), vr(a), vr(c)))
        b('v_lshlrev_b32 %s, 1, %s' % (vr(c), vr(g)))
        b('v_xor_b32 %s, %s, %s' % (vr(c), vr(L7), vr(c)))
        b('v_lshlrev_b32 %s, 4, %s' % (vr(c), vr(c)))
        b('s_cmp_eq_u32 %s, 0' % sr(sROLE))
        b('s_mov_b32 s56, 2752')
        b('s_cselect_b32 s56, 3072, s56')
        b('s_lshl_b32 s57, %s, 7' % sr(sGRP))
        b('s_lshl_b32 s52, %s, 6' % sr(sPS))
        b('s_cmp_eq_u32 %s, 0' % sr(sROLE))
        b('s_cselect_b32 s57, s57, s52')
        b('s_mov_b32 s55, 128')
        b('s_cselect_b32 s55, 1024, s55')
        b('v_add_u32 %s, s57, %s' % (vr(c), vr(c)))
        b('v_mad_u32_u24 %s, %s, s56, %s' % (vr(vDW), vr(a), vr(c)))
        b('s_mov_b32 s36, 0')
        b('s_mov_b32 s37, s55')
        b('s_lshl_b32 s38, s55, 1')
        b('s_lshl_b32 s39, s56, 5')
        b('s_add_u32 s40, s39, s37')
        b('s_add_u32 s41, s39, s38')
        b('s_lshl_b32 %s, s56, 6' % sr(sWSTEP))
        b('s_mov_b32 %s, 0' % sr(sXOFF))
        b('s_lshl_b32 s54, %s, 12' % sr(sW))
        b('s_add_u32 %s, s54, %d' % (sr(sXL), SLOT0 + 2048))
        b('s_mul_i32 s54, %s, 6144' % sr(sW))
        b('s_add_u32 %s, s54, %d' % (sr(sWL), SLOT0 + WOFF))

    def halo_setup(self):
        b = self.b
        pv = self.pv
        L3, L7, g, a, c = (pv[k] for k in ('L3', 'L7', 'g', 'a', 'c'))
        b('s_lshl_b32 s54, %s, 9' % sr(sW))
        b('s_add_u32 %s, s54, %d' % (sr(sHL), SLOT0))
        b('s_lshl_b32 s54, %s, 7' % sr(sRB))
        b('s_lshl_b32 s55, %s, 2' % sr(sW))
        b('s_add_u32 s55, s55, s54')
        b('s_sub_u32 s55, s55, 16')
        b('v_add_u32 %s, s55, %s' % (vr(a), vr(L3)))
        b('v_max_i32 %s, 0, %s' % (vr(a), vr(a)))
        b('s_lshl_b32 s56, %s, 1' % sr(sW))
        b('v_add_u32 %s, s56, %s' % (vr(c), vr(g)))
        b('v_xor_b32 %s, %s, %s' % (vr(c), vr(L7), vr(c)))
        b('v_and_b32 %s, 7, %s' % (vr(c), vr(c)))
        b('v_lshlrev_b32 %s, 4, %s' % (vr(c), vr(c)))
        b('v_lshl_add_u32 %s, %s, 10, %s' % (vr(vDH), vr(a), vr(c)))
        b('s_cmp_eq_u32 %s, 0' % sr(sW))
        b('s_cselect_b32 %s, 0xffffff00, -1' % sr(sHM))
        b('s_mov_b32 %s, 0' % sr(sHM + 1))

    def srd_rest(self):
        return ['s_mov_b32 s14, %d' % WS_BYTES, 's_mov_b32 s15, 0x20000',
                's_mov_b32 s18, 256', 's_mov_b32 s19, 0x20000',
                's_mov_b32 s22, %d' % (1376 * 1024), 's_mov_b32 s23, 0x20000',
                's_mov_b32 s26, %d' % (512 * 1024), 's_mov_b32 s27, 0x20000',
                's_mov_b32 s30, 0x200000', 's_mov_b32 s31, 0x20000']

    def dma_items(self, att, s):
        slot = SLOT * (s % 3)
        tag = 'st%d' % s
        items = []
        for j in range(4):
            items.append((one('s_add_u32 m0, %s, %d' % (sr(sXL), slot + j * 1024)),
                          one('buffer_load_dwordx4 %s, %s, %s offen lds' % (vr(vDX + j), srd(X_), sr(sXOFF)), tag)))
        if att:
            items.append((one('s_add_u32 m0, %s, %d' % (sr(sHL), slot)),
                          [('s_mov_b64 exec, %s' % sr(sHM, 2), None),
                           ('buffer_load_dwordx4 %s, %s, %s offen lds' % (vr(vDH), srd(X_), sr(sXOFF)), tag),
                           ('s_mov_b64 exec, -1', None)]))
        for bb in range(2):
            for p in range(3):
                items.append((one('s_add_u32 m0, %s, %d' % (sr(sWL), slot + (3 * bb + p) * 1024)),
                              one('buffer_load_dwordx4 %s, %s, %s offen lds' % (vr(vDW), srd(W_), sr(sWOFF + 3 * bb + p)), tag)))
        tail = [one('v_add_u32 %s, %s, %s' % (vr(vDW), sr(sWSTEP), vr(vDW))),
                one('s_add_u32 %s, %s, 128' % (sr(sXOFF), sr(sXOFF)))]
        return items, tail

    def dma_half(self, att, s, half):
        items, tail = self.dma_items(att, s)
        k = len(items) - 5
        part = items[:k] if half == 0 else items[k:]
        out = []
        for pre, ld in part:
            out += [pre, ld]
        if half == 1:
            out += tail
        return out

    def stats_items(self):
        t = 252
        s0, s1, q0, q1 = t, t + 1, t + 2, t + 3
        o = []
        for i in range(8):
            x = vr(vROW + i)
            sa = vr(s0 if i % 2 == 0 else s1)
            qa = vr(q0 if i % 2 == 0 else q1)
            o.append('v_dot2_f32_bf16 %s, %s, %s, %s' % (sa, x, vr(vONES), sa if i >= 2 else '0'))
            o.append('v_dot2_f32_bf16 %s, %s, %s, %s' % (qa, x, x, qa if i >= 2 else '0'))
        o.append('v_add_f32 %s, %s, %s' % (vr(s0), vr(s0), vr(s1)))
        o.append('v_add_f32 %s, %s, %s' % (vr(q0), vr(q0), vr(q1)))
        for sh in (8, 4, 2, 1):
            o.append('v_add_f32_dpp %s, %s, %s row_ror:%d row_mask:0xf bank_mask:0xf' % (vr(s0), vr(s0), vr(s0), sh))
            o.append('v_add_f32_dpp %s, %s, %s row_ror:%d row_mask:0xf bank_mask:0xf' % (vr(q0), vr(q0), vr(q0), sh))
        o.append('v_mov_b32 %s, %s' % (vr(s1), vr(s0)))
        o.append('v_mov_b32 %s, %s' % (vr(q1), vr(q0)))
        o.append('v_permlane16_swap_b32 %s, %s' % (vr(s0), vr(s1)))
        o.append('v_permlane16_swap_b32 %s, %s' % (vr(q0), vr(q1)))
        o.append('v_add_f32 %s, %s, %s' % (vr(s0), vr(s0), vr(s1)))
        o.append('v_add_f32 %s, %s, %s' % (vr(q0), vr(q0), vr(q1)))
        o.append('v_mul_f32 %s, 0xbb000000, %s' % (vr(vGR), vr(s0)))
        o.append('v_mul_f32 %s, 0x3b000000, %s' % (vr(q0), vr(q0)))
        o.append('v_fma_f32 %s, -%s, %s, %s' % (vr(q0), vr(vGR), vr(vGR), vr(q0)))
        o.append('v_max_f32 %s, 0, %s' % (vr(q0), vr(q0)))
        o.append('v_add_f32 %s, 0x3727c5ac, %s' % (vr(q0), vr(q0)))
        o.append('v_rsq_f32 %s, %s' % (vr(vGR + 1), vr(q0)))
        return [one(x) for x in o]

    def nonce_text(self):
        return 'buffer_load_dwordx2 %s, off, %s, 0 sc1' % (vr(vNON, 2), srd(DBG_))

    def nonce_and_stats_store(self):
        b = self.b

        def check():
            b('v_readfirstlane_b32 %s, %s' % (sr(sNON), vr(vNON)))
            b('v_readfirstlane_b32 %s, %s' % (sr(sNON + 1), vr(vNON + 1)))
            b('s_cmp_lg_u32 %s, 0' % sr(sNON))
        self.poll_loop(self.nonce_text(), check, 'L_non')
        b('v_mov_b32 %s, %s' % (vr(vGR + 2), sr(sNON)))
        b('v_mov_b32 %s, %s' % (vr(vGR + 3), sr(sNON + 1)))
        b('s_mov_b32 exec_lo, 1')
        b('s_mov_b32 exec_hi, 1')
        b('buffer_store_dwordx4 %s, %s, %s, 0 offen sc1' % (vr(vGR, 4), vr(vSO), srd(WS_)), tag='sst')
        b('s_mov_b64 exec, -1')

    def gather_text(self):
        return 'buffer_load_dwordx4 %s, %s, %s, 0 offen sc1' % (vr(vLD, 4), vr(vG), srd(WS_))

    def gather_check(self):
        b = self.b

        def check():
            b('v_cmp_ne_u32 vcc, %s, %s' % (sr(sNON), vr(vLD + 2)))
            b('v_cmp_ne_u32 %s, %s, %s' % (sr(sZ, 2), sr(sNON + 1), vr(vLD + 3)))
            b('s_or_b64 vcc, vcc, %s' % sr(sZ, 2))
            b('s_cmp_eq_u64 vcc, 0')
        self.poll_loop(self.gather_text(), check, 'L_gat')
        b('ds_write_b32 %s, %s' % (vr(vGL), vr(vLD)), tag='stw')
        b('ds_write_b32 %s, %s offset:%d' % (vr(vGL), vr(vLD + 1), STR), tag='stw')

    def poison_items(self, att):
        out = []
        tmp = 56
        if att:
            for i in range(4):
                out.append([('s_add_u32 %s, %s, %d' % (sr(tmp), sr(sHST), i * NKS * 1024), None),
                            ('buffer_store_dwordx4 %s, %s, %s, %s offen sc1' % (ar(aPOIS, 4), vr(vL16), srd(WS_), sr(tmp)), 'poison')])
        else:
            for p in range(3):
                if p == 2:
                    out.append([('s_lshr_b32 s57, %s, 1' % sr(sW), None),
                                ('s_add_u32 s57, s57, 4', None),
                                ('s_cmp_ge_u32 s57, %s' % sr(sNP), None),
                                ('s_cselect_b32 s57, %d, %s' % (OOB, sr(sHST)), None)])
                for t in range(4):
                    base = 57 if p == 2 else sHST
                    out.append([('s_add_u32 %s, %s, %d' % (sr(tmp), sr(base), t * NKS * 1024 + p * 2048), None),
                                ('buffer_store_dwordx4 %s, %s, %s, %s offen sc1' % (ar(aPOIS, 4), vr(vL16), srd(WS_), sr(tmp)), 'poison')])
        return out

    def flag_store(self):
        b = self.b
        b.wait_vm('poison')
        b('v_mov_b32 %s, %s' % (vr(vLD), sr(sNON)))
        b('v_mov_b32 %s, %s' % (vr(vLD + 1), sr(sNON + 1)))
        b('s_mov_b64 exec, 1')
        b('buffer_store_dwordx2 %s, off, %s, %s sc1' % (vr(vLD, 2), srd(WS_), sr(sFL)), tag='flag')
        b('s_mov_b64 exec, -1')

    def setup_items(self, att):
        pv = self.pv
        l, L3, L7, g, n, a, c = (pv[k] for k in ('l', 'L3', 'L7', 'g', 'n', 'a', 'c'))
        d = 7
        o = []
        A = o.append
        A('s_lshl_b32 s54, %s, 7' % sr(sRB))
        A('s_lshl_b32 s55, %s, 3' % sr(sROLE))
        A('s_add_u32 s55, s55, %s' % sr(sGRP))
        A('s_lshl_b32 s55, s55, 3')
        A('s_add_u32 s55, s55, s54')
        A('s_lshl_b32 s56, %s, 1' % sr(sW))
        A('s_add_u32 s55, s55, s56')
        A('v_lshrrev_b32 %s, 5, %s' % (vr(a), vr(l)))
        A('v_add_u32 %s, s55, %s' % (vr(a), vr(a)))
        A('v_lshlrev_b32 %s, 4, %s' % (vr(vSO), vr(a)))
        A('v_and_b32 %s, 31, %s' % (vr(c), vr(l)))
        A('v_lshlrev_b32 %s, 4, %s' % (vr(c), vr(c)))
        A('v_lshl_add_u32 %s, %s, 10, %s' % (vr(11), vr(a), vr(c)))
        A(('buffer_load_dwordx4 %s, %s, %s, 0 offen' % (vr(vROW, 4), vr(11), srd(X_)), 'srow'))
        A(('buffer_load_dwordx4 %s, %s, %s, 0 offen offset:512' % (vr(vROW + 4, 4), vr(11), srd(X_)), 'srow'))
        first = len(o)
        A('v_lshlrev_b32 %s, 4, %s' % (vr(vL16), vr(l)))
        for i in range(4):
            A('v_mov_b32 %s, 0x3f803f80' % vr(vONES + i))
        if att:
            A('v_add_u32 %s, %d, %s' % (vr(a), 2 * SLOT, vr(vL16)))
            A([('s_mov_b64 exec, 0xff', None),
               ('ds_write_b128 %s, %s offset:%d' % (vr(vL16), vr(vONES, 4), SLOT0), 'ones'),
               ('ds_write_b128 %s, %s offset:%d' % (vr(vL16), vr(vONES, 4), SLOT0 + SLOT), 'ones'),
               ('ds_write_b128 %s, %s offset:%d' % (vr(a), vr(vONES, 4), SLOT0), 'ones'),
               ('s_mov_b64 exec, -1', None)])
        A('v_lshrrev_b32 %s, 1, %s' % (vr(a), vr(n)))
        A('v_xor_b32 %s, %s, %s' % (vr(a), vr(a), vr(g)))
        A('v_lshlrev_b32 %s, 4, %s' % (vr(a), vr(a)))
        A('v_lshl_add_u32 %s, %s, 7, %s' % (vr(a), vr(n), vr(a)))
        if att:
            A('v_add_u32 %s, %d, %s' % (vr(vXA), SLOT0, vr(a)))
        else:
            A('s_and_b32 %s, %s, 1' % (sr(sTH), sr(sW)))
            A('s_lshl_b32 s54, %s, 13' % sr(sTH))
            A('s_add_u32 s54, s54, %d' % (SLOT0 + 2048))
            A('v_add_u32 %s, s54, %s' % (vr(vXA), vr(a)))
        A('v_xor_b32 %s, 64, %s' % (vr(vXB), vr(vXA)))
        r_, cc = d, d + 1
        A('v_bfe_u32 %s, %s, 2, 2' % (vr(r_), vr(l)))
        A('v_and_b32 %s, 3, %s' % (vr(cc), vr(l)))
        A('v_and_b32 %s, 1, %s' % (vr(a), vr(g)))
        A('v_lshl_add_u32 %s, %s, 2, %s' % (vr(a), vr(a), vr(r_)))
        A('v_lshrrev_b32 %s, 1, %s' % (vr(c), vr(a)))
        A('v_lshlrev_b32 %s, 1, %s' % (vr(c), vr(c)))
        if att:
            A('s_lshl_b32 s54, %s, 1' % sr(sW))
        else:
            A('s_and_b32 s54, %s, 2' % sr(sW))
            A('s_lshl_b32 s54, s54, 1')
        A('v_xor_b32 %s, s54, %s' % (vr(c), vr(c)))
        A('v_lshrrev_b32 %s, 1, %s' % (vr(d + 2), vr(cc)))
        A('v_add_u32 %s, %s, %s' % (vr(c), vr(c), vr(d + 2)))
        A('v_lshlrev_b32 %s, 4, %s' % (vr(c), vr(c)))
        A('v_lshl_add_u32 %s, %s, 7, %s' % (vr(c), vr(a), vr(c)))
        A('v_and_b32 %s, 1, %s' % (vr(a), vr(cc)))
        A('v_lshl_add_u32 %s, %s, 3, %s' % (vr(c), vr(a), vr(c)))
        A('v_lshrrev_b32 %s, 1, %s' % (vr(a), vr(g)))
        A('s_mov_b32 s54, 6144')
        A('v_mad_u32_u24 %s, %s, s54, %s' % (vr(c), vr(a), vr(c)))
        A('v_add_u32 %s, %d, %s' % (vr(vWA), SLOT0 + WOFF, vr(c)))
        if not att:
            A('v_xor_b32 %s, 32, %s' % (vr(vWB), vr(vWA)))
        if att:
            A('v_min_u32 %s, 35, %s' % (vr(a), vr(l)))
            A('s_mul_i32 s54, %s, 36' % sr(sW))
        else:
            A('v_min_u32 %s, 31, %s' % (vr(a), vr(l)))
            A('s_lshl_b32 s54, %s, 5' % sr(sW))
            A('s_add_u32 s54, s54, 16')
        A('v_add_u32 %s, s54, %s' % (vr(a), vr(a)))
        A('v_lshlrev_b32 %s, 2, %s' % (vr(c), vr(a)))
        A('v_add_u32 %s, %d, %s' % (vr(vGL), ST, vr(c)))
        A('s_lshl_b32 s54, %s, 7' % sr(sRB))
        A('s_sub_u32 s54, s54, 16')
        A('v_add_u32 %s, s54, %s' % (vr(a), vr(a)))
        A('v_max_i32 %s, 0, %s' % (vr(a), vr(a)))
        A('v_lshlrev_b32 %s, 4, %s' % (vr(vG), vr(a)))
        A('s_lshl_b32 s54, %s, 3' % sr(sRB))
        A('s_and_b32 s55, %s, 1' % sr(sW))
        A('s_lshl_b32 s55, s55, 2')
        A('s_add_u32 s54, s54, s55')
        A('s_mul_i32 s54, s54, %d' % NKS)
        if att:
            A('s_lshl_b32 s55, %s, 1' % sr(sGRP))
            A('s_add_u32 s55, s55, 43')
            A('s_add_u32 s54, s54, s55')
        else:
            A('s_add_u32 s54, s54, %s' % sr(sPS))
        A('s_lshr_b32 s55, %s, 1' % sr(sW))
        A('s_add_u32 s54, s54, s55')
        A('s_lshl_b32 s54, s54, 10')
        A('s_add_u32 %s, s54, %d' % (sr(sHST), H_OFF))
        A('s_lshl_b32 s54, %s, 1' % sr(sRB))
        A('s_and_b32 s55, %s, 1' % sr(sW))
        A('s_add_u32 s54, s54, s55')
        A('s_lshl_b32 s54, s54, 2')
        A('s_lshr_b32 s55, %s, 1' % sr(sGRP))
        A('s_add_u32 s54, s54, s55')
        A('s_lshl_b32 s54, s54, 4')
        A('s_and_b32 s55, %s, 1' % sr(sGRP))
        A('s_lshl_b32 s55, s55, 1')
        A('s_add_u32 s54, s54, s55')
        A('s_lshr_b32 s55, %s, 1' % sr(sW))
        A('s_add_u32 s54, s54, s55')
        A('s_lshl_b32 s54, s54, 3')
        A('s_add_u32 %s, s54, %d' % (sr(sFL), WS_D + (0 if att else 32)))
        for i in range(4):
            A('v_accvgpr_write_b32 %s, -1' % ar(aPOIS + i))
        items = []
        for x in o:
            if isinstance(x, list):
                items.append(x)
            elif isinstance(x, tuple):
                items.append([x])
            else:
                items.append(one(x))
        return items[:first], items[first:]

    def prefetch_items(self, att):
        l = vL
        vPF = 108 if att else 200
        o = ['s_lshr_b32 s54, s2, 3', 's_lshl_b32 s54, s54, 2', 's_add_u32 s54, s54, %s' % sr(sW),
             's_mul_i32 s55, s54, %d' % (86 * 128), 's_lshl_b32 s54, s54, 12',
             'v_lshlrev_b32 %s, 7, %s' % (vr(vPF), vr(l)), 'v_and_b32 %s, 0xfff, %s' % (vr(vPF + 1), vr(vPF)),
             'v_add_u32 %s, s55, %s' % (vr(vPF), vr(vPF)), 'v_add_u32 %s, s54, %s' % (vr(vPF + 1), vr(vPF + 1))]
        it = [one(x) for x in o]
        it.append(one('buffer_load_dword a240, %s, %s, 0 offen' % (vr(vPF), srd(W2_)), 'pf'))
        it.append(one('buffer_load_dword a241, %s, %s, 0 offen offset:2816' % (vr(vPF), srd(W2_)), 'pf'))
        it.append(one('buffer_load_dword a242, %s, %s, 0 offen' % (vr(vPF + 1), srd(WO_)), 'pf'))
        return it

    def bulk_prefetch(self, att):
        b = self.b
        vPF = 108 if att else 200
        b('s_and_b32 s54, s2, 15')
        b('s_lshr_b32 s55, s2, 5')
        b('s_lshl_b32 s55, s55, 4')
        b('s_or_b32 s54, s54, s55')
        b('s_lshl_b32 s54, s54, 2')
        b('s_add_u32 s54, s54, %s' % sr(sW))
        b('v_lshlrev_b32 %s, 7, %s' % (vr(vPF), vr(vL)))
        parts = [(W_, 192), (X_, 256), (WO_, 64)] if att else [(W_, 172), (W2_, 340)]
        done = b.label_name('L_pfd')
        lo = 0
        q0 = len(b.vmq)
        for i, (sd, n) in enumerate(parts):
            nxt = b.label_name('L_pfn')
            last = i == len(parts) - 1
            if not last:
                b('s_cmp_ge_u32 s54, %d' % (lo + n))
                b('s_cbranch_scc1 %s' % nxt)
            b.begin_region()
            b('s_sub_u32 s55, s54, %d' % lo)
            b('s_lshl_b32 s55, s55, 13')
            b('buffer_load_dword a%d, %s, %s, s55 offen' % (240 + i, vr(vPF), srd(sd)), tag='pf')
            if not last:
                b('s_branch %s' % done)
            b.end_region()
            if not last:
                b(nxt + ':')
            lo += n
        b(done + ':')
        del b.vmq[q0:]
        b.vmq.append(dict(regs={('a', 240), ('a', 241), ('a', 242)}, tag='pf', region=None))

    def role_prologue(self, att):
        b = self.b
        if att:
            self.halo_setup()
        b('s_waitcnt lgkmcnt(0)')
        names = OPT['stamps'].split(',')
        if 'start' in names:
            b('s_mov_b32 %s, %s' % (sr(sTS + (2 if OPT['fst'] else 1) * names.index('start')), sr(sNON)))
        self.ts('karg')
        for it in self.dma_half(att, 0, 0) + self.dma_half(att, 0, 1):
            self.emit(it)
        for x in self.srd_rest():
            b(x)
        if att:
            lab = b.label_name('L_nopub')
            b('s_lshl_b32 s54, s2, 2')
            b('s_or_b32 s54, s54, %s' % sr(sW))
            b('s_cmp_lg_u32 s54, 0')
            b('s_cbranch_scc1 %s' % lab)
            b.begin_region()
            b('s_or_b32 %s, %s, 1' % (sr(sNON), sr(sNON)))
            b('v_mov_b32 %s, %s' % (vr(vGR), sr(sNON)))
            b('v_mov_b32 %s, %s' % (vr(vGR + 1), sr(sNON + 1)))
            b('s_mov_b64 exec, 1')
            b('buffer_store_dwordx2 %s, off, %s, 0 sc1' % (vr(vGR, 2), srd(DBG_)))
            b('s_mov_b64 exec, -1')
            b.end_region()
            b(lab + ':')
        self.ts('st0')
        first, rest = self.setup_items(att)
        units = []
        for s_, half in ((1, 0), (1, 1), (2, 0)):
            items = self.dma_half(att, s_, half)
            npairs = (len(items) - (2 if half else 0)) // 2
            for i in range(npairs):
                units.append([items[2 * i], items[2 * i + 1], []])
            if half:
                units[-1][2] = items[2 * npairs:]
        seq = first + rest
        per = -(-len(seq) // len(units))
        for pre, ld, tail in units:
            self.emit(pre)
            if seq:
                self.emit(seq.pop(0))
            self.emit(ld)
            for it in tail:
                self.emit(it)
            for _ in range(per - 1):
                if seq:
                    self.emit(seq.pop(0))
        assert not seq
        if OPT['poison'] == 'pro':
            for it in self.poison_items(att):
                self.emit(it)
        if OPT['pf'] == 1:
            for it in self.prefetch_items(att):
                self.emit(it)
        elif OPT['pf'] == 2:
            for it in self.prefetch_items(att)[:-3]:
                self.emit(it)
        elif OPT['pf'] == 3:
            self.bulk_prefetch(att)
        self.ts('prol')

    UNIT_SLOT = [2, 0, 1, 2, 0, 1]

    def w2_setup_v(self):
        l = vL
        a, c = 252, 253
        o = ['v_lshrrev_b32 %s, 4, %s' % (vr(a), vr(l)),
             'v_lshlrev_b32 %s, 1, %s' % (vr(a), vr(a)),
             'v_and_b32 %s, 7, %s' % (vr(c), vr(l)),
             'v_xor_b32 %s, %s, %s' % (vr(a), vr(a), vr(c)),
             'v_lshlrev_b32 %s, 4, %s' % (vr(a), vr(a)),
             'v_lshrrev_b32 %s, 3, %s' % (vr(c), vr(l)),
             'v_lshl_add_u32 %s, %s, 10, %s' % (vr(a), vr(c), vr(a)),
             's_lshl_b32 s54, %s, 7' % sr(sCT),
             'v_add_u32 %s, s54, %s' % (vr(vDX), vr(a)),
             'v_add_u32 %s, 7168, %s' % (vr(vDX + 1), vr(vDX))]
        return [one(x) for x in o]

    def w2_setup_s(self):
        o = [['s_mul_i32 %s, %s, %d' % (sr(sW2A), sr(sW), 11 * 32768)],
             ['s_mul_i32 s55, %s, %d' % (sr(sW), REG)],
             ['s_add_u32 %s, s55, %d' % (sr(sW2L), SLOT0)],
             ['s_cmp_eq_u32 %s, 3' % sr(sW),
              's_cselect_b32 %s, 5, 6' % sr(sW2B),
              's_cselect_b32 %s, %d, %s' % (sr(sW2C), OOB, sr(sW2A))],
             ['s_lshl_b32 %s, %s, 15' % (sr(sW2B), sr(sW2B))],
             ['s_add_u32 %s, %s, %s' % (sr(sW2B), sr(sW2B), sr(sW2A))],
             ['s_lshl_b32 %s, %s, 17' % (sr(sWOB), sr(sW))],
             ['s_lshl_b32 s55, %s, 2' % sr(sRT)],
             ['s_add_u32 s55, s55, %s' % sr(sW)],
             ['s_lshl_b32 s55, s55, 7'],
             ['s_add_u32 %s, s55, %d' % (sr(sFLC), WS_D)]]
        return [[(t, None) for t in x] for x in o]

    def tr_base_items(self, dst, slot_off):
        l = vL
        a, c, d, e = 252, 253, 254, 255
        o = ['v_bfe_u32 %s, %s, 2, 2' % (vr(a), vr(l)),
             'v_lshrrev_b32 %s, 4, %s' % (vr(c), vr(l)),
             'v_lshl_add_u32 %s, %s, 2, %s' % (vr(d), vr(c), vr(a)),
             'v_bfe_u32 %s, %s, 1, 2' % (vr(e), vr(d)),
             'v_lshlrev_b32 %s, 5, %s' % (vr(e), vr(e)),
             'v_lshl_add_u32 %s, %s, 7, %s' % (vr(e), vr(d), vr(e)),
             'v_and_b32 %s, 3, %s' % (vr(a), vr(l)),
             'v_lshl_add_u32 %s, %s, 3, %s' % (vr(e), vr(a), vr(e)),
             's_mul_i32 s54, %s, %d' % (sr(sW), REG),
             's_add_u32 s54, s54, %d' % (SLOT0 + slot_off),
             'v_add_u32 %s, s54, %s' % (vr(dst), vr(e))]
        for cp in range(1, 4):
            o.append('v_xor_b32 %s, %d, %s' % (vr(dst + cp), 32 * cp, vr(dst)))
        return [one(x) for x in o]

    def tr_base01_items(self):
        return [one('v_add_u32 %s, %s, %s' % (vr(vTB01 + cp), hex((-2 * SLOT) & 0xffffffff), vr(vTB2 + cp))) for cp in range(4)]

    @staticmethod
    def step_off(j):
        if j >= 11:
            return 'o', j - 11
        c, h, e = j >> 2, (j >> 1) & 1, j & 1
        if j == 9:
            return 'c', 5
        return ('b' if h else 'a'), 2 * c + e

    def w2_dma_unit(self, q):
        j, hh = q >> 1, q & 1
        r, pos = q // 5, q % 5
        kind, off = self.step_off(j)
        base = dict(a=sW2A, b=sW2B, c=sW2C, o=sWOB)[kind]
        sd = WO_ if kind == 'o' else W2_
        tag = 'w2_%d' % r
        lds = self.UNIT_SLOT[r] * SLOT + pos * 2048
        return [[('s_add_u32 %s, %s, %d' % (sr(sU), sr(base), off * 32768 + hh * 16384), None),
                 ('s_add_u32 m0, %s, %d' % (sr(sW2L), lds), None)],
                one('buffer_load_dwordx4 %s, %s, %s offen lds' % (vr(vDX), srd(sd), sr(sU)), tag),
                one('buffer_load_dwordx4 %s, %s, %s offen offset:1024 lds' % (vr(vDX + 1), srd(sd), sr(sU)), tag)]

    def w2_dma(self, q0, q1):
        out = []
        for q in range(q0, q1):
            out += self.w2_dma_unit(q)
        return out

    def w2_tr_unit(self, q):
        j, hh = q >> 1, q & 1
        r, pos = q // 5, q % 5
        sl = self.UNIT_SLOT[r]
        base = vTB2 if sl == 2 else vTB01
        off = pos * 2048 + (0 if sl == 2 else sl * SLOT)
        return [one('ds_read_b64_tr_b16 %s, %s offset:%d' % (ar(16 * j + 4 * cp + 2 * hh, 2), vr(base + cp), off), 'tr%d' % r)
                for cp in range(4)]

    def w2_tr(self, r):
        out = []
        for q in range(5 * r, 5 * r + 5):
            out += self.w2_tr_unit(q)
        return out

    def w2_background(self):
        b = self.b
        pair = lambda xs: [xs[i] + xs[i + 1] for i in range(0, len(xs), 2)]
        o = self.w2_dma(13, 15)
        o.append(lambda: b.wait_lg('tr0'))
        o += self.w2_dma(15, 20)
        o.append(lambda: b.wait_vm('w2_1'))
        o += pair(self.w2_tr(1))
        o.append(self.flags_load_item())
        o.append(lambda: b.wait_lg('tr1'))
        o += self.w2_dma(20, 25)
        o.append(lambda: b.wait_vm('w2_2'))
        o += pair(self.w2_tr(2))
        o.append(lambda: b.wait_lg('tr2'))
        o += self.w2_dma(25, 30)
        return o

    def p2_setup_items(self):
        l = vL
        a, c, d = 252, 253, 254
        o = []
        A = o.append
        A('s_lshl_b32 s55, %s, 2' % sr(sRT))
        for tp in range(4):
            r = sHB + tp
            A('s_add_u32 %s, %s, %d' % (sr(r), sr(sW), tp))
            A('s_and_b32 %s, %s, 3' % (sr(r), sr(r)))
            A('s_add_u32 %s, %s, s55' % (sr(r), sr(r)))
            A('s_mul_i32 %s, %s, %d' % (sr(r), sr(r), NKS * 1024))
            A('s_add_u32 %s, %s, %d' % (sr(r), sr(r), H_OFF))
        A('s_mul_i32 s54, %s, %d' % (sr(sW), 11 * 1024))
        A('v_add_u32 %s, s54, %s' % (vr(vHA), vr(vL16)))
        A(['s_cmp_eq_u32 %s, 3' % sr(sW), 's_cselect_b32 s54, 5, 6'])
        A('v_lshl_add_u32 %s, s54, 10, %s' % (vr(vHB_), vr(vHA)))
        A('v_and_b32 %s, 15, %s' % (vr(a), vr(l)))
        A('s_lshl_b32 s54, %s, 6' % sr(sRT))
        A('s_lshl_b32 s55, %s, 4' % sr(sW))
        A('s_add_u32 s54, s54, s55')
        A('v_add_u32 %s, s54, %s' % (vr(a), vr(a)))
        A('v_lshlrev_b32 %s, 10, %s' % (vr(a), vr(a)))
        A('v_lshrrev_b32 %s, 4, %s' % (vr(c), vr(l)))
        A('s_lshl_b32 s55, %s, 7' % sr(sCT))
        A('v_lshl_add_u32 %s, %s, 3, %s' % (vr(vXR), vr(c), vr(a)))
        A('v_add_u32 %s, s55, %s' % (vr(vXR), vr(vXR)))
        A('v_and_b32 %s, 1, %s' % (vr(vO), vr(c)))
        A('v_lshlrev_b32 %s, 5, %s' % (vr(vO), vr(vO)))
        A('v_lshrrev_b32 %s, 1, %s' % (vr(c), vr(c)))
        A('v_lshl_add_u32 %s, %s, 4, %s' % (vr(vO), vr(c), vr(vO)))
        A('v_add3_u32 %s, %s, %s, s55' % (vr(vO), vr(vO), vr(a)))
        A('v_lshrrev_b32 %s, 3, %s' % (vr(a), vr(l)))
        A('v_and_b32 %s, 6, %s' % (vr(c), vr(a)))
        A('v_and_b32 %s, 1, %s' % (vr(a), vr(a)))
        A('v_bfe_u32 %s, %s, 2, 1' % (vr(d), vr(l)))
        A('v_add_u32 %s, %s, %s' % (vr(c), vr(c), vr(d)))
        A(['s_cmp_eq_u32 %s, 3' % sr(sW), 's_cselect_b32 s54, 5, 6'])
        A('v_mad_u32_u24 %s, %s, s54, %s' % (vr(c), vr(a), vr(c)))
        A('s_mul_i32 s54, %s, 11' % sr(sW))
        A('v_add_u32 %s, s54, %s' % (vr(c), vr(c)))
        A('v_lshrrev_b32 %s, 2, %s' % (vr(a), vr(l)))
        A('s_lshl_b32 s54, %s, 2' % sr(sW))
        A('s_add_u32 s54, s54, 32')
        A('v_add_u32 %s, s54, %s' % (vr(d), vr(a)))
        A(['v_cmp_le_u32 vcc, 11, %s' % vr(a), 'v_cndmask_b32 %s, %s, %s, vcc' % (vr(c), vr(c), vr(d))])
        A('v_and_b32 %s, 3, %s' % (vr(d), vr(l)))
        A('v_add_u32 %s, %s, %s' % (vr(d), sr(sW), vr(d)))
        A('v_and_b32 %s, 3, %s' % (vr(d), vr(d)))
        A('v_mad_u32_u24 %s, %s, %d, %s' % (vr(c), vr(d), NKS, vr(c)))
        A('v_lshlrev_b32 %s, 10, %s' % (vr(c), vr(c)))
        A('s_mul_i32 s54, %s, %d' % (sr(sRT), 4 * NKS * 1024))
        A('s_add_u32 s54, s54, %d' % H_OFF)
        A('v_add_u32 %s, s54, %s' % (vr(c), vr(c)))
        A('v_mov_b32 %s, %d' % (vr(d), OOB))
        A(['s_cmp_eq_u32 %s, 3' % sr(sW), 's_cselect_b32 s54, 9, 15'])
        A(['v_cmp_eq_u32 vcc, s54, %s' % vr(a), 'v_cndmask_b32 %s, %s, %s, vcc' % (vr(c), vr(c), vr(d))])
        A(['v_cmp_eq_u32 vcc, 15, %s' % vr(a), 'v_cndmask_b32 %s, %s, %s, vcc' % (vr(vPO), vr(c), vr(d))])
        A('v_and_b32 %s, 7, %s' % (vr(vFA), vr(l)))
        A('v_lshlrev_b32 %s, 3, %s' % (vr(vFA), vr(vFA)))
        return [[(t, None) for t in x] if isinstance(x, list) else one(x) for x in o]

    def flags_text(self):
        return 'buffer_load_dwordx2 %s, %s, %s, %s offen sc1' % (vr(vFLG, 2), vr(vFA), srd(WS_), sr(sFLC))

    def flags_load_item(self):
        return one(self.flags_text(), 'flg')

    def flags_check(self):
        b = self.b

        def check():
            b('v_cmp_ne_u32 vcc, %s, %s' % (sr(sNON), vr(vFLG)))
            b('v_cmp_ne_u32 s[54:55], %s, %s' % (sr(sNON + 1), vr(vFLG + 1)))
            b('s_or_b64 vcc, vcc, s[54:55]')
            b('s_cmp_eq_u64 vcc, 0')
        self.poll_loop(self.flags_text(), check, 'L_flg')

    def main_loop(self, att):
        b = self.b
        if att:
            F = [116, 164]
            G = 27

            def xreg(f, t):
                return F[f] + 4 * t

            def wreg(f, p):
                return F[f] + 36 + 4 * p

            def reads(f, bb):
                xa = vXB if bb else vXA
                def wr(p):
                    return [('ds_read_b64_tr_b16 %s, %s offset:%d' % (vr(wreg(f, p) + 2 * hh, 2), vr(vWA),
                                                                     hh * 12288 + (3 * bb + p) * 1024), 'fr') for hh in range(2)]
                def xr(t):
                    return [('ds_read_b128 %s, %s offset:%d' % (vr(xreg(f, t), 4), vr(xa), t * 2048), 'fr')]
                out = wr(1) + xr(0) + wr(2) + xr(1) + wr(0)
                for t in range(2, 9):
                    out += xr(t)
                return out

            def mfmas(f, u):
                out = []
                C = lambda r: '0' if u == 0 else vr(r, 4)
                for t in range(9):
                    out.append('%s %s, %s, %s, %s' % (MF, vr(32 + 4 * t, 4), vr(wreg(f, 1), 4), vr(xreg(f, t), 4), C(32 + 4 * t)))
                    out.append('%s %s, %s, %s, %s' % (MF, vr(68 + 4 * t, 4), vr(xreg(f, t), 4), vr(wreg(f, 2), 4), C(68 + 4 * t)))
                    if t >= 1:
                        q = 4 * (t - 1)
                        out.append('%s %s, %s, %s, %s' % (MF, vr(q, 4), vr(wreg(f, 0), 4), vr(xreg(f, t), 4), C(q)))
                out.append('%s %s, %s, %s, %s' % (MF, vr(104, 4), vr(wreg(f, 0), 4), vr(vONES, 4), C(104)))
                return out
        else:
            F = [120, 160]
            G = 24

            def xreg(f, t):
                return F[f] + 4 * t

            def wreg(f, p, ti):
                return F[f] + 16 + 4 * (2 * p + ti)

            def reads(f, bb):
                xa = vXB if bb else vXA
                def wr(p, ti):
                    return [('ds_read_b64_tr_b16 %s, %s offset:%d' % (vr(wreg(f, p, ti) + 2 * hh, 2), vr(vWB if ti else vWA),
                                                                     hh * 12288 + (3 * bb + p) * 1024), 'fr') for hh in range(2)]
                def xr(t):
                    return [('ds_read_b128 %s, %s offset:%d' % (vr(xreg(f, t), 4), vr(xa), t * 2048), 'fr')]
                out = wr(0, 0) + xr(0) + xr(1) + xr(2) + xr(3)
                for pt in range(1, 6):
                    out += wr(pt >> 1, pt & 1)
                return out

            def mfmas(f, u):
                out = []
                C = lambda r: '0' if u == 0 else vr(r, 4)
                for pt in range(6):
                    for t in range(4):
                        acc = 16 * pt + 4 * t
                        out.append('%s %s, %s, %s, %s' % (MF, vr(acc, 4), vr(wreg(f, pt >> 1, pt & 1), 4), vr(xreg(f, t), 4), C(acc)))

                def sblock():
                    lab = b.label_name('L_nos')
                    b('s_cmp_lg_u32 %s, %d' % (sr(sTH), u & 1))
                    b('s_cbranch_scc1 %s' % lab)
                    b.begin_region()
                    for pt in range(6):
                        c = '0' if u < 2 else vr(96 + 4 * pt, 4)
                        b('%s %s, %s, %s, %s' % (MF, vr(96 + 4 * pt, 4), vr(wreg(f, pt >> 1, pt & 1), 4), vr(vONES, 4), c))
                    b.end_region()
                    b(lab + ':')
                out.append(sblock)
                return out

        stats = self.stats_items()
        poison = self.poison_items(att) if OPT['poison'] == 'even' or (OPT['poison'] == 'att' and att) else []
        p2s = self.p2_setup_items()
        b.wait_vm('st0')
        b.wait_lg('ones')
        self.ts('w0')
        b('s_barrier')
        self.ts('bar0')
        for t, tag in reads(0, 0):
            b(t, tag=tag)
        for u in range(16):
            s, bb, f = u >> 1, u & 1, u & 1
            mf = mfmas(f, u)
            streams = []
            first = []
            if bb == 1:
                b.wait_lg('fr', 'stw')
                self.ts('a%d' % u)
                if s + 1 < 8:
                    b.wait_vm('st%d' % (s + 1))
                self.ts('b%d' % u)
                if not OPT['abl'] & 4:
                    b('s_barrier')
                self.ts('c%d' % u)
            rd = []
            if u < 15 and not OPT['abl'] & 2:
                rd = [[x] for x in reads(1 - f, 1 - bb)]
            if bb == 1 and u < 15:
                delta = SLOT if (s % 3) < 2 else -2 * SLOT
                upd = [one('v_add_u32 %s, %s, %s' % (vr(r), hex(delta & 0xffffffff), vr(r)))
                       for r in ([vWA, vXA, vXB] if att else [vWA, vXA, vWB, vXB])]
                rd = upd[:2] + rd[:3] + upd[2:] + rd[3:]
            streams.append(dict(items=rd, lo=0, hi=(G - 3 if bb else (G * 3) // 4)))
            dm = []
            st3 = (u + 5) >> 1
            if u == 0:
                dm = self.dma_half(att, 2, 1)
                dm.insert(len(dm) - 4, one(self.nonce_text(), 'non'))
                if OPT['pf'] == 4:
                    dm.append(blk(lambda: self.bulk_prefetch(att), 6))
            elif st3 < 8:
                if not OPT['abl'] & 1:
                    dm = self.dma_half(att, st3, 0 if bb else 1)
                if u == 10:
                    dm.insert(max(len(dm) - 4, 0), one(self.gather_text(), 'gat'))
            elif u == 11:
                dm = self.w2_setup_s() + self.w2_dma(0, 3)
            elif u == 12:
                dm = self.w2_dma(3, 5)
            elif u == 13:
                dm = self.w2_dma(5, 8)
            elif u == 14:
                dm = self.w2_dma(8, 10)
            elif u == 15:
                dm = self.w2_dma(10, 13)
            pz = []
            if poison and u in (2, 4, 6):
                n = 4 if u < 6 or att else len(poison)
                pz, poison = poison[:n], poison[n:]
            if OPT['pf'] == 2 and u in OPT['pfu']:
                pz = pz + [self.prefetch_items(att)[-3 + OPT['pfu'].index(u)]]
            if pz:
                streams.append(dict(items=dm, lo=0, hi=(G * 2) // 3, mind=1))
                streams.append(dict(items=pz, lo=(G * 2) // 3 + 2, hi=G - 1))
            else:
                streams.append(dict(items=dm, lo=0, hi=G - 1, mind=1))
            ex = []
            if u < 3:
                k = (len(stats) + 2 - u) // (3 - u)
                if u == 0:
                    k = 8
                ex, stats = stats[:k], stats[k:]
                streams.append(dict(items=ex, lo=(G // 2 if u == 0 else 0), hi=G - 1))
            elif u == 3:
                streams.append(dict(items=[blk(self.nonce_and_stats_store, 8)], lo=1, hi=3))
            elif 4 <= u <= 9:
                k = (len(p2s) + 9 - u) // (10 - u)
                ex, p2s = p2s[:k], p2s[k:]
                streams.append(dict(items=ex, lo=0, hi=G - 1))
                if u == 9:
                    streams.append(dict(items=[blk(self.flag_store, 5)], lo=2, hi=4))
            elif u == 10:
                streams.append(dict(items=self.w2_setup_v(), lo=0, hi=G - 1))
            elif u == 12:
                streams.append(dict(items=self.tr_base_items(vTB2, 2 * SLOT), lo=0, hi=G - 1))
            elif u == 13:
                streams.append(dict(items=[blk(self.gather_check, 8)], lo=1, hi=3))
            elif u == 14:
                streams.append(dict(items=self.tr_base01_items(), lo=0, hi=G - 1))
            elif u == 15:
                tr = self.w2_tr(0)
                tr.insert(0, blk(lambda: b.wait_vm('w2_0'), 0))
                streams.append(dict(items=tr, lo=G // 3, hi=G - 1))
            self.schedule(mf, streams, G, '%s%d' % ('a' if att else 'm', u))
        assert not stats and not poison and not p2s

    def att_epilogue(self):
        b = self.b
        l = vL
        QS = 116
        VS = 134
        VP, KP, QP = 158, 176, 194
        a, c, d = T + 4, T + 5, T + 6
        vNEG = T + 7
        SEL = T + 8
        vAq, vAq2, vAv = T + 12, T + 13, T + 14
        vOW = T + 15
        b.bg = self.w2_background()
        b.bg_every = OPT['bg_att']
        b('v_and_b32 %s, 15, %s' % (vr(a), vr(l)))
        b('v_lshrrev_b32 %s, 4, %s' % (vr(c), vr(l)))
        b('v_lshlrev_b32 %s, 2, %s' % (vr(vAq), vr(a)))
        b('v_add_u32 %s, %d, %s' % (vr(vAq), ST, vr(vAq)))
        b('v_add_u32 %s, 256, %s' % (vr(vAq2), vr(vAq)))
        b('v_lshlrev_b32 %s, 4, %s' % (vr(vAv), vr(c)))
        b('v_add_u32 %s, %d, %s' % (vr(vAv), ST, vr(vAv)))
        for t in range(9):
            if t < 7:
                b('ds_read2_b32 %s, %s offset0:%d offset1:%d' % (vr(QS + 2 * t, 2), vr(vAq), 16 * t, 144 + 16 * t), tag='qs')
            else:
                b('ds_read2_b32 %s, %s offset0:%d offset1:%d' % (vr(QS + 2 * t, 2), vr(vAq2), 16 * t - 64, 80 + 16 * t), tag='qs')

        def vstat_read(t):
            base = VS + 8 * (t % 3)
            b('ds_read_b128 %s, %s offset:%d' % (vr(base, 4), vr(vAv), 64 * t), tag='vs')
            b('ds_read_b128 %s, %s offset:%d' % (vr(base + 4, 4), vr(vAv), STR + 64 * t), tag='vs')
        for t in range(3):
            vstat_read(t)
        for i in range(4):
            b('v_mov_b32_dpp %s, %s row_newbcast:0 row_mask:0xf bank_mask:0xf' % (vr(108 + i), vr(32 + i)))
        b('v_mov_b32 %s, %s' % (vr(112), vr(68)))
        b('v_mov_b32 %s, %s' % (vr(113), vr(68)))
        b('v_and_b32 %s, 1, %s' % (vr(d), vr(a)))
        b('v_permlane16_swap_b32 %s, %s' % (vr(112), vr(113)))
        b('v_cmp_eq_u32 %s, 1, %s' % (sr(sP, 2), vr(d)))
        b('v_lshl_add_u32 %s, %s, 2, %s' % (vr(c), vr(c), vr(d)))
        b('v_mov_b32 %s, %s' % (vr(113), vr(112)))
        b('v_cmp_le_u32 %s, %s, %s' % (sr(sC0, 2), vr(c), vr(a)))
        b('v_add_u32 %s, 2, %s' % (vr(c), vr(c)))
        b('v_permlane32_swap_b32 %s, %s' % (vr(112), vr(113)))
        b('v_cmp_le_u32 %s, %s, %s' % (sr(sC1, 2), vr(c), vr(a)))
        b('v_mov_b32 %s, 0x0c0c0100' % vr(a))
        b('v_mov_b32 %s, 0x01000c0c' % vr(c))
        b('v_cndmask_b32 %s, %s, %s, %s' % (vr(a), vr(a), vr(c), sr(sP, 2)))
        b('v_mov_b32 %s, 0x0c0c0302' % vr(c))
        b('v_mov_b32 %s, 0x03020c0c' % vr(d))
        b('v_cndmask_b32 %s, %s, %s, %s' % (vr(c), vr(c), vr(d), sr(sP, 2)))
        b('v_mov_b32 %s, 0x0c0c0c0c' % vr(d))
        b('v_cndmask_b32 %s, %s, %s, %s' % (vr(SEL + 0), vr(a), vr(d), sr(sC0, 2)))
        b('v_cndmask_b32 %s, %s, %s, %s' % (vr(SEL + 1), vr(c), vr(d), sr(sC1, 2)))
        b('v_cndmask_b32 %s, %s, %s, %s' % (vr(SEL + 2), vr(d), vr(a), sr(sC0, 2)))
        b('v_cndmask_b32 %s, %s, %s, %s' % (vr(SEL + 3), vr(d), vr(c), sr(sC1, 2)))
        b('v_mov_b32 %s, 0xcf6e6b28' % vr(vNEG))
        b('s_cmp_eq_u32 %s, 0' % sr(sRB))
        b('s_cselect_b64 %s, -1, 0' % sr(sZ, 2))
        b('s_mov_b32 %s, 0x3eb8aa3b' % sr(sC))
        b('s_lshr_b32 s54, %s, 1' % sr(sW))
        b('s_lshl_b32 s54, s54, 13')
        b('s_and_b32 s55, %s, 1' % sr(sW))
        b('s_lshl_b32 s56, s55, 3')
        b('s_add_u32 s56, s56, s54')
        b('s_add_u32 s56, s56, %d' % OX)
        b('v_add_u32 %s, s56, %s' % (vr(vOW), vr(vL16)))

        def norm_qk(acc, sreg, t, dst):
            st = vr(QS + 2 * t, 2)
            for h in range(2):
                b('v_pk_fma_f32 %s, %s, %s, %s op_sel:[0,0,0] op_sel_hi:[1,0,1]' % (vr(acc + 2 * h, 2), vr(sreg + 2 * h, 2), st, vr(acc + 2 * h, 2)))
            for h in range(2):
                b('v_pk_mul_f32 %s, %s, %s op_sel:[0,1] op_sel_hi:[1,1]' % (vr(acc + 2 * h, 2), vr(acc + 2 * h, 2), st))
            for h in range(2):
                b('v_cvt_pk_bf16_f32 %s, %s, %s' % (vr(dst + h), vr(acc + 2 * h), vr(acc + 2 * h + 1)))

        def norm_v(t):
            acc = 68 + 4 * t
            base = VS + 8 * (t % 3)
            for h in range(2):
                b('v_pk_fma_f32 %s, %s, %s, %s op_sel_hi:[1,0,1]' % (vr(acc + 2 * h, 2), vr(base + 2 * h, 2), vr(112, 2), vr(acc + 2 * h, 2)))
            for h in range(2):
                b('v_pk_mul_f32 %s, %s, %s' % (vr(acc + 2 * h, 2), vr(acc + 2 * h, 2), vr(base + 4 + 2 * h, 2)))
            for h in range(2):
                b('v_cvt_pk_bf16_f32 %s, %s, %s' % (vr(VP + 2 * t + h), vr(acc + 2 * h), vr(acc + 2 * h + 1)))
            if t + 3 < 9:
                vstat_read(t + 3)

        for t in range(9):
            norm_qk(32 + 4 * t, 108, t, KP + 2 * t)
        for t in range(1, 9):
            norm_qk(4 * (t - 1), 104, t, QP + 2 * (t - 1))
        for t in range(1, 9):
            D = 8 * (t - 1)
            b('%s %s, %s, %s, 0' % (MF16, vr(D, 4), vr(KP + 2 * (t - 1), 2), vr(QP + 2 * (t - 1), 2)))
            b('%s %s, %s, %s, 0' % (MF16, vr(D + 4, 4), vr(KP + 2 * t, 2), vr(QP + 2 * (t - 1), 2)))
        for t in range(9):
            norm_v(t)
        LG, MX = 64, 80
        for t in range(1, 9):
            D = 8 * (t - 1)
            for j in range(2):
                b('v_cndmask_b32 %s, %s, %s, %s' % (vr(D + 2 * j), vr(D + 2 * j), vr(D + 2 * j + 1), sr(sP, 2)))
                b('v_cndmask_b32 %s, %s, %s, %s' % (vr(D + 4 + 2 * j), vr(D + 4 + 2 * j), vr(D + 4 + 2 * j + 1), sr(sP, 2)))
            if t == 1:
                for j in range(2):
                    b('v_cndmask_b32 %s, %s, %s, %s' % (vr(D + 2 * j), vr(D + 2 * j), vr(vNEG), sr(sZ, 2)))
            b('v_cndmask_b32 %s, %s, %s, %s' % (vr(LG + 2 * (t - 1)), vr(D), vr(D + 4), sr(sC0, 2)))
            b('v_cndmask_b32 %s, %s, %s, %s' % (vr(LG + 2 * (t - 1) + 1), vr(D + 2), vr(D + 6), sr(sC1, 2)))
            b('v_max_f32 %s, %s, %s' % (vr(MX + t - 1), vr(LG + 2 * (t - 1)), vr(LG + 2 * (t - 1) + 1)))
        for h in range(2):
            m = MX + 4 * h
            b('v_permlane16_swap_b32 %s, %s' % (vr(m), vr(m + 1)))
            b('v_permlane16_swap_b32 %s, %s' % (vr(m + 2), vr(m + 3)))
        for h in range(2):
            m = MX + 4 * h
            b('v_max_f32 %s, %s, %s' % (vr(m), vr(m), vr(m + 1)))
            b('v_max_f32 %s, %s, %s' % (vr(m + 2), vr(m + 2), vr(m + 3)))
        for h in range(2):
            m = MX + 4 * h
            b('v_permlane32_swap_b32 %s, %s' % (vr(m), vr(m + 2)))
        for h in range(2):
            m = MX + 4 * h
            b('v_max_f32 %s, %s, %s' % (vr(m), vr(m), vr(m + 2)))
        for h in range(2):
            m = MX + 4 * h
            b('v_mul_f32 %s, %s, %s' % (vr(m), sr(sC), vr(m)))
        for h in range(2):
            m = MX + 4 * h
            b('v_mov_b32 %s, %s' % (vr(m + 2), vr(m)))
        for h in range(2):
            m = MX + 4 * h
            b('v_permlane32_swap_b32 %s, %s' % (vr(m), vr(m + 2)))
        for h in range(2):
            m = MX + 4 * h
            b('v_mov_b32 %s, %s' % (vr(m + 1), vr(m)))
            b('v_mov_b32 %s, %s' % (vr(m + 3), vr(m + 2)))
        for h in range(2):
            m = MX + 4 * h
            b('v_permlane16_swap_b32 %s, %s' % (vr(m), vr(m + 1)))
            b('v_permlane16_swap_b32 %s, %s' % (vr(m + 2), vr(m + 3)))
        for t in range(1, 9):
            L = LG + 2 * (t - 1)
            for j in range(2):
                b('v_fma_f32 %s, %s, %s, -%s' % (vr(L + j), vr(L + j), sr(sC), vr(MX + t - 1)))
        for t in range(1, 9):
            L = LG + 2 * (t - 1)
            for j in range(2):
                b('v_exp_f32 %s, %s' % (vr(L + j), vr(L + j)))
        for t in range(1, 9):
            L = LG + 2 * (t - 1)
            b('v_cvt_pk_bf16_f32 %s, %s, %s' % (vr(L), vr(L), vr(L + 1)))
        PF, OA, SM = 0, 32, 84
        for t in range(1, 9):
            L = LG + 2 * (t - 1)
            for i in range(4):
                b('v_perm_b32 %s, %s, %s, %s' % (vr(PF + 4 * (t - 1) + i), vr(L), vr(L), vr(SEL + i)))
            b('%s %s, %s, %s, 0' % (MF, vr(OA + 4 * (t - 1), 4), vr(VP + 2 * (t - 1), 4), vr(PF + 4 * (t - 1), 4)))
            b('%s %s, %s, %s, 0' % (MF, vr(SM + 4 * (t - 1), 4), vr(vONES, 4), vr(PF + 4 * (t - 1), 4)))
        for t in range(1, 9):
            sm = SM + 4 * (t - 1)
            b('v_rcp_f32 %s, %s' % (vr(sm), vr(sm)))
        for t in range(1, 9):
            sm, o = SM + 4 * (t - 1), OA + 4 * (t - 1)
            for h in range(2):
                b('v_pk_mul_f32 %s, %s, %s op_sel:[0,0] op_sel_hi:[1,0]' % (vr(o + 2 * h, 2), vr(o + 2 * h, 2), vr(sm, 2)))
            for h in range(2):
                b('v_cvt_pk_bf16_f32 %s, %s, %s' % (vr(o + h), vr(o + 2 * h), vr(o + 2 * h + 1)))
            b('ds_write_b64 %s, %s offset:%d' % (vr(vOW), vr(o, 2), (t - 1) * 1024), tag='ox')
        b.bg_flush()
        b.bg_every = 0
        self.ts('epi')
        b('s_lshr_b32 s54, %s, 1' % sr(sW))
        b('s_lshl_b32 s54, s54, 13')
        b('s_and_b32 s55, %s, 1' % sr(sW))
        b('s_lshl_b32 s56, s55, 12')
        b('s_add_u32 s56, s56, s54')
        b('s_add_u32 s56, s56, %d' % OX)
        b('v_add_u32 %s, s56, %s' % (vr(c), vr(vL16)))
        b.wait_lg('ox')
        b('s_barrier')
        for i in range(4):
            b('ds_read_b128 %s, %s offset:%d' % (vr(4 * i, 4), vr(c), i * 1024), tag='oxr')
        self.p2_issue()
        for i in range(4):
            b('s_add_u32 s57, %s, %d' % (sr(sHST), i * NKS * 1024))
            b('buffer_store_dwordx4 %s, %s, %s, s57 offen %s' % (vr(4 * i, 4), vr(vL16), srd(WS_), OPT['hstf']), tag='hst')

    def mlp_epilogue(self):
        b = self.b
        l = vL
        a, c, d = T + 4, T + 5, T + 6
        QS = 120
        TM = 128
        PK = 152
        b.bg = self.w2_background()
        b('v_lshrrev_b32 %s, 4, %s' % (vr(c), vr(l)))
        b('v_lshlrev_b32 %s, 4, %s' % (vr(c), vr(c)))
        b('s_mul_i32 s54, %s, 384' % sr(sW))
        b('s_add_u32 s55, s54, %d' % SX)
        b('v_add_u32 %s, s55, %s' % (vr(d), vr(c)))
        b('s_xor_b32 s54, %s, 1' % sr(sW))
        b('s_mul_i32 s54, s54, 384')
        b('s_add_u32 s55, s54, %d' % SX)
        b('v_add_u32 %s, s55, %s' % (vr(c), vr(c)))
        b('s_mov_b32 exec_lo, 0x00010001')
        b('s_mov_b32 exec_hi, 0x00010001')
        for pt in range(6):
            b('ds_write_b128 %s, %s offset:%d' % (vr(d), vr(96 + 4 * pt, 4), pt * 64), tag='sx')
        b('s_mov_b64 exec, -1')
        b.bg_every = OPT['bg_mlp']
        b('v_and_b32 %s, 15, %s' % (vr(a), vr(l)))
        b('s_lshl_b32 s54, %s, 6' % sr(sTH))
        b('s_add_u32 s54, s54, 16')
        b('v_add_u32 %s, s54, %s' % (vr(a), vr(a)))
        b('v_lshlrev_b32 %s, 2, %s' % (vr(a), vr(a)))
        b('v_add_u32 %s, %d, %s' % (vr(a), ST, vr(a)))
        for t in range(4):
            b('ds_read2_b32 %s, %s offset0:%d offset1:%d' % (vr(QS + 2 * t, 2), vr(a), 16 * t, 144 + 16 * t), tag='qs')
        b.bg_pop(4)
        b.wait_lg('sx')
        b('s_barrier')
        self.ts('e0')
        for pt in range(6):
            b('ds_read_b128 %s, %s offset:%d' % (vr(TM + 4 * pt, 4), vr(c), pt * 64), tag='sxr')
        b.bg_pop(4)
        for pt in range(6):
            for h in range(2):
                r = 96 + 4 * pt + 2 * h
                b('v_pk_add_f32 %s, %s, %s' % (vr(r, 2), vr(r, 2), vr(TM + 4 * pt + 2 * h, 2)))
        k = 0
        skip = None
        for p in range(3):
            self.ts('e%d' % (p + 1))
            if p == 2:
                b.bg_flush()
                b.bg_every = 0
                skip = b.label_name('L_nopair')
                b('s_lshr_b32 s55, %s, 1' % sr(sW))
                b('s_add_u32 s55, s55, 4')
                b('s_cmp_ge_u32 s55, %s' % sr(sNP))
                b('s_cbranch_scc1 %s' % skip)
                b.begin_region()
            for t in range(4):
                st = vr(QS + 2 * t, 2)
                dst = PK + 4 * (k % 4)
                k += 1
                for ti in range(2):
                    acc = 16 * (2 * p + ti) + 4 * t
                    sreg = 96 + 4 * (2 * p + ti)
                    for h in range(2):
                        b('v_pk_fma_f32 %s, %s, %s, %s op_sel:[0,0,0] op_sel_hi:[1,0,1]' % (vr(acc + 2 * h, 2), vr(sreg + 2 * h, 2), st, vr(acc + 2 * h, 2)))
                    for h in range(2):
                        b('v_pk_mul_f32 %s, %s, %s op_sel:[0,1] op_sel_hi:[1,1]' % (vr(acc + 2 * h, 2), vr(acc + 2 * h, 2), st))
                    for h in range(2):
                        b('v_cvt_pk_bf16_f32 %s, %s, %s' % (vr(dst + 2 * ti + h), vr(acc + 2 * h), vr(acc + 2 * h + 1)))
                for i in range(4):
                    b('v_pk_max_i16 %s, %s, 0' % (vr(dst + i), vr(dst + i)))
                b('s_add_u32 s57, %s, %d' % (sr(sHST), t * NKS * 1024 + p * 2048))
                b('buffer_store_dwordx4 %s, %s, %s, s57 offen %s' % (vr(dst, 4), vr(vL16), srd(WS_), OPT['hstf']), tag='hst')
        b.end_region()
        b(skip + ':')
        self.ts('epi')
        self.p2_issue()

    RING, XR = 64, 192
    vHT, vH8, vH9, vH10, vP = 243, 244, 245, 246, 247

    def hload(self, j, tp):
        base = self.RING + 16 * (j % 8) + 4 * tp
        kind, off = self.step_off(j)
        if j < 8:
            va, o = (vHB_ if kind == 'b' else vHA), off * 1024
        elif j < 11:
            va, o = {8: self.vH8, 9: self.vH9, 10: self.vH10}[j], 0
        else:
            va, o = self.vHT, off * 1024
        return 'buffer_load_dwordx4 %s, %s, %s, %s offen offset:%d %s' % (vr(base, 4), vr(va), srd(WS_), sr(sHB + tp), o, OPT['hld'])

    def p2_issue(self):
        b = self.b
        self.flags_check()
        for cp in range(4):
            b('buffer_load_dwordx2 %s, %s, %s, 0 offen offset:%d' % (vr(self.XR + 2 * cp, 2), vr(vXR), srd(X_), 32 * cp), tag='res')
        for j in range(8):
            for tp in TPO:
                b(self.hload(j, tp), tag='h%d_%d' % (j, tp))
        self.ts('ring')

    def verify_items(self, j, role):
        b = self.b
        base = self.RING + 16 * (j % 8)
        t = 248
        slow, back = 'L_slow_%s_%d' % (role, j), 'L_back_%s_%d' % (role, j)

        def p1():
            b('v_max3_u32 %s, %s, %s, %s' % (vr(t), vr(base), vr(base + 4), vr(base + 8)))

        def p2():
            b('v_max_u32 %s, %s, %s' % (vr(t), vr(t), vr(base + 12)))

        def p3():
            b('v_cmp_eq_u32 vcc, -1, %s' % vr(t))
            b('s_cbranch_vccnz %s' % slow)
            snap = [e['tag'] for e in b.vmq]
            b(back + ':')
            self.slow.append((j, slow, back, snap))
        return [blk(p1, 1), blk(p2, 1), blk(p3, 2)]

    def emit_slow(self):
        b = self.b
        for j, slow, back, snap in self.slow:
            b.vmq, b.lgq, b.smem_pending = [], [], []
            base = self.RING + 16 * (j % 8)
            end = 4 if j < 4 else 8 if j < 8 else 11 if j < 11 else 15
            mask = sum(1 << i for i in range(4 * j, 4 * end))
            again, ready = slow + '_a', slow + '_r'
            b('s_nop 0')
            b(slow + ':')
            b('s_mov_b32 %s, 0' % sr(sCNT))
            b(again + ':')
            b('buffer_load_dword %s, %s, %s, 0 offen sc1' % (vr(self.vP), vr(vPO), srd(WS_)))
            b('s_waitcnt vmcnt(0)')
            b('v_cmp_eq_u32 vcc, -1, %s' % vr(self.vP))
            b('s_and_b32 s54, vcc_lo, 0x%x' % (mask & 0xffffffff))
            b('s_and_b32 s55, vcc_hi, 0x%x' % (mask >> 32))
            b('s_or_b32 s54, s54, s55')
            b('s_cbranch_scc0 %s' % ready)
            b('s_add_u32 %s, %s, 1' % (sr(sCNT), sr(sCNT)))
            b('s_cmp_lt_u32 %s, %d' % (sr(sCNT), OPT['poll_limit']))
            b('s_cbranch_scc1 %s' % again)
            b(ready + ':')
            b.begin_region()
            for tp in TPO:
                b(self.hload(j, tp))
            for tag in snap:
                if tag and tag.startswith('h') and '_' in tag and tag[1].isdigit():
                    jj, tp = tag[1:].split('_')
                    b(self.hload(int(jj), int(tp)))
                else:
                    b('buffer_load_dword %s, off, %s, 0' % (vr(249), srd(WS_)))
            b.end_region()
            b.vmq = []
            b('s_waitcnt vmcnt(%d)' % min(len(snap), 63))
            b('v_max3_u32 %s, %s, %s, %s' % (vr(248), vr(base), vr(base + 4), vr(base + 8)))
            b('v_max_u32 %s, %s, %s' % (vr(248), vr(248), vr(base + 12)))
            b('v_cmp_eq_u32 vcc, -1, %s' % vr(248))
            b('s_cbranch_vccz %s' % back)
            b('s_add_u32 %s, %s, 1' % (sr(sCNT), sr(sCNT)))
            b('s_cmp_lt_u32 %s, %d' % (sr(sCNT), OPT['poll_limit']))
            b('s_cbranch_scc1 %s' % again)
            b('s_branch %s' % back)
        self.slow = []

    def phase2(self, role):
        b = self.b
        RING, XR = self.RING, self.XR
        for it in self.verify_items(0, role):
            it()
        self.ts('ver0')
        tr = self.w2_tr(3) + self.w2_tr(4) + self.w2_tr(5)
        for j in range(15):
            base = RING + 16 * (j % 8)
            self.ts('p%d' % j)
            mf = []
            for tp in TPO:
                for cp in range(4):
                    acc = 16 * tp + 4 * cp
                    cin = vr(acc, 4) if (j > 0 or tp == 0) else '0'
                    mf.append('%s %s, %s, %s, %s' % (MF, vr(acc, 4), ar(16 * j + 4 * cp, 4), vr(base + 4 * tp, 4), cin))
            G = 16
            slots = [[] for _ in range(G)]
            if j == 0:
                adr = ['v_add_u32 %s, 0x1000, %s' % (vr(self.vH8), vr(vHA)),
                       'v_add_u32 %s, 0x1000, %s' % (vr(self.vH10), vr(vHB_)),
                       's_cmp_eq_u32 %s, 3' % sr(sW),
                       's_cselect_b32 s54, %d, 1024' % OOB,
                       'v_add_u32 %s, s54, %s' % (vr(self.vH9), vr(self.vH8)),
                       's_lshl_b32 s54, %s, 12' % sr(sW),
                       's_add_u32 s54, s54, %d' % (43 * 1024),
                       'v_add_u32 %s, s54, %s' % (vr(self.vHT), vr(vL16))]
                slots[0] += [one(adr[0])]
                res = []
                for cp in range(4):
                    for h in range(2):
                        x = XR + 2 * cp + h
                        res.append(one('v_lshlrev_b32 %s, 16, %s' % (vr(4 * cp + 2 * h), vr(x))))
                        res.append(one('v_and_b32 %s, 0xffff0000, %s' % (vr(4 * cp + 2 * h + 1), vr(x))))
                k = 0
                for g in (0, 1, 1, 2, 2, 4, 4, 5, 5, 6, 6, 8, 8, 9, 9, 10):
                    slots[g].append(res[k])
                    k += 1
                slots[12] += [one(adr[1]), one(adr[2]) + one(adr[3]) + one(adr[4])]
                slots[13] += [one(adr[5]) + one(adr[6]) + one(adr[7])]
            if j + 8 < 15:
                for i, tp in enumerate(TPO):
                    slots[4 * i + 3].append(one(self.hload(j + 8, tp), 'h%d_%d' % (j + 8, tp)))
            if 1 <= j <= 10:
                mine, tr = tr[:6], tr[6:]
                for g, it in zip((0, 1, 2, 4, 5, 6), mine):
                    slots[g].append(it)
            if j < 14:
                v = self.verify_items(j + 1, role)
                slots[12].insert(0, v[0])
                slots[13].insert(0, v[1])
                slots[14].insert(0, v[2])
            for i, m in enumerate(mf):
                b(m)
                for it in slots[i]:
                    self.emit(it)
        assert not tr
        self.ts('p2loop')
        vRR = T + 13
        FL = T + 8
        b('v_add_u32 %s, %s, %s' % (vr(vRR), sr(sW2L), vr(vL16)))
        b('v_add_u32 %s, %d, %s' % (vr(vRR + 1), 2 * SLOT, vr(vRR)))
        for tp in range(1, 4):
            for cp in range(4):
                if tp < 3:
                    b('ds_write_b128 %s, %s offset:%d' % (vr(vRR), vr(16 * tp + 4 * cp, 4), (tp - 1) * SLOT + cp * 1024), tag='rw')
                else:
                    b('ds_write_b128 %s, %s offset:%d' % (vr(vRR + 1), vr(16 * tp + 4 * cp, 4), cp * 1024), tag='rw')
        for tp in range(1, 4):
            b('s_sub_u32 s54, %s, %d' % (sr(sW), tp))
            b('s_and_b32 s54, s54, 3')
            b('s_mul_i32 s54, s54, %d' % REG)
            b('s_add_u32 s54, s54, %d' % (SLOT0 + (tp - 1) * SLOT))
            b('v_add_u32 %s, s54, %s' % (vr(FL + tp), vr(vL16)))
        b.wait_lg('rw')
        b('s_barrier')
        RD = 64
        for tp in range(1, 4):
            for cp in range(4):
                b('ds_read_b128 %s, %s offset:%d' % (vr(RD + 16 * (tp - 1) + 4 * cp, 4), vr(FL + tp), cp * 1024), tag='rr')
        for tp in range(1, 4):
            for cp in range(4):
                for h in range(2):
                    r = 4 * cp + 2 * h
                    b('v_pk_add_f32 %s, %s, %s' % (vr(r, 2), vr(r, 2), vr(RD + 16 * (tp - 1) + r, 2)))
        PK = 16
        for cp in range(4):
            for h in range(2):
                b('v_cvt_pk_bf16_f32 %s, %s, %s' % (vr(PK + 2 * cp + h), vr(4 * cp + 2 * h), vr(4 * cp + 2 * h + 1)))
        for pr in range(2):
            p0, p1 = PK + 4 * pr, PK + 4 * pr + 2
            b('v_permlane16_swap_b32 %s, %s' % (vr(p0), vr(p1)))
            b('v_permlane16_swap_b32 %s, %s' % (vr(p0 + 1), vr(p1 + 1)))
        for pr in range(2):
            p0 = PK + 4 * pr
            b('buffer_store_dwordx4 %s, %s, %s, 0 offen offset:%d' % (vr(p0, 4), vr(vO), srd(OUT_), 64 * pr), tag='out')
        if OPT['stamps']:
            self.ts('end')
            n = len(OPT['stamps'].split(','))
            b('s_lshl_b32 s54, s2, 2')
            b('s_add_u32 s54, s54, %s' % sr(sW))
            b('s_lshl_b32 s54, s54, 7')
            b('s_add_u32 s54, s54, %d' % WS_FINE)
            b('s_mov_b32 s14, %d' % (WS_FINE + (1 << 20)))
            b('s_mov_b64 exec, 1')
            b('s_waitcnt lgkmcnt(0)')
            for i in range(n):
                b('v_mov_b32 %s, %s' % (vr(32 + i), sr(sTS + (2 if OPT['fst'] else 1) * i)))
                b('buffer_store_dword %s, off, %s, s54 offset:%d' % (vr(32 + i), srd(WS_), 4 * i))
            b('s_mov_b64 exec, -1')
        b('s_endpgm')

    def kernel(self):
        b = self.b
        self.prologue()
        b('s_cmp_lg_u32 %s, 0' % sr(sROLE))
        b('s_cbranch_scc1 L_mlp')
        st = self.save()
        for att, role in ((True, 'a'), (False, 'm')):
            if not att:
                b('L_mlp:')
                self.restore(st)
                b('s_nop 7')
            b.comment('attention workgroups' if att else 'MLP workgroups')
            self.role_prologue(att)
            self.main_loop(att)
            self.ts('loop')
            if att:
                self.att_epilogue()
            else:
                self.mlp_epilogue()
            self.phase2(role)
            self.emit_slow()
        b('L_end:')
        b('s_endpgm')
        b.finalize()
        return b.text()


HEADER = '''; LayerNorm + (dilated sliding-window attention || ReLU MLP) + residual, one persistent launch.
; @launch grid=(256,1,1) block=(256,1,1) lds=%d
.amdgcn_target "amdgcn-amd-amdhsa--gfx950"
.text
.globl %s_kernel
.p2align 8
.type %s_kernel,@function
%s_kernel:
'''
FOOTER = '''.section .rodata,"a"
.p2align 6
.amdhsa_kernel %s_kernel
  .amdhsa_next_free_vgpr 512
  .amdhsa_next_free_sgpr 102
  .amdhsa_accum_offset 256
  .amdhsa_group_segment_fixed_size 0
  .amdhsa_kernarg_size 72
  .amdhsa_user_sgpr_count 2
  .amdhsa_user_sgpr_kernarg_segment_ptr 1
  .amdhsa_system_sgpr_workgroup_id_x 1
.end_amdhsa_kernel
'''


def build(**opt):
    OPT.update(opt)
    g = Gen()
    body = g.kernel()
    extra = '; stamps: %s\n' % OPT['stamps'] if OPT['stamps'] else ''
    return extra + HEADER % (LDS_BYTES, NAME, NAME, NAME) + body + FOOTER % NAME


if __name__ == '__main__':
    out = sys.argv[1] if len(sys.argv) > 1 else 'k2.s'
    opt = {}
    for a in sys.argv[2:]:
        k, v = a.split('=')
        opt[k] = v if k in ('stamps', 'poison', 'hld', 'hstf') else tuple(int(x) for x in v.split(',')) if k == 'pfu' else int(v)
    open(out, 'w').write(build(**opt))
    print('wrote', out)
```

```python
import copy
import sys
from asmb import Builder

NAME = 'parallel_sum__sliding_local_dilated__dense_activation_relu__prompt'

OPT = dict(hld='sc1', hstf='sc1', pfu=(4, 6, 8), fst=0, poll_limit=4000, stamps='', abl=0, poison='even', pf=3, late2=1, ost='', owarm=0, cpf=0, sparse=0, bg_att=4, bg_mlp=3, verbose=0)
WS_FINE = 8 << 20

SLOT0, SLOT, WOFF = 1024, 43008, 18432
REG = 10752
ST = 132096
STR = 576
OX = 134144
SX = 150528
LDS_BYTES = 163840

WS_STATS, WS_D, H_OFF = 0, 32768, 131072
NKS = 59
WS_BYTES = H_OFF + 128 * NKS * 1024
OOB = 0x40000000

X_, W_, WS_, DBG_, W2_, WO_, OUT_ = 4, 8, 12, 16, 20, 24, 28
sW, sRB, sGRP, sROLE = 32, 33, 34, 35
sWOFF = 36
sW2A, sW2B, sW2C, sWOB, sFLC = 36, 37, 38, 39, 41
sXOFF, sXL, sWL, sHL, sWSTEP, sC = 42, 43, 44, 45, 46, 47
sW2L = 44
sHM = 48
sHST, sFL, sU = 50, 51, 53
sNON = 58
sP, sC0, sC1, sZ = 60, 62, 64, 66
sRT, sCT = 68, 69
sHB = 70
sPS, sCNT = 74, 75
sTS = 76
sTH, sNP = 100, 101


def srd(n):
    return 's[%d:%d]' % (n, n + 3)


def vr(a, n=1):
    return 'v%d' % a if n == 1 else 'v[%d:%d]' % (a, a + n - 1)


def ar(a, n=1):
    return 'a%d' % a if n == 1 else 'a[%d:%d]' % (a, a + n - 1)


def sr(a, n=1):
    return 's%d' % a if n == 1 else 's[%d:%d]' % (a, a + n - 1)


vONES = 212
vXA, vXB, vWA, vWB = 216, 217, 218, 219
vDX = 220
vDH, vDW = 224, 225
vSO, vG, vGL = 226, 227, 238
vGR = 228
vLD = 232
vNON = 236
vL = 239
T = 240
vL16 = 240
vHA, vHB_, vFA = 241, 242, 243
vROW = 244
vXR, vPO, vO = 226, 236, 237
vTB2, vTB01 = 228, 232
vFLG = 222
aPOIS = 252

MF = 'v_mfma_f32_16x16x32_bf16'
MF16 = 'v_mfma_f32_16x16x16_bf16'
TPO = [1, 2, 3, 0]


def one(t, tag=None):
    return [(t, tag)]


def size_of(it):
    if callable(it):
        return getattr(it, 'size', 2)
    return len(it)


def blk(fn, size=2):
    def w():
        fn()
    w.size = size
    return w


class Gen:
    def __init__(self):
        self.b = Builder()
        self.slow = []

    def ts(self, name):
        names = OPT['stamps'].split(',') if OPT['stamps'] else []
        if name + '@' in names and OPT['fst']:
            from asmb import Ins
            k = sTS + 2 * names.index(name + '@')
            i = Ins('s_memtime s[%d:%d]' % (k, k + 1), region=self.b.region)
            i.w = []
            self.b.ins.append(i)
        if name not in names:
            return
        b = self.b
        if OPT['fst']:
            from asmb import Ins
            k = sTS + 2 * names.index(name)
            i = Ins('%s s[%d:%d]' % ('s_memtime' if OPT['fst'] == 2 else 's_memrealtime', k, k + 1), region=b.region)
            i.w = []
            b.ins.append(i)
            return
        b.wait_lg()
        b('s_memrealtime s[98:99]')
        b('s_waitcnt lgkmcnt(0)')
        b('s_mov_b32 %s, s98' % sr(sTS + names.index(name)))

    def save(self):
        b = self.b
        return copy.deepcopy((b.vmq, b.lgq, b.smem_pending))

    def restore(self, st):
        b = self.b
        b.vmq, b.lgq, b.smem_pending = copy.deepcopy(st)

    def emit(self, it):
        if callable(it):
            it()
        else:
            for t, tag in it:
                self.b(t, tag=tag)

    def schedule(self, mf, streams, G, name=''):
        slots = [[] for _ in range(G)]
        load = [0] * G
        for st in streams:
            items = st['items']
            if not items:
                continue
            lo, hi = st.get('lo', 0), min(st.get('hi', G - 1), G - 1)
            mind = st.get('mind', 0)
            n = len(items)
            prev = lo - mind
            for i, it in enumerate(items):
                sz = size_of(it)
                tgt = lo + int((i + st.get('ph', 0.5)) * (hi - lo + 1) / n)
                g0 = max(prev + mind, lo)
                cands = sorted(range(min(g0, G - 1), G), key=lambda g: (abs(g - tgt), g))
                pick = None
                for cap in (2, 3, 4, 99):
                    for g in cands:
                        if abs(g - tgt) > 3 and cap < 99 and g > tgt:
                            continue
                        if g < tgt - 1 and cap < 99:
                            continue
                        if load[g] + sz <= cap or (load[g] == 0 and sz > cap and cap == 2):
                            pick = g
                            break
                    if pick is not None:
                        break
                slots[pick].append(it)
                load[pick] += sz
                prev = pick
        if OPT['verbose']:
            print('%-8s' % name, ''.join(str(min(x, 9)) for x in load), sum(load), file=sys.stderr)
        for i, m in enumerate(mf):
            if callable(m):
                m()
            else:
                self.b(m)
            if i < G:
                for it in slots[i]:
                    self.emit(it)

    def poll_loop(self, load_text, check, name):
        b = self.b
        ok = b.label_name(name + '_ok')
        again = b.label_name(name + '_again')
        check()
        b('s_cbranch_scc1 %s' % ok)
        b.begin_region()
        b('s_mov_b32 %s, 0' % sr(sCNT))
        b(again + ':')
        b('s_sleep 1')
        b(load_text)
        b('s_waitcnt vmcnt(0)')
        check()
        b('s_cbranch_scc1 %s' % ok)
        b('s_add_u32 %s, %s, 1' % (sr(sCNT), sr(sCNT)))
        b('s_cmp_lt_u32 %s, %d' % (sr(sCNT), OPT['poll_limit']))
        b('s_cbranch_scc1 %s' % again)
        b.end_region()
        b(ok + ':')

    def prologue(self):
        b = self.b
        b('s_cmp_ge_u32 s2, 256')
        b('s_cbranch_scc1 L_end')
        b('s_lshr_b32 %s, s2, 4' % sr(sROLE))
        b('s_and_b32 %s, %s, 1' % (sr(sROLE), sr(sROLE)))
        b('s_cmp_eq_u32 %s, 0' % sr(sROLE))
        b('s_cselect_b32 s3, 8, 32')
        b('s_load_dwordx2 s[4:5], s[0:1], 0')
        b('s_load_dwordx2 s[8:9], s[0:1], s3')
        b('s_load_dwordx2 s[12:13], s[0:1], 64')
        b('s_load_dwordx2 s[16:17], s[0:1], 56')
        b('s_load_dwordx2 s[20:21], s[0:1], 40')
        b('s_load_dwordx2 s[24:25], s[0:1], 16')
        b('s_load_dwordx2 s[28:29], s[0:1], 48')
        b('s_memrealtime %s' % sr(sNON, 2))
        vl, L3, L7, g, n, a, c = vL, 1, 2, 3, 4, 5, 6
        self.pv = dict(l=vl, L3=L3, L7=L7, g=g, n=n, a=a, c=c)
        b('v_and_b32 %s, 63, v0' % vr(vl))
        b('v_lshrrev_b32 %s, 6, v0' % vr(a))
        b('v_lshrrev_b32 %s, 3, %s' % (vr(L3), vr(vl)))
        b('v_readfirstlane_b32 %s, %s' % (sr(sW), vr(a)))
        b('v_and_b32 %s, 7, %s' % (vr(L7), vr(vl)))
        b('v_lshrrev_b32 %s, 4, %s' % (vr(g), vr(vl)))
        b('v_and_b32 %s, 15, %s' % (vr(n), vr(vl)))
        b('s_mov_b32 s6, 0x200000')
        b('s_mov_b32 s7, 0x20000')
        b('s_cmp_eq_u32 %s, 0' % sr(sROLE))
        b('s_mov_b32 s10, %d' % (512 * 2752))
        b('s_cselect_b32 s10, %d, s10' % (512 * 3072))
        b('s_mov_b32 s11, 0x20000')
        b('s_and_b32 s54, s2, 7')
        b('s_lshr_b32 s55, s2, 3')
        b('s_and_b32 s56, s54, 1')
        b('s_lshl_b32 s56, s56, 3')
        b('s_lshr_b32 s57, s55, 2')
        b('s_add_u32 %s, s56, s57' % sr(sRB))
        b('s_and_b32 s56, s54, 6')
        b('s_and_b32 s57, s55, 1')
        b('s_add_u32 %s, s56, s57' % sr(sGRP))
        b('s_lshl_b32 s56, s54, 2')
        b('s_lshr_b32 s57, s55, 3')
        b('s_add_u32 %s, s56, s57' % sr(sRT))
        b('s_and_b32 %s, s55, 7' % sr(sCT))
        b('s_lshr_b32 s54, %s, 1' % sr(sGRP))
        b('s_mul_i32 s54, s54, 11')
        b('s_and_b32 s55, %s, 1' % sr(sGRP))
        b('s_mul_i32 s56, s55, 6')
        b('s_add_u32 s54, s54, s56')
        b('s_cmp_eq_u32 %s, 7' % sr(sGRP))
        b('s_subb_u32 %s, s54, 0' % sr(sPS))
        b('s_cmp_eq_u32 %s, 6' % sr(sGRP))
        b('s_cselect_b32 s56, 1, s55')
        b('s_sub_u32 %s, 6, s56' % sr(sNP))
        b('s_lshl_b32 s54, %s, 7' % sr(sRB))
        b('s_lshl_b32 s55, %s, 5' % sr(sW))
        b('s_add_u32 s55, s55, s54')
        b('v_add_u32 %s, s55, %s' % (vr(a), vr(L3)))
        b('v_xor_b32 %s, %s, %s' % (vr(c), vr(L7), vr(g)))
        b('v_lshlrev_b32 %s, 4, %s' % (vr(c), vr(c)))
        b('v_lshl_add_u32 %s, %s, 10, %s' % (vr(vDX), vr(a), vr(c)))
        b('v_add_u32 %s, 0x2000, %s' % (vr(vDX + 1), vr(vDX)))
        b('v_xor_b32 %s, 64, %s' % (vr(vDX + 1), vr(vDX + 1)))
        b('v_add_u32 %s, 0x4000, %s' % (vr(vDX + 2), vr(vDX)))
        b('v_add_u32 %s, 0x4000, %s' % (vr(vDX + 3), vr(vDX + 1)))
        b('s_and_b32 s55, %s, 1' % sr(sW))
        b('s_lshl_b32 s55, s55, 4')
        b('s_lshr_b32 s56, %s, 1' % sr(sW))
        b('s_lshl_b32 s56, s56, 2')
        b('s_add_u32 s55, s55, s56')
        b('v_lshrrev_b32 %s, 5, %s' % (vr(a), vr(vl)))
        b('v_lshlrev_b32 %s, 3, %s' % (vr(a), vr(a)))
        b('v_and_b32 %s, 3, %s' % (vr(c), vr(L3)))
        b('v_add3_u32 %s, %s, %s, s55' % (vr(a), vr(a), vr(c)))
        b('v_lshlrev_b32 %s, 1, %s' % (vr(c), vr(g)))
        b('v_xor_b32 %s, %s, %s' % (vr(c), vr(L7), vr(c)))
        b('v_lshlrev_b32 %s, 4, %s' % (vr(c), vr(c)))
        b('s_cmp_eq_u32 %s, 0' % sr(sROLE))
        b('s_mov_b32 s56, 2752')
        b('s_cselect_b32 s56, 3072, s56')
        b('s_lshl_b32 s57, %s, 7' % sr(sGRP))
        b('s_lshl_b32 s52, %s, 6' % sr(sPS))
        b('s_cmp_eq_u32 %s, 0' % sr(sROLE))
        b('s_cselect_b32 s57, s57, s52')
        b('s_mov_b32 s55, 128')
        b('s_cselect_b32 s55, 1024, s55')
        b('v_add_u32 %s, s57, %s' % (vr(c), vr(c)))
        b('v_mad_u32_u24 %s, %s, s56, %s' % (vr(vDW), vr(a), vr(c)))
        b('s_mov_b32 s36, 0')
        b('s_mov_b32 s37, s55')
        b('s_lshl_b32 s38, s55, 1')
        b('s_lshl_b32 s39, s56, 5')
        b('s_add_u32 s40, s39, s37')
        b('s_add_u32 s41, s39, s38')
        b('s_lshl_b32 %s, s56, 6' % sr(sWSTEP))
        b('s_mov_b32 %s, 0' % sr(sXOFF))
        b('s_lshl_b32 s54, %s, 12' % sr(sW))
        b('s_add_u32 %s, s54, %d' % (sr(sXL), SLOT0 + 2048))
        b('s_mul_i32 s54, %s, 6144' % sr(sW))
        b('s_add_u32 %s, s54, %d' % (sr(sWL), SLOT0 + WOFF))

    def halo_setup(self):
        b = self.b
        pv = self.pv
        L3, L7, g, a, c = (pv[k] for k in ('L3', 'L7', 'g', 'a', 'c'))
        b('s_lshl_b32 s54, %s, 9' % sr(sW))
        b('s_add_u32 %s, s54, %d' % (sr(sHL), SLOT0))
        b('s_lshl_b32 s54, %s, 7' % sr(sRB))
        b('s_lshl_b32 s55, %s, 2' % sr(sW))
        b('s_add_u32 s55, s55, s54')
        b('s_sub_u32 s55, s55, 16')
        b('v_add_u32 %s, s55, %s' % (vr(a), vr(L3)))
        b('v_max_i32 %s, 0, %s' % (vr(a), vr(a)))
        b('s_lshl_b32 s56, %s, 1' % sr(sW))
        b('v_add_u32 %s, s56, %s' % (vr(c), vr(g)))
        b('v_xor_b32 %s, %s, %s' % (vr(c), vr(L7), vr(c)))
        b('v_and_b32 %s, 7, %s' % (vr(c), vr(c)))
        b('v_lshlrev_b32 %s, 4, %s' % (vr(c), vr(c)))
        b('v_lshl_add_u32 %s, %s, 10, %s' % (vr(vDH), vr(a), vr(c)))
        b('s_cmp_eq_u32 %s, 0' % sr(sW))
        b('s_cselect_b32 %s, 0xffffff00, -1' % sr(sHM))
        b('s_mov_b32 %s, 0' % sr(sHM + 1))

    def srd_rest(self):
        return ['s_mov_b32 s14, %d' % WS_BYTES, 's_mov_b32 s15, 0x20000',
                's_mov_b32 s18, 256', 's_mov_b32 s19, 0x20000',
                's_mov_b32 s22, %d' % (1376 * 1024), 's_mov_b32 s23, 0x20000',
                's_mov_b32 s26, %d' % (512 * 1024), 's_mov_b32 s27, 0x20000',
                's_mov_b32 s30, 0x200000', 's_mov_b32 s31, 0x20000']

    def dma_items(self, att, s):
        slot = SLOT * (s % 3)
        tag = 'st%d' % s
        items = []
        for j in range(4):
            items.append((one('s_add_u32 m0, %s, %d' % (sr(sXL), slot + j * 1024)),
                          one('buffer_load_dwordx4 %s, %s, %s offen lds' % (vr(vDX + j), srd(X_), sr(sXOFF)), tag)))
        if att:
            items.append((one('s_add_u32 m0, %s, %d' % (sr(sHL), slot)),
                          [('s_mov_b64 exec, %s' % sr(sHM, 2), None),
                           ('buffer_load_dwordx4 %s, %s, %s offen lds' % (vr(vDH), srd(X_), sr(sXOFF)), tag),
                           ('s_mov_b64 exec, -1', None)]))
        for bb in range(2):
            for p in range(3):
                items.append((one('s_add_u32 m0, %s, %d' % (sr(sWL), slot + (3 * bb + p) * 1024)),
                              one('buffer_load_dwordx4 %s, %s, %s offen lds' % (vr(vDW), srd(W_), sr(sWOFF + 3 * bb + p)), tag)))
        tail = [one('v_add_u32 %s, %s, %s' % (vr(vDW), sr(sWSTEP), vr(vDW))),
                one('s_add_u32 %s, %s, 128' % (sr(sXOFF), sr(sXOFF)))]
        return items, tail

    def dma_half(self, att, s, half):
        items, tail = self.dma_items(att, s)
        k = len(items) - 5
        part = items[:k] if half == 0 else items[k:]
        out = []
        for pre, ld in part:
            out += [pre, ld]
        if half == 1:
            out += tail
        return out

    def stats_items(self):
        t = 252
        s0, s1, q0, q1 = t, t + 1, t + 2, t + 3
        o = []
        for i in range(8):
            x = vr(vROW + i)
            sa = vr(s0 if i % 2 == 0 else s1)
            qa = vr(q0 if i % 2 == 0 else q1)
            o.append('v_dot2_f32_bf16 %s, %s, %s, %s' % (sa, x, vr(vONES), sa if i >= 2 else '0'))
            o.append('v_dot2_f32_bf16 %s, %s, %s, %s' % (qa, x, x, qa if i >= 2 else '0'))
        o.append('v_add_f32 %s, %s, %s' % (vr(s0), vr(s0), vr(s1)))
        o.append('v_add_f32 %s, %s, %s' % (vr(q0), vr(q0), vr(q1)))
        for sh in (8, 4, 2, 1):
            o.append('v_add_f32_dpp %s, %s, %s row_ror:%d row_mask:0xf bank_mask:0xf' % (vr(s0), vr(s0), vr(s0), sh))
            o.append('v_add_f32_dpp %s, %s, %s row_ror:%d row_mask:0xf bank_mask:0xf' % (vr(q0), vr(q0), vr(q0), sh))
        o.append('v_mov_b32 %s, %s' % (vr(s1), vr(s0)))
        o.append('v_mov_b32 %s, %s' % (vr(q1), vr(q0)))
        o.append('v_permlane16_swap_b32 %s, %s' % (vr(s0), vr(s1)))
        o.append('v_permlane16_swap_b32 %s, %s' % (vr(q0), vr(q1)))
        o.append('v_add_f32 %s, %s, %s' % (vr(s0), vr(s0), vr(s1)))
        o.append('v_add_f32 %s, %s, %s' % (vr(q0), vr(q0), vr(q1)))
        o.append('v_mul_f32 %s, 0xbb000000, %s' % (vr(vGR), vr(s0)))
        o.append('v_mul_f32 %s, 0x3b000000, %s' % (vr(q0), vr(q0)))
        o.append('v_fma_f32 %s, -%s, %s, %s' % (vr(q0), vr(vGR), vr(vGR), vr(q0)))
        o.append('v_max_f32 %s, 0, %s' % (vr(q0), vr(q0)))
        o.append('v_add_f32 %s, 0x3727c5ac, %s' % (vr(q0), vr(q0)))
        o.append('v_rsq_f32 %s, %s' % (vr(vGR + 1), vr(q0)))
        return [one(x) for x in o]

    def nonce_text(self):
        return 'buffer_load_dwordx2 %s, off, %s, 0 sc1' % (vr(vNON, 2), srd(DBG_))

    def nonce_and_stats_store(self):
        b = self.b

        def check():
            b('v_readfirstlane_b32 %s, %s' % (sr(sNON), vr(vNON)))
            b('v_readfirstlane_b32 %s, %s' % (sr(sNON + 1), vr(vNON + 1)))
            b('s_cmp_lg_u32 %s, 0' % sr(sNON))
        self.poll_loop(self.nonce_text(), check, 'L_non')
        b('v_mov_b32 %s, %s' % (vr(vGR + 2), sr(sNON)))
        b('v_mov_b32 %s, %s' % (vr(vGR + 3), sr(sNON + 1)))
        b('s_mov_b32 exec_lo, 1')
        b('s_mov_b32 exec_hi, 1')
        b('buffer_store_dwordx4 %s, %s, %s, 0 offen sc1' % (vr(vGR, 4), vr(vSO), srd(WS_)), tag='sst')
        b('s_mov_b64 exec, -1')

    def gather_text(self):
        return 'buffer_load_dwordx4 %s, %s, %s, 0 offen sc1' % (vr(vLD, 4), vr(vG), srd(WS_))

    def gather_check(self):
        b = self.b

        def check():
            b('v_cmp_ne_u32 vcc, %s, %s' % (sr(sNON), vr(vLD + 2)))
            b('v_cmp_ne_u32 %s, %s, %s' % (sr(sZ, 2), sr(sNON + 1), vr(vLD + 3)))
            b('s_or_b64 vcc, vcc, %s' % sr(sZ, 2))
            b('s_cmp_eq_u64 vcc, 0')
        self.poll_loop(self.gather_text(), check, 'L_gat')
        b('ds_write_b32 %s, %s' % (vr(vGL), vr(vLD)), tag='stw')
        b('ds_write_b32 %s, %s offset:%d' % (vr(vGL), vr(vLD + 1), STR), tag='stw')

    def poison_items(self, att):
        out = []
        tmp = 56
        sp = OPT['sparse']
        if sp:
            vPZ = 109 if att else 201
            per = 1024 // sp
            sh = {16: 4, 32: 5}[per]
            n = 64 // per
            pre = ['v_lshrrev_b32 %s, %d, %s' % (vr(vPZ), sh, vr(vL)),
                   'v_mul_u32_u24 %s, %d, %s' % (vr(vPZ), NKS * 1024 // 64, vr(vPZ)),
                   'v_and_b32 %s, %d, %s' % (vr(vPZ + 1), per - 1, vr(vL)),
                   'v_mul_u32_u24 %s, %d, %s' % (vr(vPZ + 1), sp // 16, vr(vPZ + 1)),
                   'v_lshl_add_u32 %s, %s, 2, %s' % (vr(vPZ + 1), vr(vPZ), vr(vPZ + 1)),
                   'v_lshlrev_b32 %s, 4, %s' % (vr(vPZ), vr(vPZ + 1))]
            self.pz_pre = [one(x) for x in pre]
            for p in range(1 if att else 3):
                for t0 in range(0, 4, n):
                    it = []
                    base = sHST
                    if p == 2:
                        base = 57
                        it += [('s_lshr_b32 s57, %s, 1' % sr(sW), None), ('s_add_u32 s57, s57, 4', None),
                               ('s_cmp_ge_u32 s57, %s' % sr(sNP), None),
                               ('s_cselect_b32 s57, %d, %s' % (OOB, sr(sHST)), None)]
                    it += [('s_add_u32 %s, %s, %d' % (sr(tmp), sr(base), t0 * NKS * 1024 + p * 2048), None),
                           ('buffer_store_dword %s, %s, %s, %s offen sc1' % (ar(aPOIS), vr(vPZ), srd(WS_), sr(tmp)), 'poison')]
                    out.append(it)
            return out
        if att:
            for i in range(4):
                out.append([('s_add_u32 %s, %s, %d' % (sr(tmp), sr(sHST), i * NKS * 1024), None),
                            ('buffer_store_dwordx4 %s, %s, %s, %s offen sc1' % (ar(aPOIS, 4), vr(vL16), srd(WS_), sr(tmp)), 'poison')])
        else:
            for p in range(3):
                if p == 2:
                    out.append([('s_lshr_b32 s57, %s, 1' % sr(sW), None),
                                ('s_add_u32 s57, s57, 4', None),
                                ('s_cmp_ge_u32 s57, %s' % sr(sNP), None),
                                ('s_cselect_b32 s57, %d, %s' % (OOB, sr(sHST)), None)])
                for t in range(4):
                    base = 57 if p == 2 else sHST
                    out.append([('s_add_u32 %s, %s, %d' % (sr(tmp), sr(base), t * NKS * 1024 + p * 2048), None),
                                ('buffer_store_dwordx4 %s, %s, %s, %s offen sc1' % (ar(aPOIS, 4), vr(vL16), srd(WS_), sr(tmp)), 'poison')])
        return out

    def flag_store(self):
        b = self.b
        b.wait_vm('poison')
        b('v_mov_b32 %s, %s' % (vr(vLD), sr(sNON)))
        b('v_mov_b32 %s, %s' % (vr(vLD + 1), sr(sNON + 1)))
        b('s_mov_b64 exec, 1')
        b('buffer_store_dwordx2 %s, off, %s, %s sc1' % (vr(vLD, 2), srd(WS_), sr(sFL)), tag='flag')
        b('s_mov_b64 exec, -1')

    def setup_items(self, att):
        pv = self.pv
        l, L3, L7, g, n, a, c = (pv[k] for k in ('l', 'L3', 'L7', 'g', 'n', 'a', 'c'))
        d = 7
        o = []
        A = o.append
        A('s_lshl_b32 s54, %s, 7' % sr(sRB))
        A('s_lshl_b32 s55, %s, 3' % sr(sROLE))
        A('s_add_u32 s55, s55, %s' % sr(sGRP))
        A('s_lshl_b32 s55, s55, 3')
        A('s_add_u32 s55, s55, s54')
        A('s_lshl_b32 s56, %s, 1' % sr(sW))
        A('s_add_u32 s55, s55, s56')
        A('v_lshrrev_b32 %s, 5, %s' % (vr(a), vr(l)))
        A('v_add_u32 %s, s55, %s' % (vr(a), vr(a)))
        A('v_lshlrev_b32 %s, 4, %s' % (vr(vSO), vr(a)))
        A('v_and_b32 %s, 31, %s' % (vr(c), vr(l)))
        A('v_lshlrev_b32 %s, 4, %s' % (vr(c), vr(c)))
        A('v_lshl_add_u32 %s, %s, 10, %s' % (vr(11), vr(a), vr(c)))
        A(('buffer_load_dwordx4 %s, %s, %s, 0 offen' % (vr(vROW, 4), vr(11), srd(X_)), 'srow'))
        A(('buffer_load_dwordx4 %s, %s, %s, 0 offen offset:512' % (vr(vROW + 4, 4), vr(11), srd(X_)), 'srow'))
        first = len(o)
        A('v_lshlrev_b32 %s, 4, %s' % (vr(vL16), vr(l)))
        for i in range(4):
            A('v_mov_b32 %s, 0x3f803f80' % vr(vONES + i))
        if att:
            A('v_add_u32 %s, %d, %s' % (vr(a), 2 * SLOT, vr(vL16)))
            A([('s_mov_b64 exec, 0xff', None),
               ('ds_write_b128 %s, %s offset:%d' % (vr(vL16), vr(vONES, 4), SLOT0), 'ones'),
               ('ds_write_b128 %s, %s offset:%d' % (vr(vL16), vr(vONES, 4), SLOT0 + SLOT), 'ones'),
               ('ds_write_b128 %s, %s offset:%d' % (vr(a), vr(vONES, 4), SLOT0), 'ones'),
               ('s_mov_b64 exec, -1', None)])
        A('v_lshrrev_b32 %s, 1, %s' % (vr(a), vr(n)))
        A('v_xor_b32 %s, %s, %s' % (vr(a), vr(a), vr(g)))
        A('v_lshlrev_b32 %s, 4, %s' % (vr(a), vr(a)))
        A('v_lshl_add_u32 %s, %s, 7, %s' % (vr(a), vr(n), vr(a)))
        if att:
            A('v_add_u32 %s, %d, %s' % (vr(vXA), SLOT0, vr(a)))
        else:
            A('s_and_b32 %s, %s, 1' % (sr(sTH), sr(sW)))
            A('s_lshl_b32 s54, %s, 13' % sr(sTH))
            A('s_add_u32 s54, s54, %d' % (SLOT0 + 2048))
            A('v_add_u32 %s, s54, %s' % (vr(vXA), vr(a)))
        A('v_xor_b32 %s, 64, %s' % (vr(vXB), vr(vXA)))
        r_, cc = d, d + 1
        A('v_bfe_u32 %s, %s, 2, 2' % (vr(r_), vr(l)))
        A('v_and_b32 %s, 3, %s' % (vr(cc), vr(l)))
        A('v_and_b32 %s, 1, %s' % (vr(a), vr(g)))
        A('v_lshl_add_u32 %s, %s, 2, %s' % (vr(a), vr(a), vr(r_)))
        A('v_lshrrev_b32 %s, 1, %s' % (vr(c), vr(a)))
        A('v_lshlrev_b32 %s, 1, %s' % (vr(c), vr(c)))
        if att:
            A('s_lshl_b32 s54, %s, 1' % sr(sW))
        else:
            A('s_and_b32 s54, %s, 2' % sr(sW))
            A('s_lshl_b32 s54, s54, 1')
        A('v_xor_b32 %s, s54, %s' % (vr(c), vr(c)))
        A('v_lshrrev_b32 %s, 1, %s' % (vr(d + 2), vr(cc)))
        A('v_add_u32 %s, %s, %s' % (vr(c), vr(c), vr(d + 2)))
        A('v_lshlrev_b32 %s, 4, %s' % (vr(c), vr(c)))
        A('v_lshl_add_u32 %s, %s, 7, %s' % (vr(c), vr(a), vr(c)))
        A('v_and_b32 %s, 1, %s' % (vr(a), vr(cc)))
        A('v_lshl_add_u32 %s, %s, 3, %s' % (vr(c), vr(a), vr(c)))
        A('v_lshrrev_b32 %s, 1, %s' % (vr(a), vr(g)))
        A('s_mov_b32 s54, 6144')
        A('v_mad_u32_u24 %s, %s, s54, %s' % (vr(c), vr(a), vr(c)))
        A('v_add_u32 %s, %d, %s' % (vr(vWA), SLOT0 + WOFF, vr(c)))
        if not att:
            A('v_xor_b32 %s, 32, %s' % (vr(vWB), vr(vWA)))
        if att:
            A('v_min_u32 %s, 35, %s' % (vr(a), vr(l)))
            A('s_mul_i32 s54, %s, 36' % sr(sW))
        else:
            A('v_min_u32 %s, 31, %s' % (vr(a), vr(l)))
            A('s_lshl_b32 s54, %s, 5' % sr(sW))
            A('s_add_u32 s54, s54, 16')
        A('v_add_u32 %s, s54, %s' % (vr(a), vr(a)))
        A('v_lshlrev_b32 %s, 2, %s' % (vr(c), vr(a)))
        A('v_add_u32 %s, %d, %s' % (vr(vGL), ST, vr(c)))
        A('s_lshl_b32 s54, %s, 7' % sr(sRB))
        A('s_sub_u32 s54, s54, 16')
        A('v_add_u32 %s, s54, %s' % (vr(a), vr(a)))
        A('v_max_i32 %s, 0, %s' % (vr(a), vr(a)))
        A('v_lshlrev_b32 %s, 4, %s' % (vr(vG), vr(a)))
        A('s_lshl_b32 s54, %s, 3' % sr(sRB))
        A('s_and_b32 s55, %s, 1' % sr(sW))
        A('s_lshl_b32 s55, s55, 2')
        A('s_add_u32 s54, s54, s55')
        A('s_mul_i32 s54, s54, %d' % NKS)
        if att:
            A('s_lshl_b32 s55, %s, 1' % sr(sGRP))
            A('s_add_u32 s55, s55, 43')
            A('s_add_u32 s54, s54, s55')
        else:
            A('s_add_u32 s54, s54, %s' % sr(sPS))
        A('s_lshr_b32 s55, %s, 1' % sr(sW))
        A('s_add_u32 s54, s54, s55')
        A('s_lshl_b32 s54, s54, 10')
        A('s_add_u32 %s, s54, %d' % (sr(sHST), H_OFF))
        A('s_lshl_b32 s54, %s, 1' % sr(sRB))
        A('s_and_b32 s55, %s, 1' % sr(sW))
        A('s_add_u32 s54, s54, s55')
        A('s_lshl_b32 s54, s54, 2')
        A('s_lshr_b32 s55, %s, 1' % sr(sGRP))
        A('s_add_u32 s54, s54, s55')
        A('s_lshl_b32 s54, s54, 4')
        A('s_and_b32 s55, %s, 1' % sr(sGRP))
        A('s_lshl_b32 s55, s55, 1')
        A('s_add_u32 s54, s54, s55')
        A('s_lshr_b32 s55, %s, 1' % sr(sW))
        A('s_add_u32 s54, s54, s55')
        A('s_lshl_b32 s54, s54, 3')
        A('s_add_u32 %s, s54, %d' % (sr(sFL), WS_D + (0 if att else 32)))
        for i in range(4):
            A('v_accvgpr_write_b32 %s, -1' % ar(aPOIS + i))
        items = []
        for x in o:
            if isinstance(x, list):
                items.append(x)
            elif isinstance(x, tuple):
                items.append([x])
            else:
                items.append(one(x))
        return items[:first], items[first:]

    def prefetch_items(self, att):
        l = vL
        vPF = 108 if att else 200
        o = ['s_lshr_b32 s54, s2, 3', 's_lshl_b32 s54, s54, 2', 's_add_u32 s54, s54, %s' % sr(sW),
             's_mul_i32 s55, s54, %d' % (86 * 128), 's_lshl_b32 s54, s54, 12',
             'v_lshlrev_b32 %s, 7, %s' % (vr(vPF), vr(l)), 'v_and_b32 %s, 0xfff, %s' % (vr(vPF + 1), vr(vPF)),
             'v_add_u32 %s, s55, %s' % (vr(vPF), vr(vPF)), 'v_add_u32 %s, s54, %s' % (vr(vPF + 1), vr(vPF + 1))]
        it = [one(x) for x in o]
        it.append(one('buffer_load_dword a240, %s, %s, 0 offen' % (vr(vPF), srd(W2_)), 'pf'))
        it.append(one('buffer_load_dword a241, %s, %s, 0 offen offset:2816' % (vr(vPF), srd(W2_)), 'pf'))
        it.append(one('buffer_load_dword a242, %s, %s, 0 offen' % (vr(vPF + 1), srd(WO_)), 'pf'))
        return it

    def bulk_prefetch(self, att):
        b = self.b
        vPF = 108 if att else 200
        b('s_and_b32 s54, s2, 15')
        b('s_lshr_b32 s55, s2, 5')
        b('s_lshl_b32 s55, s55, 4')
        b('s_or_b32 s54, s54, s55')
        b('s_lshl_b32 s54, s54, 2')
        b('s_add_u32 s54, s54, %s' % sr(sW))
        b('v_lshlrev_b32 %s, 7, %s' % (vr(vPF), vr(vL)))
        parts = [(W_, 192), (X_, 256), (WO_, 64)] if att else [(W_, 172), (W2_, 340)]
        done = b.label_name('L_pfd')
        lo = 0
        q0 = len(b.vmq)
        for i, (sd, n) in enumerate(parts):
            nxt = b.label_name('L_pfn')
            last = i == len(parts) - 1
            if not last:
                b('s_cmp_ge_u32 s54, %d' % (lo + n))
                b('s_cbranch_scc1 %s' % nxt)
            b.begin_region()
            b('s_sub_u32 s55, s54, %d' % lo)
            b('s_lshl_b32 s55, s55, 13')
            b('buffer_load_dword a%d, %s, %s, s55 offen' % (240 + i, vr(vPF), srd(sd)), tag='pf')
            if not last:
                b('s_branch %s' % done)
            b.end_region()
            if not last:
                b(nxt + ':')
            lo += n
        b(done + ':')
        del b.vmq[q0:]
        b.vmq.append(dict(regs={('a', 240), ('a', 241), ('a', 242)}, tag='pf', region=None))

    def code_prefetch(self, att):
        b = self.b
        skip, here = b.label_name('L_nocp'), b.label_name('L_pc')
        end = 'L_mlp' if att else 'L_end'
        b('s_lshr_b32 s54, s2, 3')
        b('s_and_b32 s54, s54, 1')
        b('s_lshl_b32 s54, s54, 2')
        b('s_add_u32 s54, s54, %s' % sr(sW))
        b('s_cmp_ge_u32 s2, 32')
        b('s_cselect_b32 s54, 8, s54')
        b('s_cmp_ge_u32 s54, %d' % OPT['cpf'])
        b('s_cbranch_scc1 %s' % skip)
        b.begin_region()
        b('s_lshl_b32 s54, s54, 13')
        b('v_lshl_add_u32 v12, %s, 7, s54' % vr(vL))
        b('s_getpc_b64 s[54:55]')
        b(here + ':')
        b('v_min_u32 v12, %s-%s-4, v12' % (end, here))
        b('v_mov_b32 v13, s55')
        b('v_add_co_u32 v12, vcc, s54, v12')
        b('v_addc_co_u32 v13, vcc, 0, v13, vcc')
        b('global_load_dword a243, v[12:13], off', tag='cpf')
        b.end_region()
        b(skip + ':')

    def role_prologue(self, att):
        b = self.b
        if OPT['cpf']:
            self.code_prefetch(att)
        if att:
            self.halo_setup()
        b('s_waitcnt lgkmcnt(0)')
        names = OPT['stamps'].split(',')
        if 'start' in names:
            b('s_mov_b32 %s, %s' % (sr(sTS + (2 if OPT['fst'] else 1) * names.index('start')), sr(sNON)))
        self.ts('karg')
        for it in self.dma_half(att, 0, 0) + self.dma_half(att, 0, 1):
            self.emit(it)
        for x in self.srd_rest():
            b(x)
        if att:
            lab = b.label_name('L_nopub')
            b('s_lshl_b32 s54, s2, 2')
            b('s_or_b32 s54, s54, %s' % sr(sW))
            b('s_cmp_lg_u32 s54, 0')
            b('s_cbranch_scc1 %s' % lab)
            b.begin_region()
            b('s_or_b32 %s, %s, 1' % (sr(sNON), sr(sNON)))
            b('v_mov_b32 %s, %s' % (vr(vGR), sr(sNON)))
            b('v_mov_b32 %s, %s' % (vr(vGR + 1), sr(sNON + 1)))
            b('s_mov_b64 exec, 1')
            b('buffer_store_dwordx2 %s, off, %s, 0 sc1' % (vr(vGR, 2), srd(DBG_)))
            b('s_mov_b64 exec, -1')
            b.end_region()
            b(lab + ':')
        self.ts('st0')
        first, rest = self.setup_items(att)
        units = []
        for s_, half in (((1, 0), (1, 1)) if OPT['late2'] else ((1, 0), (1, 1), (2, 0))):
            items = self.dma_half(att, s_, half)
            npairs = (len(items) - (2 if half else 0)) // 2
            for i in range(npairs):
                units.append([items[2 * i], items[2 * i + 1], []])
            if half:
                units[-1][2] = items[2 * npairs:]
        seq = first + rest
        per = -(-len(seq) // len(units))
        for ui, (pre, ld, tail) in enumerate(units):
            self.ts('t%d' % ui)
            self.emit(pre)
            if seq:
                self.emit(seq.pop(0))
            self.emit(ld)
            for it in tail:
                self.emit(it)
            for _ in range(per - 1):
                if seq:
                    self.emit(seq.pop(0))
        assert not seq
        if OPT['poison'] == 'pro':
            for it in self.poison_items(att):
                self.emit(it)
        if OPT['pf'] == 1:
            for it in self.prefetch_items(att):
                self.emit(it)
        elif OPT['pf'] == 2:
            for it in self.prefetch_items(att)[:-3]:
                self.emit(it)
        elif OPT['pf'] == 3:
            self.bulk_prefetch(att)
        self.ts('prol')

    UNIT_SLOT = [2, 0, 1, 2, 0, 1]

    def w2_setup_v(self):
        l = vL
        a, c = 252, 253
        o = ['v_lshrrev_b32 %s, 4, %s' % (vr(a), vr(l)),
             'v_lshlrev_b32 %s, 1, %s' % (vr(a), vr(a)),
             'v_and_b32 %s, 7, %s' % (vr(c), vr(l)),
             'v_xor_b32 %s, %s, %s' % (vr(a), vr(a), vr(c)),
             'v_lshlrev_b32 %s, 4, %s' % (vr(a), vr(a)),
             'v_lshrrev_b32 %s, 3, %s' % (vr(c), vr(l)),
             'v_lshl_add_u32 %s, %s, 10, %s' % (vr(a), vr(c), vr(a)),
             's_lshl_b32 s54, %s, 7' % sr(sCT),
             'v_add_u32 %s, s54, %s' % (vr(vDX), vr(a)),
             'v_add_u32 %s, 7168, %s' % (vr(vDX + 1), vr(vDX))]
        return [one(x) for x in o]

    def w2_setup_s(self):
        o = [['s_mul_i32 %s, %s, %d' % (sr(sW2A), sr(sW), 11 * 32768)],
             ['s_mul_i32 s55, %s, %d' % (sr(sW), REG)],
             ['s_add_u32 %s, s55, %d' % (sr(sW2L), SLOT0)],
             ['s_cmp_eq_u32 %s, 3' % sr(sW),
              's_cselect_b32 %s, 5, 6' % sr(sW2B),
              's_cselect_b32 %s, %d, %s' % (sr(sW2C), OOB, sr(sW2A))],
             ['s_lshl_b32 %s, %s, 15' % (sr(sW2B), sr(sW2B))],
             ['s_add_u32 %s, %s, %s' % (sr(sW2B), sr(sW2B), sr(sW2A))],
             ['s_lshl_b32 %s, %s, 17' % (sr(sWOB), sr(sW))],
             ['s_lshl_b32 s55, %s, 2' % sr(sRT)],
             ['s_add_u32 s55, s55, %s' % sr(sW)],
             ['s_lshl_b32 s55, s55, 7'],
             ['s_add_u32 %s, s55, %d' % (sr(sFLC), WS_D)]]
        return [[(t, None) for t in x] for x in o]

    def tr_base_items(self, dst, slot_off):
        l = vL
        a, c, d, e = 252, 253, 254, 255
        o = ['v_bfe_u32 %s, %s, 2, 2' % (vr(a), vr(l)),
             'v_lshrrev_b32 %s, 4, %s' % (vr(c), vr(l)),
             'v_lshl_add_u32 %s, %s, 2, %s' % (vr(d), vr(c), vr(a)),
             'v_bfe_u32 %s, %s, 1, 2' % (vr(e), vr(d)),
             'v_lshlrev_b32 %s, 5, %s' % (vr(e), vr(e)),
             'v_lshl_add_u32 %s, %s, 7, %s' % (vr(e), vr(d), vr(e)),
             'v_and_b32 %s, 3, %s' % (vr(a), vr(l)),
             'v_lshl_add_u32 %s, %s, 3, %s' % (vr(e), vr(a), vr(e)),
             's_mul_i32 s54, %s, %d' % (sr(sW), REG),
             's_add_u32 s54, s54, %d' % (SLOT0 + slot_off),
             'v_add_u32 %s, s54, %s' % (vr(dst), vr(e))]
        for cp in range(1, 4):
            o.append('v_xor_b32 %s, %d, %s' % (vr(dst + cp), 32 * cp, vr(dst)))
        return [one(x) for x in o]

    def tr_base01_items(self):
        return [one('v_add_u32 %s, %s, %s' % (vr(vTB01 + cp), hex((-2 * SLOT) & 0xffffffff), vr(vTB2 + cp))) for cp in range(4)]

    @staticmethod
    def step_off(j):
        if j >= 11:
            return 'o', j - 11
        c, h, e = j >> 2, (j >> 1) & 1, j & 1
        if j == 9:
            return 'c', 5
        return ('b' if h else 'a'), 2 * c + e

    def w2_dma_unit(self, q):
        j, hh = q >> 1, q & 1
        r, pos = q // 5, q % 5
        kind, off = self.step_off(j)
        base = dict(a=sW2A, b=sW2B, c=sW2C, o=sWOB)[kind]
        sd = WO_ if kind == 'o' else W2_
        tag = 'w2_%d' % r
        lds = self.UNIT_SLOT[r] * SLOT + pos * 2048
        return [[('s_add_u32 %s, %s, %d' % (sr(sU), sr(base), off * 32768 + hh * 16384), None),
                 ('s_add_u32 m0, %s, %d' % (sr(sW2L), lds), None)],
                one('buffer_load_dwordx4 %s, %s, %s offen lds' % (vr(vDX), srd(sd), sr(sU)), tag),
                one('buffer_load_dwordx4 %s, %s, %s offen offset:1024 lds' % (vr(vDX + 1), srd(sd), sr(sU)), tag)]

    def w2_dma(self, q0, q1):
        out = []
        for q in range(q0, q1):
            out += self.w2_dma_unit(q)
        return out

    def w2_tr_unit(self, q):
        j, hh = q >> 1, q & 1
        r, pos = q // 5, q % 5
        sl = self.UNIT_SLOT[r]
        base = vTB2 if sl == 2 else vTB01
        off = pos * 2048 + (0 if sl == 2 else sl * SLOT)
        return [one('ds_read_b64_tr_b16 %s, %s offset:%d' % (ar(16 * j + 4 * cp + 2 * hh, 2), vr(base + cp), off), 'tr%d' % r)
                for cp in range(4)]

    def w2_tr(self, r):
        out = []
        for q in range(5 * r, 5 * r + 5):
            out += self.w2_tr_unit(q)
        return out

    def w2_background(self):
        b = self.b
        pair = lambda xs: [xs[i] + xs[i + 1] for i in range(0, len(xs), 2)]
        o = self.w2_dma(13, 15)
        o.append(lambda: b.wait_lg('tr0'))
        o += self.w2_dma(15, 20)
        o.append(lambda: b.wait_vm('w2_1'))
        o += pair(self.w2_tr(1))
        o.append(self.flags_load_item())
        o.append(lambda: b.wait_lg('tr1'))
        o += self.w2_dma(20, 25)
        o.append(lambda: b.wait_vm('w2_2'))
        o += pair(self.w2_tr(2))
        o.append(lambda: b.wait_lg('tr2'))
        o += self.w2_dma(25, 30)
        return o

    def p2_setup_items(self):
        l = vL
        a, c, d = 252, 253, 254
        o = []
        A = o.append
        A('s_lshl_b32 s55, %s, 2' % sr(sRT))
        for tp in range(4):
            r = sHB + tp
            A('s_add_u32 %s, %s, %d' % (sr(r), sr(sW), tp))
            A('s_and_b32 %s, %s, 3' % (sr(r), sr(r)))
            A('s_add_u32 %s, %s, s55' % (sr(r), sr(r)))
            A('s_mul_i32 %s, %s, %d' % (sr(r), sr(r), NKS * 1024))
            A('s_add_u32 %s, %s, %d' % (sr(r), sr(r), H_OFF))
        A('s_mul_i32 s54, %s, %d' % (sr(sW), 11 * 1024))
        A('v_add_u32 %s, s54, %s' % (vr(vHA), vr(vL16)))
        A(['s_cmp_eq_u32 %s, 3' % sr(sW), 's_cselect_b32 s54, 5, 6'])
        A('v_lshl_add_u32 %s, s54, 10, %s' % (vr(vHB_), vr(vHA)))
        A('v_and_b32 %s, 15, %s' % (vr(a), vr(l)))
        A('s_lshl_b32 s54, %s, 6' % sr(sRT))
        A('s_lshl_b32 s55, %s, 4' % sr(sW))
        A('s_add_u32 s54, s54, s55')
        A('v_add_u32 %s, s54, %s' % (vr(a), vr(a)))
        A('v_lshlrev_b32 %s, 10, %s' % (vr(a), vr(a)))
        A('v_lshrrev_b32 %s, 4, %s' % (vr(c), vr(l)))
        A('s_lshl_b32 s55, %s, 7' % sr(sCT))
        A('v_lshl_add_u32 %s, %s, 3, %s' % (vr(vXR), vr(c), vr(a)))
        A('v_add_u32 %s, s55, %s' % (vr(vXR), vr(vXR)))
        A('v_and_b32 %s, 1, %s' % (vr(vO), vr(c)))
        A('v_lshlrev_b32 %s, 5, %s' % (vr(vO), vr(vO)))
        A('v_lshrrev_b32 %s, 1, %s' % (vr(c), vr(c)))
        A('v_lshl_add_u32 %s, %s, 4, %s' % (vr(vO), vr(c), vr(vO)))
        A('v_add3_u32 %s, %s, %s, s55' % (vr(vO), vr(vO), vr(a)))
        A('v_lshrrev_b32 %s, 3, %s' % (vr(a), vr(l)))
        A('v_and_b32 %s, 6, %s' % (vr(c), vr(a)))
        A('v_and_b32 %s, 1, %s' % (vr(a), vr(a)))
        A('v_bfe_u32 %s, %s, 2, 1' % (vr(d), vr(l)))
        A('v_add_u32 %s, %s, %s' % (vr(c), vr(c), vr(d)))
        A(['s_cmp_eq_u32 %s, 3' % sr(sW), 's_cselect_b32 s54, 5, 6'])
        A('v_mad_u32_u24 %s, %s, s54, %s' % (vr(c), vr(a), vr(c)))
        A('s_mul_i32 s54, %s, 11' % sr(sW))
        A('v_add_u32 %s, s54, %s' % (vr(c), vr(c)))
        A('v_lshrrev_b32 %s, 2, %s' % (vr(a), vr(l)))
        A('s_lshl_b32 s54, %s, 2' % sr(sW))
        A('s_add_u32 s54, s54, 32')
        A('v_add_u32 %s, s54, %s' % (vr(d), vr(a)))
        A(['v_cmp_le_u32 vcc, 11, %s' % vr(a), 'v_cndmask_b32 %s, %s, %s, vcc' % (vr(c), vr(c), vr(d))])
        A('v_and_b32 %s, 3, %s' % (vr(d), vr(l)))
        A('v_add_u32 %s, %s, %s' % (vr(d), sr(sW), vr(d)))
        A('v_and_b32 %s, 3, %s' % (vr(d), vr(d)))
        A('v_mad_u32_u24 %s, %s, %d, %s' % (vr(c), vr(d), NKS, vr(c)))
        A('v_lshlrev_b32 %s, 10, %s' % (vr(c), vr(c)))
        A('s_mul_i32 s54, %s, %d' % (sr(sRT), 4 * NKS * 1024))
        A('s_add_u32 s54, s54, %d' % H_OFF)
        A('v_add_u32 %s, s54, %s' % (vr(c), vr(c)))
        A('v_mov_b32 %s, %d' % (vr(d), OOB))
        A(['s_cmp_eq_u32 %s, 3' % sr(sW), 's_cselect_b32 s54, 9, 15'])
        A(['v_cmp_eq_u32 vcc, s54, %s' % vr(a), 'v_cndmask_b32 %s, %s, %s, vcc' % (vr(c), vr(c), vr(d))])
        A(['v_cmp_eq_u32 vcc, 15, %s' % vr(a), 'v_cndmask_b32 %s, %s, %s, vcc' % (vr(vPO), vr(c), vr(d))])
        A('v_and_b32 %s, 7, %s' % (vr(vFA), vr(l)))
        A('v_lshlrev_b32 %s, 3, %s' % (vr(vFA), vr(vFA)))
        return [[(t, None) for t in x] if isinstance(x, list) else one(x) for x in o]

    def flags_text(self):
        return 'buffer_load_dwordx2 %s, %s, %s, %s offen sc1' % (vr(vFLG, 2), vr(vFA), srd(WS_), sr(sFLC))

    def flags_load_item(self):
        return one(self.flags_text(), 'flg')

    def flags_check(self):
        b = self.b

        def check():
            b('v_cmp_ne_u32 vcc, %s, %s' % (sr(sNON), vr(vFLG)))
            b('v_cmp_ne_u32 s[54:55], %s, %s' % (sr(sNON + 1), vr(vFLG + 1)))
            b('s_or_b64 vcc, vcc, s[54:55]')
            b('s_cmp_eq_u64 vcc, 0')
        self.poll_loop(self.flags_text(), check, 'L_flg')

    def main_loop(self, att):
        b = self.b
        if att:
            F = [116, 164]
            G = 27

            def xreg(f, t):
                return F[f] + 4 * t

            def wreg(f, p):
                return F[f] + 36 + 4 * p

            def reads(f, bb):
                xa = vXB if bb else vXA
                def wr(p):
                    return [('ds_read_b64_tr_b16 %s, %s offset:%d' % (vr(wreg(f, p) + 2 * hh, 2), vr(vWA),
                                                                     hh * 12288 + (3 * bb + p) * 1024), 'fr') for hh in range(2)]
                def xr(t):
                    return [('ds_read_b128 %s, %s offset:%d' % (vr(xreg(f, t), 4), vr(xa), t * 2048), 'fr')]
                out = wr(1) + xr(0) + wr(2) + xr(1) + wr(0)
                for t in range(2, 9):
                    out += xr(t)
                return out

            def mfmas(f, u):
                out = []
                C = lambda r: '0' if u == 0 else vr(r, 4)
                for t in range(9):
                    out.append('%s %s, %s, %s, %s' % (MF, vr(32 + 4 * t, 4), vr(wreg(f, 1), 4), vr(xreg(f, t), 4), C(32 + 4 * t)))
                    out.append('%s %s, %s, %s, %s' % (MF, vr(68 + 4 * t, 4), vr(xreg(f, t), 4), vr(wreg(f, 2), 4), C(68 + 4 * t)))
                    if t >= 1:
                        q = 4 * (t - 1)
                        out.append('%s %s, %s, %s, %s' % (MF, vr(q, 4), vr(wreg(f, 0), 4), vr(xreg(f, t), 4), C(q)))
                out.append('%s %s, %s, %s, %s' % (MF, vr(104, 4), vr(wreg(f, 0), 4), vr(vONES, 4), C(104)))
                return out
        else:
            F = [120, 160]
            G = 24

            def xreg(f, t):
                return F[f] + 4 * t

            def wreg(f, p, ti):
                return F[f] + 16 + 4 * (2 * p + ti)

            def reads(f, bb):
                xa = vXB if bb else vXA
                def wr(p, ti):
                    return [('ds_read_b64_tr_b16 %s, %s offset:%d' % (vr(wreg(f, p, ti) + 2 * hh, 2), vr(vWB if ti else vWA),
                                                                     hh * 12288 + (3 * bb + p) * 1024), 'fr') for hh in range(2)]
                def xr(t):
                    return [('ds_read_b128 %s, %s offset:%d' % (vr(xreg(f, t), 4), vr(xa), t * 2048), 'fr')]
                out = wr(0, 0) + xr(0) + xr(1) + xr(2) + xr(3)
                for pt in range(1, 6):
                    out += wr(pt >> 1, pt & 1)
                return out

            def mfmas(f, u):
                out = []
                C = lambda r: '0' if u == 0 else vr(r, 4)
                for pt in range(6):
                    for t in range(4):
                        acc = 16 * pt + 4 * t
                        out.append('%s %s, %s, %s, %s' % (MF, vr(acc, 4), vr(wreg(f, pt >> 1, pt & 1), 4), vr(xreg(f, t), 4), C(acc)))

                def sblock():
                    lab = b.label_name('L_nos')
                    b('s_cmp_lg_u32 %s, %d' % (sr(sTH), u & 1))
                    b('s_cbranch_scc1 %s' % lab)
                    b.begin_region()
                    for pt in range(6):
                        c = '0' if u < 2 else vr(96 + 4 * pt, 4)
                        b('%s %s, %s, %s, %s' % (MF, vr(96 + 4 * pt, 4), vr(wreg(f, pt >> 1, pt & 1), 4), vr(vONES, 4), c))
                    b.end_region()
                    b(lab + ':')
                out.append(sblock)
                return out

        stats = self.stats_items()
        poison = self.poison_items(att) if OPT['poison'] == 'even' or (OPT['poison'] == 'att' and att) else []
        p2s = self.p2_setup_items()
        b.wait_vm('st0')
        b.wait_lg('ones')
        self.ts('w0')
        b('s_barrier')
        self.ts('bar0')
        for t, tag in reads(0, 0):
            b(t, tag=tag)
        for u in range(16):
            s, bb, f = u >> 1, u & 1, u & 1
            mf = mfmas(f, u)
            streams = []
            first = []
            if bb == 1:
                b.wait_lg('fr', 'stw')
                self.ts('a%d' % u)
                if s + 1 < 8:
                    b.wait_vm('st%d' % (s + 1))
                self.ts('b%d' % u)
                if not OPT['abl'] & 4:
                    b('s_barrier')
                self.ts('c%d' % u)
            rd = []
            if u < 15 and not OPT['abl'] & 2:
                rd = [[x] for x in reads(1 - f, 1 - bb)]
            if bb == 1 and u < 15:
                delta = SLOT if (s % 3) < 2 else -2 * SLOT
                upd = [one('v_add_u32 %s, %s, %s' % (vr(r), hex(delta & 0xffffffff), vr(r)))
                       for r in ([vWA, vXA, vXB] if att else [vWA, vXA, vWB, vXB])]
                rd = upd[:2] + rd[:3] + upd[2:] + rd[3:]
            streams.append(dict(items=rd, lo=0, hi=(G - 3 if bb else (G * 3) // 4)))
            dm = []
            st3 = (u + 5) >> 1
            if u == 0:
                dm = (self.dma_half(att, 2, 0) if OPT['late2'] else []) + self.dma_half(att, 2, 1)
                dm.insert(len(dm) - 4, one(self.nonce_text(), 'non'))
                if OPT['pf'] == 4:
                    dm.append(blk(lambda: self.bulk_prefetch(att), 6))
            elif st3 < 8:
                if not OPT['abl'] & 1:
                    dm = self.dma_half(att, st3, 0 if bb else 1)
                if u == 10:
                    dm.insert(max(len(dm) - 4, 0), one(self.gather_text(), 'gat'))
            elif u == 11:
                dm = self.w2_setup_s() + self.w2_dma(0, 3)
            elif u == 12:
                dm = self.w2_dma(3, 5)
            elif u == 13:
                dm = self.w2_dma(5, 8)
            elif u == 14:
                dm = self.w2_dma(8, 10)
            elif u == 15:
                dm = self.w2_dma(10, 13)
            pz = []
            if poison and u in (2, 4, 6):
                n = 4 if u < 6 or att else len(poison)
                if OPT['sparse']:
                    n = -(-len(poison) // ((8 - u) // 2))
                pz, poison = poison[:n], poison[n:]
            if OPT['pf'] == 2 and u in OPT['pfu']:
                pz = pz + [self.prefetch_items(att)[-3 + OPT['pfu'].index(u)]]
            if pz:
                streams.append(dict(items=dm, lo=0, hi=(G * 2) // 3, mind=1))
                streams.append(dict(items=pz, lo=(G * 2) // 3 + 2, hi=G - 1))
            else:
                streams.append(dict(items=dm, lo=0, hi=G - 1, mind=1))
            ex = []
            if u == 1 and OPT['sparse'] and poison:
                streams.append(dict(items=self.pz_pre, lo=0, hi=G - 1))
            if u < 3:
                k = (len(stats) + 2 - u) // (3 - u)
                if u == 0:
                    k = 8
                ex, stats = stats[:k], stats[k:]
                streams.append(dict(items=ex, lo=(G // 2 if u == 0 else 0), hi=G - 1))
            elif u == 3:
                streams.append(dict(items=[blk(self.nonce_and_stats_store, 8)], lo=1, hi=3))
            elif 4 <= u <= 9:
                k = (len(p2s) + 9 - u) // (10 - u)
                ex, p2s = p2s[:k], p2s[k:]
                streams.append(dict(items=ex, lo=0, hi=G - 1))
                if u == 9:
                    streams.append(dict(items=[blk(self.flag_store, 5)], lo=2, hi=4))
            elif u == 10:
                streams.append(dict(items=self.w2_setup_v(), lo=0, hi=G - 1))
                if OPT['owarm']:
                    streams.append(dict(items=[one('buffer_load_dword a243, %s, %s, 0 offen' % (vr(vO), srd(OUT_)), 'ow')], lo=G - 2, hi=G - 1))
            elif u == 12:
                streams.append(dict(items=self.tr_base_items(vTB2, 2 * SLOT), lo=0, hi=G - 1))
            elif u == 13:
                streams.append(dict(items=[blk(self.gather_check, 8)], lo=1, hi=3))
            elif u == 14:
                streams.append(dict(items=self.tr_base01_items(), lo=0, hi=G - 1))
            elif u == 15:
                tr = self.w2_tr(0)
                tr.insert(0, blk(lambda: b.wait_vm('w2_0'), 0))
                streams.append(dict(items=tr, lo=G // 3, hi=G - 1))
            self.schedule(mf, streams, G, '%s%d' % ('a' if att else 'm', u))
        assert not stats and not poison and not p2s

    def att_epilogue(self):
        b = self.b
        l = vL
        QS = 116
        VS = 134
        VP, KP, QP = 158, 176, 194
        a, c, d = T + 4, T + 5, T + 6
        vNEG = T + 7
        SEL = T + 8
        vAq, vAq2, vAv = T + 12, T + 13, T + 14
        vOW = T + 15
        b.bg = self.w2_background()
        b.bg_every = OPT['bg_att']
        b('v_and_b32 %s, 15, %s' % (vr(a), vr(l)))
        b('v_lshrrev_b32 %s, 4, %s' % (vr(c), vr(l)))
        b('v_lshlrev_b32 %s, 2, %s' % (vr(vAq), vr(a)))
        b('v_add_u32 %s, %d, %s' % (vr(vAq), ST, vr(vAq)))
        b('v_add_u32 %s, 256, %s' % (vr(vAq2), vr(vAq)))
        b('v_lshlrev_b32 %s, 4, %s' % (vr(vAv), vr(c)))
        b('v_add_u32 %s, %d, %s' % (vr(vAv), ST, vr(vAv)))
        for t in range(9):
            if t < 7:
                b('ds_read2_b32 %s, %s offset0:%d offset1:%d' % (vr(QS + 2 * t, 2), vr(vAq), 16 * t, 144 + 16 * t), tag='qs')
            else:
                b('ds_read2_b32 %s, %s offset0:%d offset1:%d' % (vr(QS + 2 * t, 2), vr(vAq2), 16 * t - 64, 80 + 16 * t), tag='qs')

        def vstat_read(t):
            base = VS + 8 * (t % 3)
            b('ds_read_b128 %s, %s offset:%d' % (vr(base, 4), vr(vAv), 64 * t), tag='vs')
            b('ds_read_b128 %s, %s offset:%d' % (vr(base + 4, 4), vr(vAv), STR + 64 * t), tag='vs')
        for t in range(3):
            vstat_read(t)
        for i in range(4):
            b('v_mov_b32_dpp %s, %s row_newbcast:0 row_mask:0xf bank_mask:0xf' % (vr(108 + i), vr(32 + i)))
        b('v_mov_b32 %s, %s' % (vr(112), vr(68)))
        b('v_mov_b32 %s, %s' % (vr(113), vr(68)))
        b('v_and_b32 %s, 1, %s' % (vr(d), vr(a)))
        b('v_permlane16_swap_b32 %s, %s' % (vr(112), vr(113)))
        b('v_cmp_eq_u32 %s, 1, %s' % (sr(sP, 2), vr(d)))
        b('v_lshl_add_u32 %s, %s, 2, %s' % (vr(c), vr(c), vr(d)))
        b('v_mov_b32 %s, %s' % (vr(113), vr(112)))
        b('v_cmp_le_u32 %s, %s, %s' % (sr(sC0, 2), vr(c), vr(a)))
        b('v_add_u32 %s, 2, %s' % (vr(c), vr(c)))
        b('v_permlane32_swap_b32 %s, %s' % (vr(112), vr(113)))
        b('v_cmp_le_u32 %s, %s, %s' % (sr(sC1, 2), vr(c), vr(a)))
        b('v_mov_b32 %s, 0x0c0c0100' % vr(a))
        b('v_mov_b32 %s, 0x01000c0c' % vr(c))
        b('v_cndmask_b32 %s, %s, %s, %s' % (vr(a), vr(a), vr(c), sr(sP, 2)))
        b('v_mov_b32 %s, 0x0c0c0302' % vr(c))
        b('v_mov_b32 %s, 0x03020c0c' % vr(d))
        b('v_cndmask_b32 %s, %s, %s, %s' % (vr(c), vr(c), vr(d), sr(sP, 2)))
        b('v_mov_b32 %s, 0x0c0c0c0c' % vr(d))
        b('v_cndmask_b32 %s, %s, %s, %s' % (vr(SEL + 0), vr(a), vr(d), sr(sC0, 2)))
        b('v_cndmask_b32 %s, %s, %s, %s' % (vr(SEL + 1), vr(c), vr(d), sr(sC1, 2)))
        b('v_cndmask_b32 %s, %s, %s, %s' % (vr(SEL + 2), vr(d), vr(a), sr(sC0, 2)))
        b('v_cndmask_b32 %s, %s, %s, %s' % (vr(SEL + 3), vr(d), vr(c), sr(sC1, 2)))
        b('v_mov_b32 %s, 0xcf6e6b28' % vr(vNEG))
        b('s_cmp_eq_u32 %s, 0' % sr(sRB))
        b('s_cselect_b64 %s, -1, 0' % sr(sZ, 2))
        b('s_mov_b32 %s, 0x3eb8aa3b' % sr(sC))
        b('s_lshr_b32 s54, %s, 1' % sr(sW))
        b('s_lshl_b32 s54, s54, 13')
        b('s_and_b32 s55, %s, 1' % sr(sW))
        b('s_lshl_b32 s56, s55, 3')
        b('s_add_u32 s56, s56, s54')
        b('s_add_u32 s56, s56, %d' % OX)
        b('v_add_u32 %s, s56, %s' % (vr(vOW), vr(vL16)))

        def norm_qk(acc, sreg, t, dst):
            st = vr(QS + 2 * t, 2)
            for h in range(2):
                b('v_pk_fma_f32 %s, %s, %s, %s op_sel:[0,0,0] op_sel_hi:[1,0,1]' % (vr(acc + 2 * h, 2), vr(sreg + 2 * h, 2), st, vr(acc + 2 * h, 2)))
            for h in range(2):
                b('v_pk_mul_f32 %s, %s, %s op_sel:[0,1] op_sel_hi:[1,1]' % (vr(acc + 2 * h, 2), vr(acc + 2 * h, 2), st))
            for h in range(2):
                b('v_cvt_pk_bf16_f32 %s, %s, %s' % (vr(dst + h), vr(acc + 2 * h), vr(acc + 2 * h + 1)))

        def norm_v(t):
            acc = 68 + 4 * t
            base = VS + 8 * (t % 3)
            for h in range(2):
                b('v_pk_fma_f32 %s, %s, %s, %s op_sel_hi:[1,0,1]' % (vr(acc + 2 * h, 2), vr(base + 2 * h, 2), vr(112, 2), vr(acc + 2 * h, 2)))
            for h in range(2):
                b('v_pk_mul_f32 %s, %s, %s' % (vr(acc + 2 * h, 2), vr(acc + 2 * h, 2), vr(base + 4 + 2 * h, 2)))
            for h in range(2):
                b('v_cvt_pk_bf16_f32 %s, %s, %s' % (vr(VP + 2 * t + h), vr(acc + 2 * h), vr(acc + 2 * h + 1)))
            if t + 3 < 9:
                vstat_read(t + 3)

        for t in range(9):
            norm_qk(32 + 4 * t, 108, t, KP + 2 * t)
        for t in range(1, 9):
            norm_qk(4 * (t - 1), 104, t, QP + 2 * (t - 1))
        for t in range(1, 9):
            D = 8 * (t - 1)
            b('%s %s, %s, %s, 0' % (MF16, vr(D, 4), vr(KP + 2 * (t - 1), 2), vr(QP + 2 * (t - 1), 2)))
            b('%s %s, %s, %s, 0' % (MF16, vr(D + 4, 4), vr(KP + 2 * t, 2), vr(QP + 2 * (t - 1), 2)))
        for t in range(9):
            norm_v(t)
        LG, MX = 64, 80
        for t in range(1, 9):
            D = 8 * (t - 1)
            for j in range(2):
                b('v_cndmask_b32 %s, %s, %s, %s' % (vr(D + 2 * j), vr(D + 2 * j), vr(D + 2 * j + 1), sr(sP, 2)))
                b('v_cndmask_b32 %s, %s, %s, %s' % (vr(D + 4 + 2 * j), vr(D + 4 + 2 * j), vr(D + 4 + 2 * j + 1), sr(sP, 2)))
            if t == 1:
                for j in range(2):
                    b('v_cndmask_b32 %s, %s, %s, %s' % (vr(D + 2 * j), vr(D + 2 * j), vr(vNEG), sr(sZ, 2)))
            b('v_cndmask_b32 %s, %s, %s, %s' % (vr(LG + 2 * (t - 1)), vr(D), vr(D + 4), sr(sC0, 2)))
            b('v_cndmask_b32 %s, %s, %s, %s' % (vr(LG + 2 * (t - 1) + 1), vr(D + 2), vr(D + 6), sr(sC1, 2)))
            b('v_max_f32 %s, %s, %s' % (vr(MX + t - 1), vr(LG + 2 * (t - 1)), vr(LG + 2 * (t - 1) + 1)))
        for h in range(2):
            m = MX + 4 * h
            b('v_permlane16_swap_b32 %s, %s' % (vr(m), vr(m + 1)))
            b('v_permlane16_swap_b32 %s, %s' % (vr(m + 2), vr(m + 3)))
        for h in range(2):
            m = MX + 4 * h
            b('v_max_f32 %s, %s, %s' % (vr(m), vr(m), vr(m + 1)))
            b('v_max_f32 %s, %s, %s' % (vr(m + 2), vr(m + 2), vr(m + 3)))
        for h in range(2):
            m = MX + 4 * h
            b('v_permlane32_swap_b32 %s, %s' % (vr(m), vr(m + 2)))
        for h in range(2):
            m = MX + 4 * h
            b('v_max_f32 %s, %s, %s' % (vr(m), vr(m), vr(m + 2)))
        for h in range(2):
            m = MX + 4 * h
            b('v_mul_f32 %s, %s, %s' % (vr(m), sr(sC), vr(m)))
        for h in range(2):
            m = MX + 4 * h
            b('v_mov_b32 %s, %s' % (vr(m + 2), vr(m)))
        for h in range(2):
            m = MX + 4 * h
            b('v_permlane32_swap_b32 %s, %s' % (vr(m), vr(m + 2)))
        for h in range(2):
            m = MX + 4 * h
            b('v_mov_b32 %s, %s' % (vr(m + 1), vr(m)))
            b('v_mov_b32 %s, %s' % (vr(m + 3), vr(m + 2)))
        for h in range(2):
            m = MX + 4 * h
            b('v_permlane16_swap_b32 %s, %s' % (vr(m), vr(m + 1)))
            b('v_permlane16_swap_b32 %s, %s' % (vr(m + 2), vr(m + 3)))
        for t in range(1, 9):
            L = LG + 2 * (t - 1)
            for j in range(2):
                b('v_fma_f32 %s, %s, %s, -%s' % (vr(L + j), vr(L + j), sr(sC), vr(MX + t - 1)))
        for t in range(1, 9):
            L = LG + 2 * (t - 1)
            for j in range(2):
                b('v_exp_f32 %s, %s' % (vr(L + j), vr(L + j)))
        for t in range(1, 9):
            L = LG + 2 * (t - 1)
            b('v_cvt_pk_bf16_f32 %s, %s, %s' % (vr(L), vr(L), vr(L + 1)))
        PF, OA, SM = 0, 32, 84
        for t in range(1, 9):
            L = LG + 2 * (t - 1)
            for i in range(4):
                b('v_perm_b32 %s, %s, %s, %s' % (vr(PF + 4 * (t - 1) + i), vr(L), vr(L), vr(SEL + i)))
            b('%s %s, %s, %s, 0' % (MF, vr(OA + 4 * (t - 1), 4), vr(VP + 2 * (t - 1), 4), vr(PF + 4 * (t - 1), 4)))
            b('%s %s, %s, %s, 0' % (MF, vr(SM + 4 * (t - 1), 4), vr(vONES, 4), vr(PF + 4 * (t - 1), 4)))
        for t in range(1, 9):
            sm = SM + 4 * (t - 1)
            b('v_rcp_f32 %s, %s' % (vr(sm), vr(sm)))
        for t in range(1, 9):
            sm, o = SM + 4 * (t - 1), OA + 4 * (t - 1)
            for h in range(2):
                b('v_pk_mul_f32 %s, %s, %s op_sel:[0,0] op_sel_hi:[1,0]' % (vr(o + 2 * h, 2), vr(o + 2 * h, 2), vr(sm, 2)))
            for h in range(2):
                b('v_cvt_pk_bf16_f32 %s, %s, %s' % (vr(o + h), vr(o + 2 * h), vr(o + 2 * h + 1)))
            b('ds_write_b64 %s, %s offset:%d' % (vr(vOW), vr(o, 2), (t - 1) * 1024), tag='ox')
        b.bg_flush()
        b.bg_every = 0
        self.ts('epi')
        b('s_lshr_b32 s54, %s, 1' % sr(sW))
        b('s_lshl_b32 s54, s54, 13')
        b('s_and_b32 s55, %s, 1' % sr(sW))
        b('s_lshl_b32 s56, s55, 12')
        b('s_add_u32 s56, s56, s54')
        b('s_add_u32 s56, s56, %d' % OX)
        b('v_add_u32 %s, s56, %s' % (vr(c), vr(vL16)))
        b.wait_lg('ox')
        b('s_barrier')
        for i in range(4):
            b('ds_read_b128 %s, %s offset:%d' % (vr(4 * i, 4), vr(c), i * 1024), tag='oxr')
        self.p2_issue()
        for i in range(4):
            b('s_add_u32 s57, %s, %d' % (sr(sHST), i * NKS * 1024))
            b('buffer_store_dwordx4 %s, %s, %s, s57 offen %s' % (vr(4 * i, 4), vr(vL16), srd(WS_), OPT['hstf']), tag='hst')

    def mlp_epilogue(self):
        b = self.b
        l = vL
        a, c, d = T + 4, T + 5, T + 6
        QS = 120
        TM = 128
        PK = 152
        b.bg = self.w2_background()
        b('v_lshrrev_b32 %s, 4, %s' % (vr(c), vr(l)))
        b('v_lshlrev_b32 %s, 4, %s' % (vr(c), vr(c)))
        b('s_mul_i32 s54, %s, 384' % sr(sW))
        b('s_add_u32 s55, s54, %d' % SX)
        b('v_add_u32 %s, s55, %s' % (vr(d), vr(c)))
        b('s_xor_b32 s54, %s, 1' % sr(sW))
        b('s_mul_i32 s54, s54, 384')
        b('s_add_u32 s55, s54, %d' % SX)
        b('v_add_u32 %s, s55, %s' % (vr(c), vr(c)))
        b('s_mov_b32 exec_lo, 0x00010001')
        b('s_mov_b32 exec_hi, 0x00010001')
        for pt in range(6):
            b('ds_write_b128 %s, %s offset:%d' % (vr(d), vr(96 + 4 * pt, 4), pt * 64), tag='sx')
        b('s_mov_b64 exec, -1')
        b.bg_every = OPT['bg_mlp']
        b('v_and_b32 %s, 15, %s' % (vr(a), vr(l)))
        b('s_lshl_b32 s54, %s, 6' % sr(sTH))
        b('s_add_u32 s54, s54, 16')
        b('v_add_u32 %s, s54, %s' % (vr(a), vr(a)))
        b('v_lshlrev_b32 %s, 2, %s' % (vr(a), vr(a)))
        b('v_add_u32 %s, %d, %s' % (vr(a), ST, vr(a)))
        for t in range(4):
            b('ds_read2_b32 %s, %s offset0:%d offset1:%d' % (vr(QS + 2 * t, 2), vr(a), 16 * t, 144 + 16 * t), tag='qs')
        b.bg_pop(4)
        b.wait_lg('sx')
        b('s_barrier')
        self.ts('e0')
        for pt in range(6):
            b('ds_read_b128 %s, %s offset:%d' % (vr(TM + 4 * pt, 4), vr(c), pt * 64), tag='sxr')
        b.bg_pop(4)
        for pt in range(6):
            for h in range(2):
                r = 96 + 4 * pt + 2 * h
                b('v_pk_add_f32 %s, %s, %s' % (vr(r, 2), vr(r, 2), vr(TM + 4 * pt + 2 * h, 2)))
        k = 0
        skip = None
        for p in range(3):
            self.ts('e%d' % (p + 1))
            if p == 2:
                b.bg_flush()
                b.bg_every = 0
                skip = b.label_name('L_nopair')
                b('s_lshr_b32 s55, %s, 1' % sr(sW))
                b('s_add_u32 s55, s55, 4')
                b('s_cmp_ge_u32 s55, %s' % sr(sNP))
                b('s_cbranch_scc1 %s' % skip)
                b.begin_region()
            for t in range(4):
                st = vr(QS + 2 * t, 2)
                dst = PK + 4 * (k % 4)
                k += 1
                for ti in range(2):
                    acc = 16 * (2 * p + ti) + 4 * t
                    sreg = 96 + 4 * (2 * p + ti)
                    for h in range(2):
                        b('v_pk_fma_f32 %s, %s, %s, %s op_sel:[0,0,0] op_sel_hi:[1,0,1]' % (vr(acc + 2 * h, 2), vr(sreg + 2 * h, 2), st, vr(acc + 2 * h, 2)))
                    for h in range(2):
                        b('v_pk_mul_f32 %s, %s, %s op_sel:[0,1] op_sel_hi:[1,1]' % (vr(acc + 2 * h, 2), vr(acc + 2 * h, 2), st))
                    for h in range(2):
                        b('v_cvt_pk_bf16_f32 %s, %s, %s' % (vr(dst + 2 * ti + h), vr(acc + 2 * h), vr(acc + 2 * h + 1)))
                for i in range(4):
                    b('v_pk_max_i16 %s, %s, 0' % (vr(dst + i), vr(dst + i)))
                b('s_add_u32 s57, %s, %d' % (sr(sHST), t * NKS * 1024 + p * 2048))
                b('buffer_store_dwordx4 %s, %s, %s, s57 offen %s' % (vr(dst, 4), vr(vL16), srd(WS_), OPT['hstf']), tag='hst')
        b.end_region()
        b(skip + ':')
        self.ts('epi')
        self.p2_issue()

    RING, XR = 64, 192
    vHT, vH8, vH9, vH10, vP = 243, 244, 245, 246, 247

    def hload(self, j, tp):
        base = self.RING + 16 * (j % 8) + 4 * tp
        kind, off = self.step_off(j)
        if j < 8:
            va, o = (vHB_ if kind == 'b' else vHA), off * 1024
        elif j < 11:
            va, o = {8: self.vH8, 9: self.vH9, 10: self.vH10}[j], 0
        else:
            va, o = self.vHT, off * 1024
        return 'buffer_load_dwordx4 %s, %s, %s, %s offen offset:%d %s' % (vr(base, 4), vr(va), srd(WS_), sr(sHB + tp), o, OPT['hld'])

    def p2_issue(self):
        b = self.b
        self.flags_check()
        for cp in range(4):
            b('buffer_load_dwordx2 %s, %s, %s, 0 offen offset:%d' % (vr(self.XR + 2 * cp, 2), vr(vXR), srd(X_), 32 * cp), tag='res')
        for j in range(8):
            for tp in TPO:
                b(self.hload(j, tp), tag='h%d_%d' % (j, tp))
        self.ts('ring')

    def verify_items(self, j, role):
        b = self.b
        base = self.RING + 16 * (j % 8)
        t = 248
        slow, back = 'L_slow_%s_%d' % (role, j), 'L_back_%s_%d' % (role, j)

        def p1():
            b('v_max3_u32 %s, %s, %s, %s' % (vr(t), vr(base), vr(base + 4), vr(base + 8)))

        def p2():
            b('v_max_u32 %s, %s, %s' % (vr(t), vr(t), vr(base + 12)))

        def p3():
            b('v_cmp_eq_u32 vcc, -1, %s' % vr(t))
            b('s_cbranch_vccnz %s' % slow)
            snap = [e['tag'] for e in b.vmq]
            b(back + ':')
            self.slow.append((j, slow, back, snap))
        return [blk(p1, 1), blk(p2, 1), blk(p3, 2)]

    def emit_slow(self):
        b = self.b
        for j, slow, back, snap in self.slow:
            b.vmq, b.lgq, b.smem_pending = [], [], []
            base = self.RING + 16 * (j % 8)
            end = 4 if j < 4 else 8 if j < 8 else 11 if j < 11 else 15
            mask = sum(1 << i for i in range(4 * j, 4 * end))
            again, ready = slow + '_a', slow + '_r'
            b('s_nop 0')
            b(slow + ':')
            b('s_mov_b32 %s, 0' % sr(sCNT))
            b(again + ':')
            b('buffer_load_dword %s, %s, %s, 0 offen sc1' % (vr(self.vP), vr(vPO), srd(WS_)))
            b('s_waitcnt vmcnt(0)')
            b('v_cmp_eq_u32 vcc, -1, %s' % vr(self.vP))
            b('s_and_b32 s54, vcc_lo, 0x%x' % (mask & 0xffffffff))
            b('s_and_b32 s55, vcc_hi, 0x%x' % (mask >> 32))
            b('s_or_b32 s54, s54, s55')
            b('s_cbranch_scc0 %s' % ready)
            b('s_add_u32 %s, %s, 1' % (sr(sCNT), sr(sCNT)))
            b('s_cmp_lt_u32 %s, %d' % (sr(sCNT), OPT['poll_limit']))
            b('s_cbranch_scc1 %s' % again)
            b(ready + ':')
            b.begin_region()
            for tp in TPO:
                b(self.hload(j, tp))
            for tag in snap:
                if tag and tag.startswith('h') and '_' in tag and tag[1].isdigit():
                    jj, tp = tag[1:].split('_')
                    b(self.hload(int(jj), int(tp)))
                else:
                    b('buffer_load_dword %s, off, %s, 0' % (vr(249), srd(WS_)))
            b.end_region()
            b.vmq = []
            b('s_waitcnt vmcnt(%d)' % min(len(snap), 63))
            b('v_max3_u32 %s, %s, %s, %s' % (vr(248), vr(base), vr(base + 4), vr(base + 8)))
            b('v_max_u32 %s, %s, %s' % (vr(248), vr(248), vr(base + 12)))
            b('v_cmp_eq_u32 vcc, -1, %s' % vr(248))
            b('s_cbranch_vccz %s' % back)
            b('s_add_u32 %s, %s, 1' % (sr(sCNT), sr(sCNT)))
            b('s_cmp_lt_u32 %s, %d' % (sr(sCNT), OPT['poll_limit']))
            b('s_cbranch_scc1 %s' % again)
            b('s_branch %s' % back)
        self.slow = []

    def phase2(self, role):
        b = self.b
        RING, XR = self.RING, self.XR
        for it in self.verify_items(0, role):
            it()
        self.ts('ver0')
        tr = self.w2_tr(3) + self.w2_tr(4) + self.w2_tr(5)
        for j in range(15):
            base = RING + 16 * (j % 8)
            self.ts('p%d' % j)
            mf = []
            for tp in TPO:
                for cp in range(4):
                    acc = 16 * tp + 4 * cp
                    cin = vr(acc, 4) if (j > 0 or tp == 0) else '0'
                    mf.append('%s %s, %s, %s, %s' % (MF, vr(acc, 4), ar(16 * j + 4 * cp, 4), vr(base + 4 * tp, 4), cin))
            G = 16
            slots = [[] for _ in range(G)]
            if j == 0:
                adr = ['v_add_u32 %s, 0x1000, %s' % (vr(self.vH8), vr(vHA)),
                       'v_add_u32 %s, 0x1000, %s' % (vr(self.vH10), vr(vHB_)),
                       's_cmp_eq_u32 %s, 3' % sr(sW),
                       's_cselect_b32 s54, %d, 1024' % OOB,
                       'v_add_u32 %s, s54, %s' % (vr(self.vH9), vr(self.vH8)),
                       's_lshl_b32 s54, %s, 12' % sr(sW),
                       's_add_u32 s54, s54, %d' % (43 * 1024),
                       'v_add_u32 %s, s54, %s' % (vr(self.vHT), vr(vL16))]
                slots[0] += [one(adr[0])]
                res = []
                for cp in range(4):
                    for h in range(2):
                        x = XR + 2 * cp + h
                        res.append(one('v_lshlrev_b32 %s, 16, %s' % (vr(4 * cp + 2 * h), vr(x))))
                        res.append(one('v_and_b32 %s, 0xffff0000, %s' % (vr(4 * cp + 2 * h + 1), vr(x))))
                k = 0
                for g in (0, 1, 1, 2, 2, 4, 4, 5, 5, 6, 6, 8, 8, 9, 9, 10):
                    slots[g].append(res[k])
                    k += 1
                slots[12] += [one(adr[1]), one(adr[2]) + one(adr[3]) + one(adr[4])]
                slots[13] += [one(adr[5]) + one(adr[6]) + one(adr[7])]
            if j + 8 < 15:
                for i, tp in enumerate(TPO):
                    slots[4 * i + 3].append(one(self.hload(j + 8, tp), 'h%d_%d' % (j + 8, tp)))
            if 1 <= j <= 10:
                mine, tr = tr[:6], tr[6:]
                for g, it in zip((0, 1, 2, 4, 5, 6), mine):
                    slots[g].append(it)
            if j < 14:
                v = self.verify_items(j + 1, role)
                slots[12].insert(0, v[0])
                slots[13].insert(0, v[1])
                slots[14].insert(0, v[2])
            for i, m in enumerate(mf):
                b(m)
                for it in slots[i]:
                    self.emit(it)
        assert not tr
        self.ts('p2loop')
        vRR = T + 13
        FL = T + 8
        b('v_add_u32 %s, %s, %s' % (vr(vRR), sr(sW2L), vr(vL16)))
        b('v_add_u32 %s, %d, %s' % (vr(vRR + 1), 2 * SLOT, vr(vRR)))
        for tp in range(1, 4):
            for cp in range(4):
                if tp < 3:
                    b('ds_write_b128 %s, %s offset:%d' % (vr(vRR), vr(16 * tp + 4 * cp, 4), (tp - 1) * SLOT + cp * 1024), tag='rw')
                else:
                    b('ds_write_b128 %s, %s offset:%d' % (vr(vRR + 1), vr(16 * tp + 4 * cp, 4), cp * 1024), tag='rw')
        for tp in range(1, 4):
            b('s_sub_u32 s54, %s, %d' % (sr(sW), tp))
            b('s_and_b32 s54, s54, 3')
            b('s_mul_i32 s54, s54, %d' % REG)
            b('s_add_u32 s54, s54, %d' % (SLOT0 + (tp - 1) * SLOT))
            b('v_add_u32 %s, s54, %s' % (vr(FL + tp), vr(vL16)))
        b.wait_lg('rw')
        b('s_barrier')
        RD = 64
        for tp in range(1, 4):
            for cp in range(4):
                b('ds_read_b128 %s, %s offset:%d' % (vr(RD + 16 * (tp - 1) + 4 * cp, 4), vr(FL + tp), cp * 1024), tag='rr')
        for tp in range(1, 4):
            for cp in range(4):
                for h in range(2):
                    r = 4 * cp + 2 * h
                    b('v_pk_add_f32 %s, %s, %s' % (vr(r, 2), vr(r, 2), vr(RD + 16 * (tp - 1) + r, 2)))
        PK = 16
        for cp in range(4):
            for h in range(2):
                b('v_cvt_pk_bf16_f32 %s, %s, %s' % (vr(PK + 2 * cp + h), vr(4 * cp + 2 * h), vr(4 * cp + 2 * h + 1)))
        for pr in range(2):
            p0, p1 = PK + 4 * pr, PK + 4 * pr + 2
            b('v_permlane16_swap_b32 %s, %s' % (vr(p0), vr(p1)))
            b('v_permlane16_swap_b32 %s, %s' % (vr(p0 + 1), vr(p1 + 1)))
        for pr in range(2):
            p0 = PK + 4 * pr
            b('buffer_store_dwordx4 %s, %s, %s, 0 offen offset:%d %s' % (vr(p0, 4), vr(vO), srd(OUT_), 64 * pr, OPT['ost']), tag='out')
        if OPT['stamps']:
            self.ts('end')
            n = len(OPT['stamps'].split(','))
            b('s_lshl_b32 s54, s2, 2')
            b('s_add_u32 s54, s54, %s' % sr(sW))
            b('s_lshl_b32 s54, s54, 7')
            b('s_add_u32 s54, s54, %d' % WS_FINE)
            b('s_mov_b32 s14, %d' % (WS_FINE + (1 << 20)))
            b('s_mov_b64 exec, 1')
            b('s_waitcnt lgkmcnt(0)')
            for i in range(n):
                b('v_mov_b32 %s, %s' % (vr(32 + i), sr(sTS + (2 if OPT['fst'] else 1) * i)))
                b('buffer_store_dword %s, off, %s, s54 offset:%d' % (vr(32 + i), srd(WS_), 4 * i))
            b('s_mov_b64 exec, -1')
        b('s_endpgm')

    def kernel(self):
        b = self.b
        self.prologue()
        b('s_cmp_lg_u32 %s, 0' % sr(sROLE))
        b('s_cbranch_scc1 L_mlp')
        st = self.save()
        for att, role in ((True, 'a'), (False, 'm')):
            if not att:
                b('L_mlp:')
                self.restore(st)
                b('s_nop 7')
            b.comment('attention workgroups' if att else 'MLP workgroups')
            self.role_prologue(att)
            self.main_loop(att)
            self.ts('loop')
            if att:
                self.att_epilogue()
            else:
                self.mlp_epilogue()
            self.phase2(role)
            self.emit_slow()
        b('L_end:')
        b('s_endpgm')
        b.finalize()
        return b.text()


HEADER = '''; LayerNorm + (dilated sliding-window attention || ReLU MLP) + residual, one persistent launch.
; @launch grid=(256,1,1) block=(256,1,1) lds=%d
.amdgcn_target "amdgcn-amd-amdhsa--gfx950"
.text
.globl %s_kernel
.p2align 8
.type %s_kernel,@function
%s_kernel:
'''
FOOTER = '''.section .rodata,"a"
.p2align 6
.amdhsa_kernel %s_kernel
  .amdhsa_next_free_vgpr 512
  .amdhsa_next_free_sgpr 102
  .amdhsa_accum_offset 256
  .amdhsa_group_segment_fixed_size 0
  .amdhsa_kernarg_size 72
  .amdhsa_user_sgpr_count 2
  .amdhsa_user_sgpr_kernarg_segment_ptr 1
  .amdhsa_system_sgpr_workgroup_id_x 1
.end_amdhsa_kernel
'''


def build(**opt):
    OPT.update(opt)
    g = Gen()
    body = g.kernel()
    extra = '; stamps: %s\n' % OPT['stamps'] if OPT['stamps'] else ''
    return extra + HEADER % (LDS_BYTES, NAME, NAME, NAME) + body + FOOTER % NAME


if __name__ == '__main__':
    out = sys.argv[1] if len(sys.argv) > 1 else 'k2.s'
    opt = {}
    for a in sys.argv[2:]:
        k, v = a.split('=')
        opt[k] = v if k in ('stamps', 'poison', 'hld', 'hstf', 'ost') else tuple(int(x) for x in v.split(',')) if k == 'pfu' else int(v)
    open(out, 'w').write(build(**opt))
    print('wrote', out)
```

```python
import re

REG_RE = re.compile(r'^([vas])(\d+)$')
RNG_RE = re.compile(r'^([vas])\[(\d+):(\d+)\]$')

TRANS = ('v_exp_f32', 'v_log_f32', 'v_rcp_f32', 'v_rsq_f32', 'v_sqrt_f32', 'v_sin_f32', 'v_cos_f32')


def regs_of(tok):
    tok = tok.strip()
    m = REG_RE.match(tok)
    if m:
        return [(m.group(1), int(m.group(2)))]
    m = RNG_RE.match(tok)
    if m:
        return [(m.group(1), i) for i in range(int(m.group(2)), int(m.group(3)) + 1)]
    if tok == 'vcc':
        return [('s', 'vcc')]
    if tok in ('exec', 'exec_lo', 'exec_hi'):
        return [('s', 'exec')]
    if tok == 'm0':
        return [('s', 'm0')]
    return []


class Ins:
    __slots__ = ('text', 'op', 'kind', 'w', 'r', 'region', 'tag', 'srcc', 'srcab', 'dpp', 'states',
                 'lds_dma', 'comment', 'wide_store', 'label', 'raw')

    def __init__(self, text, region=None, tag=None):
        self.text = text
        self.region = region
        self.tag = tag
        self.w = []
        self.r = []
        self.srcc = []
        self.srcab = []
        self.dpp = False
        self.states = 1
        self.lds_dma = False
        self.wide_store = False
        self.label = False
        self.raw = False
        self.parse()

    def parse(self):
        t = self.text.split(';')[0].strip()
        if t.endswith(':'):
            self.kind = 'label'
            self.op = t
            self.states = 0
            self.label = True
            return
        parts = t.split(None, 1)
        op = parts[0]
        self.op = op
        rest = parts[1] if len(parts) > 1 else ''
        ops = []
        depth = 0
        cur = ''
        for ch in rest:
            if ch == '[':
                depth += 1
            if ch == ']':
                depth -= 1
            if ch == ',' and depth == 0:
                ops.append(cur.strip())
                cur = ''
            else:
                cur += ch
        if cur.strip():
            ops.append(cur.strip())
        mods = ''
        if ops:
            lp = ops[-1].split(None, 1)
            ops[-1] = lp[0]
            if len(lp) > 1:
                mods = lp[1]
        R = lambda i: regs_of(ops[i]) if i < len(ops) else []
        if op.startswith('v_mfma'):
            self.kind = 'mfma'
            self.w = R(0)
            self.srcab = R(1) + R(2)
            self.srcc = R(3)
            self.r = self.srcab + self.srcc
        elif op.startswith('v_'):
            self.kind = 'valu'
            if op.startswith('v_dot2'):
                self.kind = 'dot'
            if op.split('_e32')[0].split('_e64')[0] in TRANS:
                self.kind = 'trans'
            self.dpp = ('row_' in mods) or ('quad_perm' in mods) or op.endswith('_dpp')
            if op.startswith('v_permlane'):
                self.kind = 'permlane'
                self.w = R(0) + R(1)
                self.r = R(0) + R(1)
            elif op.startswith('v_readfirstlane') or op.startswith('v_readlane'):
                self.kind = 'readlane'
                self.w = R(0)
                self.r = R(1) + R(2)
            else:
                self.w = R(0)
                for i in range(1, len(ops)):
                    self.r += R(i)
                if op.startswith('v_fmac') or op.startswith('v_pk_fmac') or self.dpp:
                    self.r += R(0)
        elif op.startswith('ds_'):
            self.kind = 'ds'
            if op.startswith('ds_read') or op.startswith('ds_bpermute'):
                self.w = R(0)
                self.r = R(1)
            else:
                for i in range(len(ops)):
                    self.r += R(i)
        elif op.startswith('buffer_') or op.startswith('global_'):
            self.kind = 'vmem'
            allm = ' ' + mods + ' '
            if op.startswith('buffer_load') or op.startswith('global_load'):
                if ' lds ' in allm:
                    self.lds_dma = True
                    for i in range(len(ops)):
                        self.r += R(i)
                    self.r += [('s', 'm0')]
                else:
                    self.w = R(0)
                    for i in range(1, len(ops)):
                        self.r += R(i)
            else:
                for i in range(len(ops)):
                    self.r += R(i)
                if op.endswith('x4') or op.endswith('x3'):
                    self.wide_store = True
        elif op.startswith('s_'):
            self.kind = 'salu'
            if op == 's_nop':
                self.kind = 'nop'
                self.states = int(ops[0], 0) + 1
            elif op == 's_waitcnt':
                self.kind = 'wait'
            elif op in ('s_barrier', 's_endpgm', 's_branch', 's_setprio') or op.startswith('s_cbranch'):
                self.kind = 'ctl'
            elif op.startswith('s_load') or op.startswith('s_buffer_load'):
                self.kind = 'smem'
                self.w = R(0)
                self.r = R(1)
            elif op.startswith('s_cmp') or op.startswith('s_bitcmp'):
                for i in range(len(ops)):
                    self.r += R(i)
            elif op in ('s_memtime', 's_memrealtime'):
                self.kind = 'smem'
                self.w = R(0)
            else:
                self.w = R(0)
                for i in range(1, len(ops)):
                    self.r += R(i)
                if 'saveexec' in op:
                    self.w += [('s', 'exec')]
        else:
            raise ValueError('unknown instruction: ' + t)


class Builder:
    def __init__(self):
        self.ins = []
        self.region = None
        self._rid = 0
        self._lid = 0
        self.vmq = []
        self.lgq = []
        self.smem_pending = []
        self.nmf = 0
        self.lg_merge = 0
        self.bg = []
        self.bg_every = 0
        self._bg_cnt = 0
        self._bg_busy = False

    def bg_pop(self, n=1):
        if self._bg_busy:
            return
        self._bg_busy = True
        for _ in range(n):
            if not self.bg:
                break
            it = self.bg.pop(0)
            if callable(it):
                it()
            else:
                for t, tag in it:
                    self(t, tag=tag)
        self._bg_busy = False

    def bg_flush(self):
        while self.bg:
            self.bg_pop()

    def label_name(self, base):
        self._lid += 1
        return '%s_%d' % (base, self._lid)

    def begin_region(self):
        self._rid += 1
        self.region = self._rid
        return self.region

    def end_region(self):
        self.region = None

    def comment(self, s):
        i = Ins('s_nop 0')
        i.kind = 'comment'
        i.text = '; ' + s
        i.states = 0
        i.w = []
        i.r = []
        self.ins.append(i)

    def _count_younger(self, q, idx):
        tgt = q[idx]
        n = 0
        for e in q[idx + 1:]:
            if e['region'] is None or e['region'] == tgt['region'] and e['region'] == self.region:
                n += 1
        return n

    def _emit_wait(self, vm=None, lg=None):
        parts = []
        if vm is not None:
            parts.append('vmcnt(%d)' % min(vm, 63))
        if lg is not None:
            parts.append('lgkmcnt(%d)' % min(lg, 15))
        if parts:
            i = Ins('s_waitcnt ' + ' '.join(parts), region=self.region)
            self.ins.append(i)

    def _need(self, q, pred):
        idx = None
        for k, e in enumerate(q):
            if pred(e):
                idx = k
        return idx

    def _retire(self, q, idx):
        if self.region is None:
            del q[:idx + 1]
        else:
            keep = [e for e in q[:idx + 1] if e['region'] != self.region]
            q[:idx + 1] = keep

    def wait_vm(self, *tags):
        idx = self._need(self.vmq, lambda e: e['tag'] in tags)
        if idx is None:
            return
        n = self._count_younger(self.vmq, idx)
        self._emit_wait(vm=n)
        self._retire(self.vmq, idx)

    def wait_lg(self, *tags):
        idx = self._need(self.lgq, lambda e: (not tags) or e['tag'] in tags)
        if idx is None:
            return
        n = self._count_younger(self.lgq, idx)
        self._emit_wait(lg=n)
        self._retire(self.lgq, idx)

    def wait_all(self, vm=True, lg=True):
        self._emit_wait(vm=0 if vm else None, lg=0 if lg else None)
        if self.region is None:
            if vm:
                self.vmq = []
            if lg:
                self.lgq = []
                self.smem_pending = []

    def __call__(self, text, tag=None):
        for line in text.split('\n'):
            line = line.strip()
            if not line:
                continue
            if line.startswith(';'):
                self.comment(line[1:].strip())
                continue
            self._one(line, tag)

    def _one(self, line, tag):
        i = Ins(line, region=self.region, tag=tag)
        if i.kind == 'wait':
            m = re.search(r'vmcnt\((\d+)\)', line)
            if m and self.region is not None and int(m.group(1)) == 0:
                self.vmq = [e for e in self.vmq if e['region'] != self.region]
            if m and self.region is None:
                n = int(m.group(1))
                while len([e for e in self.vmq if e['region'] is None]) > n or (n == 0 and self.vmq):
                    self.vmq.pop(0)
            m = re.search(r'lgkmcnt\((\d+)\)', line)
            if m and self.region is not None and int(m.group(1)) == 0:
                self.lgq = [e for e in self.lgq if e['region'] != self.region]
            if m and self.region is None:
                n = int(m.group(1))
                while len([e for e in self.lgq if e['region'] is None]) > n or (n == 0 and self.lgq):
                    self.lgq.pop(0)
                if n == 0:
                    self.smem_pending = []
            self.ins.append(i)
            return
        touched = set(i.r) | set(i.w)
        vm = lg = None
        if touched:
            idx = self._need(self.vmq, lambda e: e['regs'] & touched)
            if idx is not None:
                vm = self._count_younger(self.vmq, idx)
                self._retire(self.vmq, idx)
            idx = self._need(self.lgq, lambda e: e['regs'] & touched)
            if idx is not None:
                if self.lg_merge and self.region is None:
                    while idx + 1 < len(self.lgq) and self.lgq[idx + 1]['region'] is None and \
                            self.lgq[idx + 1].get('nm', self.nmf) <= self.nmf - self.lg_merge:
                        idx += 1
                lg = self._count_younger(self.lgq, idx)
                self._retire(self.lgq, idx)
            if set(self.smem_pending) & touched:
                lg = 0
                if self.region is None:
                    self.smem_pending = []
                    self.lgq = []
        self._emit_wait(vm, lg)
        self.ins.append(i)
        if i.kind == 'vmem':
            self.vmq.append(dict(regs=set(i.w), tag=tag, region=self.region))
        elif i.kind == 'ds':
            assert not self.smem_pending, 'LDS op with scalar load in flight: ' + line
            self.lgq.append(dict(regs=set(i.w), tag=tag, region=self.region, nm=self.nmf))
        elif i.kind == 'mfma':
            self.nmf += 1
        elif i.kind == 'smem':
            self.smem_pending += i.w
        if self.bg and self.bg_every and not self._bg_busy and self.region is None and i.kind in ('valu', 'trans'):
            self._bg_cnt += 1
            if self._bg_cnt >= self.bg_every:
                self._bg_cnt = 0
                self.bg_pop()

    def finalize(self):
        out = []
        for ins in self.ins:
            need = self._hazard(out, ins)
            while need > 0:
                n = min(need, 8)
                nop = Ins('s_nop %d' % (n - 1), region=ins.region)
                out.append(nop)
                need -= n
            out.append(ins)
        self.ins = out
        return out

    @staticmethod
    def _isv(regs):
        return [x for x in regs if x[0] in 'va']

    def _hazard(self, out, c):
        if c.kind in ('label', 'comment', 'nop', 'wait'):
            return 0
        need = 0
        dist = 0
        cr = set(c.r)
        cw = set(c.w)
        crw = cr | cw
        valu_like = c.kind in ('valu', 'trans', 'dot', 'permlane', 'readlane')
        k = len(out) - 1
        while k >= 0 and dist < 24:
            p = out[k]
            k -= 1
            if p.kind in ('label', 'comment'):
                continue
            req = 0
            pw = set(p.w)
            p_valu = p.kind in ('valu', 'trans', 'dot', 'permlane', 'readlane')
            if p.kind == 'mfma':
                d = pw
                if c.kind == 'mfma':
                    if d & set(c.srcab):
                        req = max(req, 8)
                    cc = set(c.srcc)
                    if d & cc and cc != d:
                        req = max(req, 6)
                    if d & cw and not (d & cc):
                        req = max(req, 8)
                elif d & crw and c.kind in ('valu', 'trans', 'dot', 'permlane', 'readlane', 'ds', 'vmem'):
                    req = max(req, 8)
                if valu_like and set(p.srcc) & cw:
                    req = max(req, 3)
            if p_valu:
                pv = {x for x in pw if x[0] in 'va'}
                ps = {x for x in pw if x[0] == 's'}
                if c.kind == 'mfma' and pv & cr:
                    req = max(req, 2)
                if (c.dpp or c.kind == 'permlane') and pv & cr:
                    req = max(req, 2)
                if c.kind == 'readlane' and pv & cr:
                    req = max(req, 1)
                if ps and valu_like and ps & cr:
                    req = max(req, 4 if c.kind == 'readlane' else 2)
                if ps and c.kind == 'vmem' and ps & cr:
                    req = max(req, 5)
                if p.kind == 'trans' and valu_like and pv & cr:
                    req = max(req, 1)
                if p.kind == 'dot' and pv & crw and (valu_like or c.kind in ('mfma', 'ds', 'vmem')):
                    if not (c.kind == 'dot' and c.op == p.op and self._dot_chain(p, c)):
                        req = max(req, 3)
            if p.kind == 'salu' and ('s', 'm0') in pw and c.lds_dma:
                req = max(req, 1)
            if p.kind == 'vmem' and p.wide_store:
                data = {x for x in p.r if x[0] in 'va'}
                if data & cw:
                    req = max(req, 2)
            if req > dist:
                need = max(need, req - dist)
            if p.region is None or p.region == c.region:
                dist += p.states
            else:
                dist += self._opt_states(out, k + 1, p)
        return need

    @staticmethod
    def _opt_states(out, k, p):
        return 0

    @staticmethod
    def _dot_chain(p, c):
        t = c.text.split(';')[0]
        ops = [o.strip() for o in t.split(None, 1)[1].split(',')]
        a = set(regs_of(ops[1])) | set(regs_of(ops[2].split()[0]))
        return not (a & set(p.w))

    def text(self):
        lines = []
        for i in self.ins:
            if i.kind == 'label':
                lines.append(i.text)
            elif i.kind == 'comment':
                lines.append('    ' + i.text)
            else:
                lines.append('    ' + i.text)
        return '\n'.join(lines) + '\n'
```

```python
import copy
import sys
from asmb import Builder

NAME = 'parallel_sum__sliding_local_dilated__dense_activation_relu__prompt'

OPT = dict(D=6, hfirst=1, vlo=1, st2p=1, su=(1, 3), nu=4, gu=11, gc=14, fu=12, pzu=(1, 2, 3, 4), cdot=8, sch=1, m0e=1, wm=6, cV=16, cD=4, cB=4, rdhi=0.75, lam=1.0, hld='sc1', hstf='sc1', pfu=(4, 6, 8), fst=0, poll_limit=4000, stamps='', abl=0, poison='att', pf=3, late2=0, ost='', owarm=0, cpf=0, sparse=0, bg_att=4, bg_mlp=3, verbose=0)
WS_FINE = 8 << 20

SLOT0, SLOT, WOFF = 1024, 43008, 18432
REG = 10752
ST = 132096
STR = 576
OX = 134144
SX = 150528
LDS_BYTES = 163840

WS_STATS, WS_D, H_OFF = 0, 32768, 131072
NKS = 59
WS_BYTES = H_OFF + 128 * NKS * 1024
OOB = 0x40000000
WBIAS = 2048

X_, W_, WS_, DBG_, W2_, WO_, OUT_ = 4, 8, 12, 16, 20, 24, 28
sW, sRB, sGRP, sROLE = 32, 33, 34, 35
sWOFF = 36
sW2A, sW2B, sW2C, sWOB, sFLC = 36, 37, 38, 39, 41
sXOFF, sXL, sWL, sHL, sWSTEP, sC = 42, 43, 44, 45, 46, 47
sW2L = 44
sHM = 48
sHST, sFL, sU = 50, 51, 53
sNON = 58
sP, sC0, sC1, sZ = 60, 62, 64, 66
sRT, sCT = 68, 69
sHB = 70
sPS, sCNT = 74, 75
sTS = 76
sTH, sNP = 100, 101


def srd(n):
    return 's[%d:%d]' % (n, n + 3)


def vr(a, n=1):
    return 'v%d' % a if n == 1 else 'v[%d:%d]' % (a, a + n - 1)


def ar(a, n=1):
    return 'a%d' % a if n == 1 else 'a[%d:%d]' % (a, a + n - 1)


def sr(a, n=1):
    return 's%d' % a if n == 1 else 's[%d:%d]' % (a, a + n - 1)


vONES = 212
vXA, vXB, vWA, vWB = 216, 217, 218, 219
vDX = 220
vDH, vDW = 224, 225
vSO, vG, vGL = 226, 227, 238
vGR = 228
vLD = 232
vNON = 236
vL = 239
T = 240
vL16 = 240
vHA, vHB_, vFA = 241, 242, 236
vROW = 244
vXR, vO = 226, 237
vE = 200
aE = 244
sTAG, sSGN = 52, 3
vTB2, vTB01 = 228, 232
vFLG = 222
aPOIS = 252

MF = 'v_mfma_f32_16x16x32_bf16'
MF16 = 'v_mfma_f32_16x16x16_bf16'
TPO = [1, 2, 3, 0]


def one(t, tag=None):
    return [(t, tag)]


def size_of(it):
    if callable(it):
        return getattr(it, 'size', 2)
    return len(it)


def cost_of(it):
    if callable(it):
        return getattr(it, 'cost', 4 * getattr(it, 'size', 2))
    c = 0
    for t, _ in it:
        if t.startswith('buffer_') or t.startswith('global_'):
            c += OPT['cV'] if 'dwordx4' in t else 8
        elif t.startswith('v_dot2'):
            c += OPT['cdot']
        elif t.startswith('ds_read_b128'):
            c += OPT['cB']
        elif t.startswith('ds_'):
            c += OPT['cD']
        else:
            c += 4
    return c


def blk(fn, size=2):
    def w():
        fn()
    w.size = size
    return w


class Gen:
    def __init__(self):
        self.b = Builder()
        self.slow = []

    def ts(self, name):
        names = OPT['stamps'].split(',') if OPT['stamps'] else []
        if name + '@' in names and OPT['fst']:
            from asmb import Ins
            k = sTS + 2 * names.index(name + '@')
            i = Ins('s_memtime s[%d:%d]' % (k, k + 1), region=self.b.region)
            i.w = []
            self.b.ins.append(i)
        if name not in names:
            return
        b = self.b
        if OPT['fst']:
            from asmb import Ins
            k = sTS + 2 * names.index(name)
            i = Ins('%s s[%d:%d]' % ('s_memtime' if OPT['fst'] == 2 else 's_memrealtime', k, k + 1), region=b.region)
            i.w = []
            b.ins.append(i)
            return
        b.wait_lg()
        b('s_memrealtime s[98:99]')
        b('s_waitcnt lgkmcnt(0)')
        b('s_mov_b32 %s, s98' % sr(sTS + names.index(name)))

    def save(self):
        b = self.b
        return copy.deepcopy((b.vmq, b.lgq, b.smem_pending))

    def restore(self, st):
        b = self.b
        b.vmq, b.lgq, b.smem_pending = copy.deepcopy(st)

    def emit(self, it):
        if callable(it):
            it()
        else:
            for t, tag in it:
                self.b(t, tag=tag)

    def schedule2(self, mf, streams, G, name=''):
        slots = [[] for _ in range(G)]
        load = [0] * G
        for st in sorted(streams, key=lambda x: -x.get('prio', 0)):
            items = st['items']
            if not items:
                continue
            lo, hi = st.get('lo', 0), min(st.get('hi', G - 1), G - 1)
            mind = st.get('mind', 0)
            n = len(items)
            prev = lo - mind
            for i, it in enumerate(items):
                c = cost_of(it)
                tgt = lo + (i + st.get('ph', 0.5)) * (hi - lo + 1) / n - 0.5
                g0 = min(max(prev + mind, lo), G - 1)
                g1 = G - 1 - (n - 1 - i) * mind
                g1 = max(g1, g0)
                best = None
                for g in range(g0, g1 + 1):
                    over = max(0, load[g] + c - 8) - max(0, load[g] - 8)
                    d = g - tgt
                    sc = OPT['lam'] * over + (abs(d) if d <= 0 or g <= hi else 2 * abs(d) + 2)
                    if best is None or sc < best[0]:
                        best = (sc, g)
                pick = best[1]
                slots[pick].append((st.get('ord', 1), it))
                load[pick] += c
                prev = pick
        if OPT['verbose']:
            tot = sum(max(16, 8 + x) for x in load)
            print('%-8s' % name, ''.join('%x' % min(x // 4, 15) for x in load), sum(load), 'est', tot, file=sys.stderr)
        for i, m in enumerate(mf):
            if callable(m):
                m()
            else:
                self.b(m)
            if i < G:
                self.ts('g%s_%d' % (name[1:], i))
                for _, it in sorted(slots[i], key=lambda x: x[0]):
                    self.emit(it)

    def schedule(self, mf, streams, G, name=''):
        if OPT['sch']:
            return self.schedule2(mf, streams, G, name)
        slots = [[] for _ in range(G)]
        load = [0] * G
        for st in streams:
            items = st['items']
            if not items:
                continue
            lo, hi = st.get('lo', 0), min(st.get('hi', G - 1), G - 1)
            mind = st.get('mind', 0)
            n = len(items)
            prev = lo - mind
            for i, it in enumerate(items):
                sz = size_of(it)
                tgt = lo + int((i + st.get('ph', 0.5)) * (hi - lo + 1) / n)
                g0 = max(prev + mind, lo)
                cands = sorted(range(min(g0, G - 1), G), key=lambda g: (abs(g - tgt), g))
                pick = None
                for cap in (2, 3, 4, 99):
                    for g in cands:
                        if abs(g - tgt) > 3 and cap < 99 and g > tgt:
                            continue
                        if g < tgt - 1 and cap < 99:
                            continue
                        if load[g] + sz <= cap or (load[g] == 0 and sz > cap and cap == 2):
                            pick = g
                            break
                    if pick is not None:
                        break
                slots[pick].append(it)
                load[pick] += sz
                prev = pick
        if OPT['verbose']:
            print('%-8s' % name, ''.join(str(min(x, 9)) for x in load), sum(load), file=sys.stderr)
        for i, m in enumerate(mf):
            if callable(m):
                m()
            else:
                self.b(m)
            if i < G:
                for it in slots[i]:
                    self.emit(it)

    def poll_loop(self, load_text, check, name):
        b = self.b
        ok = b.label_name(name + '_ok')
        again = b.label_name(name + '_again')
        check()
        b('s_cbranch_scc1 %s' % ok)
        b.begin_region()
        b('s_mov_b32 %s, 0' % sr(sCNT))
        b(again + ':')
        b('s_sleep 1')
        b(load_text)
        b('s_waitcnt vmcnt(0)')
        check()
        b('s_cbranch_scc1 %s' % ok)
        b('s_add_u32 %s, %s, 1' % (sr(sCNT), sr(sCNT)))
        b('s_cmp_lt_u32 %s, %d' % (sr(sCNT), OPT['poll_limit']))
        b('s_cbranch_scc1 %s' % again)
        b.end_region()
        b(ok + ':')

    def prologue(self):
        b = self.b
        b('s_cmp_ge_u32 s2, 256')
        b('s_cbranch_scc1 L_end')
        b('s_lshr_b32 %s, s2, 4' % sr(sROLE))
        b('s_and_b32 %s, %s, 1' % (sr(sROLE), sr(sROLE)))
        b('s_cmp_eq_u32 %s, 0' % sr(sROLE))
        b('s_cselect_b32 s3, 8, 32')
        b('s_load_dwordx2 s[4:5], s[0:1], 0')
        b('s_load_dwordx2 s[8:9], s[0:1], s3')
        b('s_load_dwordx2 s[12:13], s[0:1], 64')
        b('s_load_dwordx2 s[16:17], s[0:1], 56')
        b('s_load_dwordx2 s[20:21], s[0:1], 40')
        b('s_load_dwordx2 s[24:25], s[0:1], 16')
        b('s_load_dwordx2 s[28:29], s[0:1], 48')
        b('s_memrealtime %s' % sr(sNON, 2))
        vl, L3, L7, g, n, a, c = vL, 1, 2, 3, 4, 5, 6
        self.pv = dict(l=vl, L3=L3, L7=L7, g=g, n=n, a=a, c=c)
        b('v_and_b32 %s, 63, v0' % vr(vl))
        b('v_lshrrev_b32 %s, 6, v0' % vr(a))
        b('v_lshrrev_b32 %s, 3, %s' % (vr(L3), vr(vl)))
        b('v_readfirstlane_b32 %s, %s' % (sr(sW), vr(a)))
        b('v_and_b32 %s, 7, %s' % (vr(L7), vr(vl)))
        b('v_lshrrev_b32 %s, 4, %s' % (vr(g), vr(vl)))
        b('v_and_b32 %s, 15, %s' % (vr(n), vr(vl)))
        b('s_mov_b32 s6, 0x200000')
        b('s_mov_b32 s7, 0x20000')
        b('s_cmp_eq_u32 %s, 0' % sr(sROLE))
        b('s_mov_b32 s10, %d' % (512 * 2752 + (WBIAS if OPT['m0e'] else 0)))
        b('s_cselect_b32 s10, %d, s10' % (512 * 3072))
        b('s_mov_b32 s11, 0x20000')
        b('s_and_b32 s54, s2, 7')
        b('s_lshr_b32 s55, s2, 3')
        b('s_and_b32 s56, s54, 1')
        b('s_lshl_b32 s56, s56, 3')
        b('s_lshr_b32 s57, s55, 2')
        b('s_add_u32 %s, s56, s57' % sr(sRB))
        b('s_and_b32 s56, s54, 6')
        b('s_and_b32 s57, s55, 1')
        b('s_add_u32 %s, s56, s57' % sr(sGRP))
        b('s_lshl_b32 s56, s54, 2')
        b('s_lshr_b32 s57, s55, 3')
        b('s_add_u32 %s, s56, s57' % sr(sRT))
        b('s_and_b32 %s, s55, 7' % sr(sCT))
        b('s_lshr_b32 s54, %s, 1' % sr(sGRP))
        b('s_mul_i32 s54, s54, 11')
        b('s_and_b32 s55, %s, 1' % sr(sGRP))
        b('s_mul_i32 s56, s55, 6')
        b('s_add_u32 s54, s54, s56')
        b('s_cmp_eq_u32 %s, 7' % sr(sGRP))
        b('s_subb_u32 %s, s54, 0' % sr(sPS))
        b('s_cmp_eq_u32 %s, 6' % sr(sGRP))
        b('s_cselect_b32 s56, 1, s55')
        b('s_sub_u32 %s, 6, s56' % sr(sNP))
        b('s_lshl_b32 s54, %s, 7' % sr(sRB))
        b('s_lshl_b32 s55, %s, 5' % sr(sW))
        b('s_add_u32 s55, s55, s54')
        b('v_add_u32 %s, s55, %s' % (vr(a), vr(L3)))
        b('v_xor_b32 %s, %s, %s' % (vr(c), vr(L7), vr(g)))
        b('v_lshlrev_b32 %s, 4, %s' % (vr(c), vr(c)))
        b('v_lshl_add_u32 %s, %s, 10, %s' % (vr(vDX), vr(a), vr(c)))
        e = 1024 if OPT['m0e'] else 0
        b('v_add_u32 %s, 0x%x, %s' % (vr(vDX + 1), 0x2000 - e, vr(vDX)))
        b('v_xor_b32 %s, 64, %s' % (vr(vDX + 1), vr(vDX + 1)))
        b('v_add_u32 %s, 0x%x, %s' % (vr(vDX + 2), 0x4000 - 2 * e, vr(vDX)))
        b('v_add_u32 %s, 0x%x, %s' % (vr(vDX + 3), 0x4000 - 2 * e, vr(vDX + 1)))
        b('s_and_b32 s55, %s, 1' % sr(sW))
        b('s_lshl_b32 s55, s55, 4')
        b('s_lshr_b32 s56, %s, 1' % sr(sW))
        b('s_lshl_b32 s56, s56, 2')
        b('s_add_u32 s55, s55, s56')
        b('v_lshrrev_b32 %s, 5, %s' % (vr(a), vr(vl)))
        b('v_lshlrev_b32 %s, 3, %s' % (vr(a), vr(a)))
        b('v_and_b32 %s, 3, %s' % (vr(c), vr(L3)))
        b('v_add3_u32 %s, %s, %s, s55' % (vr(a), vr(a), vr(c)))
        b('v_lshlrev_b32 %s, 1, %s' % (vr(c), vr(g)))
        b('v_xor_b32 %s, %s, %s' % (vr(c), vr(L7), vr(c)))
        b('v_lshlrev_b32 %s, 4, %s' % (vr(c), vr(c)))
        b('s_cmp_eq_u32 %s, 0' % sr(sROLE))
        b('s_mov_b32 s56, 2752')
        b('s_cselect_b32 s56, 3072, s56')
        b('s_lshl_b32 s57, %s, 7' % sr(sGRP))
        b('s_lshl_b32 s52, %s, 6' % sr(sPS))
        b('s_cmp_eq_u32 %s, 0' % sr(sROLE))
        b('s_cselect_b32 s57, s57, s52')
        if OPT['m0e']:
            b('s_cselect_b32 s55, 0, %d' % (128 - 1024))
            b('s_cselect_b32 s36, 0, %d' % WBIAS)
        else:
            b('s_mov_b32 s55, 128')
            b('s_cselect_b32 s55, 1024, s55')
            b('s_mov_b32 s36, 0')
        b('v_add_u32 %s, s57, %s' % (vr(c), vr(c)))
        b('v_mad_u32_u24 %s, %s, s56, %s' % (vr(vDW), vr(a), vr(c)))
        b('s_add_u32 s37, s36, s55')
        b('s_add_u32 s38, s37, s55')
        b('s_lshl_b32 s39, s56, 5')
        b('s_add_u32 s39, s39, s36')
        b('s_add_u32 s40, s39, s55')
        b('s_add_u32 s41, s40, s55')
        b('s_lshl_b32 %s, s56, 6' % sr(sWSTEP))
        b('s_mov_b32 %s, 0' % sr(sXOFF))
        b('s_lshl_b32 s54, %s, 12' % sr(sW))
        b('s_add_u32 %s, s54, %d' % (sr(sXL), SLOT0 + 2048))
        b('s_mul_i32 s54, %s, 6144' % sr(sW))
        b('s_add_u32 %s, s54, %d' % (sr(sWL), SLOT0 + WOFF))

    def halo_setup(self):
        b = self.b
        pv = self.pv
        L3, L7, g, a, c = (pv[k] for k in ('L3', 'L7', 'g', 'a', 'c'))
        b('s_lshl_b32 s54, %s, 9' % sr(sW))
        b('s_add_u32 %s, s54, %d' % (sr(sHL), SLOT0))
        b('s_lshl_b32 s54, %s, 7' % sr(sRB))
        b('s_lshl_b32 s55, %s, 2' % sr(sW))
        b('s_add_u32 s55, s55, s54')
        b('s_sub_u32 s55, s55, 16')
        b('v_add_u32 %s, s55, %s' % (vr(a), vr(L3)))
        b('v_max_i32 %s, 0, %s' % (vr(a), vr(a)))
        b('s_lshl_b32 s56, %s, 1' % sr(sW))
        b('v_add_u32 %s, s56, %s' % (vr(c), vr(g)))
        b('v_xor_b32 %s, %s, %s' % (vr(c), vr(L7), vr(c)))
        b('v_and_b32 %s, 7, %s' % (vr(c), vr(c)))
        b('v_lshlrev_b32 %s, 4, %s' % (vr(c), vr(c)))
        b('v_lshl_add_u32 %s, %s, 10, %s' % (vr(vDH), vr(a), vr(c)))
        b('s_cmp_eq_u32 %s, 0' % sr(sW))
        b('s_cselect_b32 %s, 0xffffff00, -1' % sr(sHM))
        b('s_mov_b32 %s, 0' % sr(sHM + 1))

    def srd_rest(self):
        return ['s_mov_b32 s14, %d' % WS_BYTES, 's_mov_b32 s15, 0x20000',
                's_mov_b32 s18, 256', 's_mov_b32 s19, 0x20000',
                's_mov_b32 s22, %d' % (1376 * 1024), 's_mov_b32 s23, 0x20000',
                's_mov_b32 s26, %d' % (512 * 1024), 's_mov_b32 s27, 0x20000',
                's_mov_b32 s30, 0x200000', 's_mov_b32 s31, 0x20000']

    def dma_items(self, att, s):
        slot = SLOT * (s % 3)
        tag = 'st%d' % s
        e = OPT['m0e']
        items = []
        for j in range(4):
            items.append(((sXL, slot + (0 if e else j * 1024)),
                          one('buffer_load_dwordx4 %s, %s, %s offen%s lds' % (vr(vDX + j), srd(X_), sr(sXOFF), ' offset:%d' % (j * 1024) if e and j else ''), tag)))
        if att:
            items.append(((sHL, slot),
                          [('s_mov_b64 exec, %s' % sr(sHM, 2), None),
                           ('buffer_load_dwordx4 %s, %s, %s offen lds' % (vr(vDH), srd(X_), sr(sXOFF)), tag),
                           ('s_mov_b64 exec, -1', None)]))
        for bb in range(2):
            for p in range(3):
                items.append(((sWL, slot + (3 * bb + (0 if e else p)) * 1024),
                              one('buffer_load_dwordx4 %s, %s, %s offen%s lds' % (vr(vDW), srd(W_), sr(sWOFF + 3 * bb + p), ' offset:%d' % (p * 1024) if e and p else ''), tag)))
        tail = [one('v_add_u32 %s, %s, %s' % (vr(vDW), sr(sWSTEP), vr(vDW))),
                one('s_add_u32 %s, %s, 128' % (sr(sXOFF), sr(sXOFF)))]
        return items, tail

    def dma_units(self, att, s, half):
        items, tail = self.dma_items(att, s)
        k = len(items) - 5
        part = items[:k] if half == 0 else items[k:]
        out = []
        for m0, ld in part:
            pre = []
            if m0 != self.m0cur:
                pre = [one('s_add_u32 m0, %s, %d' % (sr(m0[0]), m0[1]))]
                self.m0cur = m0
            out.append([pre, ld, []])
        if half == 1:
            out[-1][2] = tail
        return out

    def dma_half(self, att, s, half):
        out = []
        for pre, ld, tail in self.dma_units(att, s, half):
            out += pre + [ld] + tail
        return out

    def stats_items(self):
        t = 252
        s0, s1, q0, q1 = t, t + 1, t + 2, t + 3
        o = []
        for i in range(8):
            x = vr(vROW + i)
            sa = vr(s0 if i % 2 == 0 else s1)
            qa = vr(q0 if i % 2 == 0 else q1)
            o.append('v_dot2_f32_bf16 %s, %s, %s, %s' % (sa, x, vr(vONES), sa if i >= 2 else '0'))
            o.append('v_dot2_f32_bf16 %s, %s, %s, %s' % (qa, x, x, qa if i >= 2 else '0'))
        o.append('v_add_f32 %s, %s, %s' % (vr(s0), vr(s0), vr(s1)))
        o.append('v_add_f32 %s, %s, %s' % (vr(q0), vr(q0), vr(q1)))
        for sh in (8, 4, 2, 1):
            o.append('v_add_f32_dpp %s, %s, %s row_ror:%d row_mask:0xf bank_mask:0xf' % (vr(s0), vr(s0), vr(s0), sh))
            o.append('v_add_f32_dpp %s, %s, %s row_ror:%d row_mask:0xf bank_mask:0xf' % (vr(q0), vr(q0), vr(q0), sh))
        o.append('v_mov_b32 %s, %s' % (vr(s1), vr(s0)))
        o.append('v_mov_b32 %s, %s' % (vr(q1), vr(q0)))
        o.append('v_permlane16_swap_b32 %s, %s' % (vr(s0), vr(s1)))
        o.append('v_permlane16_swap_b32 %s, %s' % (vr(q0), vr(q1)))
        o.append('v_add_f32 %s, %s, %s' % (vr(s0), vr(s0), vr(s1)))
        o.append('v_add_f32 %s, %s, %s' % (vr(q0), vr(q0), vr(q1)))
        o.append('v_mul_f32 %s, 0xbb000000, %s' % (vr(vGR), vr(s0)))
        o.append('v_mul_f32 %s, 0x3b000000, %s' % (vr(q0), vr(q0)))
        o.append('v_fma_f32 %s, -%s, %s, %s' % (vr(q0), vr(vGR), vr(vGR), vr(q0)))
        o.append('v_max_f32 %s, 0, %s' % (vr(q0), vr(q0)))
        o.append('v_add_f32 %s, 0x3727c5ac, %s' % (vr(q0), vr(q0)))
        o.append('v_rsq_f32 %s, %s' % (vr(vGR + 1), vr(q0)))
        return [one(x) for x in o]

    def nonce_text(self):
        return 'buffer_load_dwordx2 %s, off, %s, 0 sc1' % (vr(vNON, 2), srd(DBG_))

    def nonce_and_stats_store(self):
        b = self.b

        def check():
            b('v_readfirstlane_b32 %s, %s' % (sr(sNON), vr(vNON)))
            b('v_readfirstlane_b32 %s, %s' % (sr(sNON + 1), vr(vNON + 1)))
            b('s_cmp_lg_u32 %s, 0' % sr(sNON))
        self.poll_loop(self.nonce_text(), check, 'L_non')
        b('v_mov_b32 %s, %s' % (vr(vGR + 2), sr(sNON)))
        b('v_mov_b32 %s, %s' % (vr(vGR + 3), sr(sNON + 1)))
        b('s_mul_i32 %s, %s, 0x9e3779b1' % (sr(sTAG), sr(sNON)))
        b('s_mov_b32 exec_lo, 1')
        b('s_mov_b32 exec_hi, 1')
        b('buffer_store_dwordx4 %s, %s, %s, 0 offen sc1' % (vr(vGR, 4), vr(vSO), srd(WS_)), tag='sst')
        b('s_mov_b64 exec, -1')
        b('s_lshr_b32 %s, %s, 16' % (sr(sSGN), sr(sTAG)))
        b('s_xor_b32 %s, %s, %s' % (sr(sTAG), sr(sTAG), sr(sSGN)))
        b('s_mov_b32 %s, 0x80008000' % sr(sSGN))

    def tag_items(self, att):
        a, c = 250, 251
        o = ['v_and_b32 %s, 3, %s' % (vr(a), vr(vL)),
             'v_lshlrev_b32 %s, 2, %s' % (vr(a), vr(a)),
             'v_lshlrev_b32 %s, %s, %s' % (vr(a), vr(a), sr(sTAG))]
        for i in range(4):
            if att:
                if i:
                    o.append('v_lshlrev_b32 %s, 1, %s' % (vr(a), vr(a)))
                o.append('v_and_b32 %s, %s, %s' % (vr(c), sr(sSGN), vr(a)))
                o.append('v_accvgpr_write_b32 %s, %s' % (ar(aE + i), vr(c)))
            else:
                if i:
                    o.append('v_lshlrev_b32 %s, 1, %s' % (vr(a), vr(a)))
                o.append('v_and_b32 %s, %s, %s' % (vr(vE + i), sr(sSGN), vr(a)))
        return [one(x) for x in o]

    def gather_text(self):
        return 'buffer_load_dwordx4 %s, %s, %s, 0 offen sc1' % (vr(vLD, 4), vr(vG), srd(WS_))

    def gather_check(self):
        b = self.b

        def check():
            b('v_cmp_ne_u32 vcc, %s, %s' % (sr(sNON), vr(vLD + 2)))
            b('v_cmp_ne_u32 %s, %s, %s' % (sr(sZ, 2), sr(sNON + 1), vr(vLD + 3)))
            b('s_or_b64 vcc, vcc, %s' % sr(sZ, 2))
            b('s_cmp_eq_u64 vcc, 0')
        self.poll_loop(self.gather_text(), check, 'L_gat')
        b('ds_write_b32 %s, %s' % (vr(vGL), vr(vLD)), tag='stw')
        b('ds_write_b32 %s, %s offset:%d' % (vr(vGL), vr(vLD + 1), STR), tag='stw')

    def poison_items(self, att):
        out = []
        tmp = 56
        sp = OPT['sparse']
        if sp:
            vPZ = 109 if att else 201
            per = 1024 // sp
            sh = {16: 4, 32: 5}[per]
            n = 64 // per
            pre = ['v_lshrrev_b32 %s, %d, %s' % (vr(vPZ), sh, vr(vL)),
                   'v_mul_u32_u24 %s, %d, %s' % (vr(vPZ), NKS * 1024 // 64, vr(vPZ)),
                   'v_and_b32 %s, %d, %s' % (vr(vPZ + 1), per - 1, vr(vL)),
                   'v_mul_u32_u24 %s, %d, %s' % (vr(vPZ + 1), sp // 16, vr(vPZ + 1)),
                   'v_lshl_add_u32 %s, %s, 2, %s' % (vr(vPZ + 1), vr(vPZ), vr(vPZ + 1)),
                   'v_lshlrev_b32 %s, 4, %s' % (vr(vPZ), vr(vPZ + 1))]
            self.pz_pre = [one(x) for x in pre]
            for p in range(1 if att else 3):
                for t0 in range(0, 4, n):
                    it = []
                    base = sHST
                    if p == 2:
                        base = 57
                        it += [('s_lshr_b32 s57, %s, 1' % sr(sW), None), ('s_add_u32 s57, s57, 4', None),
                               ('s_cmp_ge_u32 s57, %s' % sr(sNP), None),
                               ('s_cselect_b32 s57, %d, %s' % (OOB, sr(sHST)), None)]
                    it += [('s_add_u32 %s, %s, %d' % (sr(tmp), sr(base), t0 * NKS * 1024 + p * 2048), None),
                           ('buffer_store_dword %s, %s, %s, %s offen sc1' % (ar(aPOIS), vr(vPZ), srd(WS_), sr(tmp)), 'poison')]
                    out.append(it)
            return out
        if att:
            for i in range(4):
                out.append([('s_add_u32 %s, %s, %d' % (sr(tmp), sr(sHST), i * NKS * 1024), None),
                            ('buffer_store_dwordx4 %s, %s, %s, %s offen sc1' % (ar(aPOIS, 4), vr(vL16), srd(WS_), sr(tmp)), 'poison')])
        else:
            for p in range(3):
                if p == 2:
                    out.append([('s_lshr_b32 s57, %s, 1' % sr(sW), None),
                                ('s_add_u32 s57, s57, 4', None),
                                ('s_cmp_ge_u32 s57, %s' % sr(sNP), None),
                                ('s_cselect_b32 s57, %d, %s' % (OOB, sr(sHST)), None)])
                for t in range(4):
                    base = 57 if p == 2 else sHST
                    out.append([('s_add_u32 %s, %s, %d' % (sr(tmp), sr(base), t * NKS * 1024 + p * 2048), None),
                                ('buffer_store_dwordx4 %s, %s, %s, %s offen sc1' % (ar(aPOIS, 4), vr(vL16), srd(WS_), sr(tmp)), 'poison')])
        return out

    def flag_store(self):
        b = self.b
        b.wait_vm('poison')
        b('v_mov_b32 %s, %s' % (vr(250), sr(sNON)))
        b('v_mov_b32 %s, %s' % (vr(251), sr(sNON + 1)))
        b('s_mov_b64 exec, 1')
        b('buffer_store_dwordx2 %s, off, %s, %s sc1' % (vr(250, 2), srd(WS_), sr(sFL)), tag='flag')
        b('s_mov_b64 exec, -1')

    def setup_items(self, att):
        pv = self.pv
        l, L3, L7, g, n, a, c = (pv[k] for k in ('l', 'L3', 'L7', 'g', 'n', 'a', 'c'))
        d = 7
        o = []
        A = o.append
        A('s_lshl_b32 s60, %s, 7' % sr(sRB))
        A('s_lshl_b32 s61, %s, 3' % sr(sROLE))
        A('s_add_u32 s61, s61, %s' % sr(sGRP))
        A('s_lshl_b32 s61, s61, 3')
        A('s_add_u32 s61, s61, s60')
        A('s_lshl_b32 s62, %s, 1' % sr(sW))
        A('s_add_u32 s61, s61, s62')
        A('v_lshrrev_b32 v12, 5, %s' % vr(l))
        A('v_add_u32 v12, s61, v12')
        A('v_lshlrev_b32 %s, 4, v12' % vr(vSO))
        A('v_and_b32 v13, 31, %s' % vr(l))
        A('v_lshlrev_b32 v13, 4, v13')
        A('v_lshl_add_u32 v11, v12, 10, v13')
        A(('buffer_load_dwordx4 %s, v11, %s, 0 offen' % (vr(vROW, 4), srd(X_)), 'srow'))
        A(('buffer_load_dwordx4 %s, v11, %s, 0 offen offset:512' % (vr(vROW + 4, 4), srd(X_)), 'srow'))
        first = len(o)
        A('v_lshlrev_b32 %s, 4, %s' % (vr(vL16), vr(l)))
        for i in range(4):
            A('v_mov_b32 %s, 0x3f803f80' % vr(vONES + i))
        if att:
            A('v_add_u32 %s, %d, %s' % (vr(a), 2 * SLOT, vr(vL16)))
            A([('s_mov_b64 exec, 0xff', None),
               ('ds_write_b128 %s, %s offset:%d' % (vr(vL16), vr(vONES, 4), SLOT0), 'ones'),
               ('ds_write_b128 %s, %s offset:%d' % (vr(vL16), vr(vONES, 4), SLOT0 + SLOT), 'ones'),
               ('ds_write_b128 %s, %s offset:%d' % (vr(a), vr(vONES, 4), SLOT0), 'ones'),
               ('s_mov_b64 exec, -1', None)])
        A('v_lshrrev_b32 %s, 1, %s' % (vr(a), vr(n)))
        A('v_xor_b32 %s, %s, %s' % (vr(a), vr(a), vr(g)))
        A('v_lshlrev_b32 %s, 4, %s' % (vr(a), vr(a)))
        A('v_lshl_add_u32 %s, %s, 7, %s' % (vr(a), vr(n), vr(a)))
        if att:
            A('v_add_u32 %s, %d, %s' % (vr(vXA), SLOT0, vr(a)))
        else:
            A('s_and_b32 %s, %s, 1' % (sr(sTH), sr(sW)))
            A('s_lshl_b32 s54, %s, 13' % sr(sTH))
            A('s_add_u32 s54, s54, %d' % (SLOT0 + 2048))
            A('v_add_u32 %s, s54, %s' % (vr(vXA), vr(a)))
        A('v_xor_b32 %s, 64, %s' % (vr(vXB), vr(vXA)))
        r_, cc = d, d + 1
        A('v_bfe_u32 %s, %s, 2, 2' % (vr(r_), vr(l)))
        A('v_and_b32 %s, 3, %s' % (vr(cc), vr(l)))
        A('v_and_b32 %s, 1, %s' % (vr(a), vr(g)))
        A('v_lshl_add_u32 %s, %s, 2, %s' % (vr(a), vr(a), vr(r_)))
        A('v_lshrrev_b32 %s, 1, %s' % (vr(c), vr(a)))
        A('v_lshlrev_b32 %s, 1, %s' % (vr(c), vr(c)))
        if att:
            A('s_lshl_b32 s54, %s, 1' % sr(sW))
        else:
            A('s_and_b32 s54, %s, 2' % sr(sW))
            A('s_lshl_b32 s54, s54, 1')
        A('v_xor_b32 %s, s54, %s' % (vr(c), vr(c)))
        A('v_lshrrev_b32 %s, 1, %s' % (vr(d + 2), vr(cc)))
        A('v_add_u32 %s, %s, %s' % (vr(c), vr(c), vr(d + 2)))
        A('v_lshlrev_b32 %s, 4, %s' % (vr(c), vr(c)))
        A('v_lshl_add_u32 %s, %s, 7, %s' % (vr(c), vr(a), vr(c)))
        A('v_and_b32 %s, 1, %s' % (vr(a), vr(cc)))
        A('v_lshl_add_u32 %s, %s, 3, %s' % (vr(c), vr(a), vr(c)))
        A('v_lshrrev_b32 %s, 1, %s' % (vr(a), vr(g)))
        A('s_mov_b32 s54, 6144')
        A('v_mad_u32_u24 %s, %s, s54, %s' % (vr(c), vr(a), vr(c)))
        A('v_add_u32 %s, %d, %s' % (vr(vWA), SLOT0 + WOFF, vr(c)))
        if not att:
            A('v_xor_b32 %s, 32, %s' % (vr(vWB), vr(vWA)))
        if att:
            A('v_min_u32 %s, 35, %s' % (vr(a), vr(l)))
            A('s_mul_i32 s54, %s, 36' % sr(sW))
        else:
            A('v_min_u32 %s, 31, %s' % (vr(a), vr(l)))
            A('s_lshl_b32 s54, %s, 5' % sr(sW))
            A('s_add_u32 s54, s54, 16')
        A('v_add_u32 %s, s54, %s' % (vr(a), vr(a)))
        A('v_lshlrev_b32 %s, 2, %s' % (vr(c), vr(a)))
        A('v_add_u32 %s, %d, %s' % (vr(vGL), ST, vr(c)))
        A('s_lshl_b32 s54, %s, 7' % sr(sRB))
        A('s_sub_u32 s54, s54, 16')
        A('v_add_u32 %s, s54, %s' % (vr(a), vr(a)))
        A('v_max_i32 %s, 0, %s' % (vr(a), vr(a)))
        A('v_lshlrev_b32 %s, 4, %s' % (vr(vG), vr(a)))
        A('s_lshl_b32 s54, %s, 3' % sr(sRB))
        A('s_and_b32 s55, %s, 1' % sr(sW))
        A('s_lshl_b32 s55, s55, 2')
        A('s_add_u32 s54, s54, s55')
        A('s_mul_i32 s54, s54, %d' % NKS)
        if att:
            A('s_lshl_b32 s55, %s, 1' % sr(sGRP))
            A('s_add_u32 s55, s55, 43')
            A('s_add_u32 s54, s54, s55')
        else:
            A('s_add_u32 s54, s54, %s' % sr(sPS))
        A('s_lshr_b32 s55, %s, 1' % sr(sW))
        A('s_add_u32 s54, s54, s55')
        A('s_lshl_b32 s54, s54, 10')
        A('s_add_u32 %s, s54, %d' % (sr(sHST), H_OFF))
        A('s_lshl_b32 s54, %s, 1' % sr(sRB))
        A('s_and_b32 s55, %s, 1' % sr(sW))
        A('s_add_u32 s54, s54, s55')
        A('s_lshl_b32 s54, s54, 2')
        A('s_lshr_b32 s55, %s, 1' % sr(sGRP))
        A('s_add_u32 s54, s54, s55')
        A('s_lshl_b32 s54, s54, 4')
        A('s_and_b32 s55, %s, 1' % sr(sGRP))
        A('s_lshl_b32 s55, s55, 1')
        A('s_add_u32 s54, s54, s55')
        A('s_lshr_b32 s55, %s, 1' % sr(sW))
        A('s_add_u32 s54, s54, s55')
        A('s_lshl_b32 s54, s54, 3')
        A('s_add_u32 %s, s54, %d' % (sr(sFL), WS_D + (0 if att else 32)))
        for i in range(4):
            A('v_accvgpr_write_b32 %s, -1' % ar(aPOIS + i))
        items = []
        for x in o:
            if isinstance(x, list):
                items.append(x)
            elif isinstance(x, tuple):
                items.append([x])
            else:
                items.append(one(x))
        return items[:first], items[first:]

    def prefetch_items(self, att):
        l = vL
        vPF = 108 if att else 200
        o = ['s_lshr_b32 s54, s2, 3', 's_lshl_b32 s54, s54, 2', 's_add_u32 s54, s54, %s' % sr(sW),
             's_mul_i32 s55, s54, %d' % (86 * 128), 's_lshl_b32 s54, s54, 12',
             'v_lshlrev_b32 %s, 7, %s' % (vr(vPF), vr(l)), 'v_and_b32 %s, 0xfff, %s' % (vr(vPF + 1), vr(vPF)),
             'v_add_u32 %s, s55, %s' % (vr(vPF), vr(vPF)), 'v_add_u32 %s, s54, %s' % (vr(vPF + 1), vr(vPF + 1))]
        it = [one(x) for x in o]
        it.append(one('buffer_load_dword a240, %s, %s, 0 offen' % (vr(vPF), srd(W2_)), 'pf'))
        it.append(one('buffer_load_dword a241, %s, %s, 0 offen offset:2816' % (vr(vPF), srd(W2_)), 'pf'))
        it.append(one('buffer_load_dword a242, %s, %s, 0 offen' % (vr(vPF + 1), srd(WO_)), 'pf'))
        return it

    def bulk_prefetch(self, att):
        b = self.b
        vPF = 108 if att else 200
        b('s_and_b32 s54, s2, 15')
        b('s_lshr_b32 s55, s2, 5')
        b('s_lshl_b32 s55, s55, 4')
        b('s_or_b32 s54, s54, s55')
        b('s_lshl_b32 s54, s54, 2')
        b('s_add_u32 s54, s54, %s' % sr(sW))
        b('v_lshlrev_b32 %s, 7, %s' % (vr(vPF), vr(vL)))
        parts = [(W_, 192), (X_, 256), (WO_, 64)] if att else [(W_, 172), (W2_, 340)]
        done = b.label_name('L_pfd')
        lo = 0
        q0 = len(b.vmq)
        for i, (sd, n) in enumerate(parts):
            nxt = b.label_name('L_pfn')
            last = i == len(parts) - 1
            if not last:
                b('s_cmp_ge_u32 s54, %d' % (lo + n))
                b('s_cbranch_scc1 %s' % nxt)
            b.begin_region()
            b('s_sub_u32 s55, s54, %d' % lo)
            b('s_lshl_b32 s55, s55, 13')
            if sd == W_ and not att and OPT['m0e']:
                b('s_add_u32 s55, s55, %d' % WBIAS)
            b('buffer_load_dword a%d, %s, %s, s55 offen' % (240 + i, vr(vPF), srd(sd)), tag='pf')
            if not last:
                b('s_branch %s' % done)
            b.end_region()
            if not last:
                b(nxt + ':')
            lo += n
        b(done + ':')
        del b.vmq[q0:]
        b.vmq.append(dict(regs={('a', 240), ('a', 241), ('a', 242)}, tag='pf', region=None))

    def code_prefetch(self, att):
        b = self.b
        skip, here = b.label_name('L_nocp'), b.label_name('L_pc')
        end = 'L_mlp' if att else 'L_end'
        b('s_lshr_b32 s54, s2, 3')
        b('s_and_b32 s54, s54, 1')
        b('s_lshl_b32 s54, s54, 2')
        b('s_add_u32 s54, s54, %s' % sr(sW))
        b('s_cmp_ge_u32 s2, 32')
        b('s_cselect_b32 s54, 8, s54')
        b('s_cmp_ge_u32 s54, %d' % OPT['cpf'])
        b('s_cbranch_scc1 %s' % skip)
        b.begin_region()
        b('s_lshl_b32 s54, s54, 13')
        b('v_lshl_add_u32 v12, %s, 7, s54' % vr(vL))
        b('s_getpc_b64 s[54:55]')
        b(here + ':')
        b('v_min_u32 v12, %s-%s-4, v12' % (end, here))
        b('v_mov_b32 v13, s55')
        b('v_add_co_u32 v12, vcc, s54, v12')
        b('v_addc_co_u32 v13, vcc, 0, v13, vcc')
        b('global_load_dword a243, v[12:13], off', tag='cpf')
        b.end_region()
        b(skip + ':')

    def role_prologue(self, att):
        b = self.b
        if OPT['cpf']:
            self.code_prefetch(att)
        if att:
            self.halo_setup()
        b('s_waitcnt lgkmcnt(0)')
        names = OPT['stamps'].split(',')
        if 'start' in names:
            b('s_mov_b32 %s, %s' % (sr(sTS + (2 if OPT['fst'] else 1) * names.index('start')), sr(sNON)))
        self.ts('karg')
        self.m0cur = None
        if not att and OPT['m0e']:
            b('s_sub_u32 s8, s8, %d' % WBIAS)
            b('s_subb_u32 s9, s9, 0')
        if OPT['pf'] == -2:
            for x in self.srd_rest():
                b(x)
            self.bulk_prefetch(att)
        for it in self.dma_half(att, 0, 0) + self.dma_half(att, 0, 1):
            self.emit(it)
        if OPT['pf'] != -2:
            for x in self.srd_rest():
                b(x)
        if OPT['pf'] == -1:
            self.bulk_prefetch(att)
        if att:
            lab = b.label_name('L_nopub')
            b('s_lshl_b32 s54, s2, 2')
            b('s_or_b32 s54, s54, %s' % sr(sW))
            b('s_cmp_lg_u32 s54, 0')
            b('s_cbranch_scc1 %s' % lab)
            b.begin_region()
            b('s_or_b32 %s, %s, 1' % (sr(sNON), sr(sNON)))
            b('v_mov_b32 %s, %s' % (vr(vGR), sr(sNON)))
            b('v_mov_b32 %s, %s' % (vr(vGR + 1), sr(sNON + 1)))
            b('s_mov_b64 exec, 1')
            b('buffer_store_dwordx2 %s, off, %s, 0 sc1' % (vr(vGR, 2), srd(DBG_)))
            b('s_mov_b64 exec, -1')
            b.end_region()
            b(lab + ':')
        self.ts('st0')
        first, rest = self.setup_items(att)
        units = []
        for s_, half in ((1, 0), (1, 1)) + {1: ((2, 0), (2, 1)), 0: ((2, 0),), -1: ()}[OPT['st2p']]:
            units += self.dma_units(att, s_, half)
            if (s_, half) == (1, 1):
                n1 = len(units)
        seq = rest
        per = -(-(len(seq) + len(first)) // len(units))
        k0 = max(n1 - 3, 0)
        for ui, (pre, ld, tail) in enumerate(units):
            self.ts('t%d' % ui)
            if OPT['pf'] == -3 and ui == n1:
                self.bulk_prefetch(att)
            for it in pre:
                self.emit(it)
            for _ in range(per):
                if k0 <= ui < n1 and len(first) > 2:
                    self.emit(first.pop(0))
                elif seq:
                    self.emit(seq.pop(0))
                if _ == 0:
                    self.emit(ld)
                    for it in tail:
                        self.emit(it)
            if ui == n1 - 1:
                while first:
                    self.emit(first.pop(0))
        while seq:
            self.emit(seq.pop(0))
        if att and OPT['pzu'] == (0,):
            for it in self.poison_items(att):
                self.emit(it)
        if OPT['pf'] == 1:
            for it in self.prefetch_items(att):
                self.emit(it)
        elif OPT['pf'] == 2:
            for it in self.prefetch_items(att)[:-3]:
                self.emit(it)
        elif OPT['pf'] == 3:
            self.bulk_prefetch(att)
        self.ts('prol')

    UNIT_SLOT = [2, 0, 1, 2, 0, 1]

    def w2_setup_v(self):
        l = vL
        a, c = 252, 253
        o = ['v_lshrrev_b32 %s, 4, %s' % (vr(a), vr(l)),
             'v_lshlrev_b32 %s, 1, %s' % (vr(a), vr(a)),
             'v_and_b32 %s, 7, %s' % (vr(c), vr(l)),
             'v_xor_b32 %s, %s, %s' % (vr(a), vr(a), vr(c)),
             'v_lshlrev_b32 %s, 4, %s' % (vr(a), vr(a)),
             'v_lshrrev_b32 %s, 3, %s' % (vr(c), vr(l)),
             'v_lshl_add_u32 %s, %s, 10, %s' % (vr(a), vr(c), vr(a)),
             's_lshl_b32 s54, %s, 7' % sr(sCT),
             'v_add_u32 %s, s54, %s' % (vr(vDX), vr(a)),
             'v_add_u32 %s, 7168, %s' % (vr(vDX + 1), vr(vDX))]
        return [one(x) for x in o]

    def w2_setup_s(self):
        o = [['s_mul_i32 %s, %s, %d' % (sr(sW2A), sr(sW), 11 * 32768)],
             ['s_mul_i32 s55, %s, %d' % (sr(sW), REG)],
             ['s_add_u32 %s, s55, %d' % (sr(sW2L), SLOT0)],
             ['s_cmp_eq_u32 %s, 3' % sr(sW),
              's_cselect_b32 %s, 5, 6' % sr(sW2B),
              's_cselect_b32 %s, %d, %s' % (sr(sW2C), OOB, sr(sW2A))],
             ['s_lshl_b32 %s, %s, 15' % (sr(sW2B), sr(sW2B))],
             ['s_add_u32 %s, %s, %s' % (sr(sW2B), sr(sW2B), sr(sW2A))],
             ['s_lshl_b32 %s, %s, 17' % (sr(sWOB), sr(sW))],
             ['s_lshl_b32 s55, %s, 2' % sr(sRT)],
             ['s_add_u32 s55, s55, %s' % sr(sW)],
             ['s_lshl_b32 s55, s55, 7'],
             ['s_add_u32 %s, s55, %d' % (sr(sFLC), WS_D)]]
        return [[(t, None) for t in x] for x in o]

    def tr_base_items(self, dst, slot_off):
        l = vL
        a, c, d, e = 252, 253, 254, 255
        o = ['v_bfe_u32 %s, %s, 2, 2' % (vr(a), vr(l)),
             'v_lshrrev_b32 %s, 4, %s' % (vr(c), vr(l)),
             'v_lshl_add_u32 %s, %s, 2, %s' % (vr(d), vr(c), vr(a)),
             'v_bfe_u32 %s, %s, 1, 2' % (vr(e), vr(d)),
             'v_lshlrev_b32 %s, 5, %s' % (vr(e), vr(e)),
             'v_lshl_add_u32 %s, %s, 7, %s' % (vr(e), vr(d), vr(e)),
             'v_and_b32 %s, 3, %s' % (vr(a), vr(l)),
             'v_lshl_add_u32 %s, %s, 3, %s' % (vr(e), vr(a), vr(e)),
             's_mul_i32 s54, %s, %d' % (sr(sW), REG),
             's_add_u32 s54, s54, %d' % (SLOT0 + slot_off),
             'v_add_u32 %s, s54, %s' % (vr(dst), vr(e))]
        for cp in range(1, 4):
            o.append('v_xor_b32 %s, %d, %s' % (vr(dst + cp), 32 * cp, vr(dst)))
        return [one(x) for x in o]

    def tr_base01_items(self):
        return [one('v_add_u32 %s, %s, %s' % (vr(vTB01 + cp), hex((-2 * SLOT) & 0xffffffff), vr(vTB2 + cp))) for cp in range(4)]

    @staticmethod
    def step_off(j):
        if j >= 11:
            return 'o', j - 11
        c, h, e = j >> 2, (j >> 1) & 1, j & 1
        if j == 9:
            return 'c', 5
        return ('b' if h else 'a'), 2 * c + e

    def w2_dma_unit(self, q):
        j, hh = q >> 1, q & 1
        r, pos = q // 5, q % 5
        kind, off = self.step_off(j)
        base = dict(a=sW2A, b=sW2B, c=sW2C, o=sWOB)[kind]
        sd = WO_ if kind == 'o' else W2_
        tag = 'w2_%d' % r
        lds = self.UNIT_SLOT[r] * SLOT + pos * 2048
        return [[('s_add_u32 %s, %s, %d' % (sr(sU), sr(base), off * 32768 + hh * 16384), None),
                 ('s_add_u32 m0, %s, %d' % (sr(sW2L), lds), None)],
                one('buffer_load_dwordx4 %s, %s, %s offen lds' % (vr(vDX), srd(sd), sr(sU)), tag),
                one('buffer_load_dwordx4 %s, %s, %s offen offset:1024 lds' % (vr(vDX + 1), srd(sd), sr(sU)), tag)]

    def w2_dma(self, q0, q1):
        out = []
        for q in range(q0, q1):
            out += self.w2_dma_unit(q)
        return out

    def w2_tr_unit(self, q):
        j, hh = q >> 1, q & 1
        r, pos = q // 5, q % 5
        sl = self.UNIT_SLOT[r]
        base = vTB2 if sl == 2 else vTB01
        off = pos * 2048 + (0 if sl == 2 else sl * SLOT)
        return [one('ds_read_b64_tr_b16 %s, %s offset:%d' % (ar(16 * j + 4 * cp + 2 * hh, 2), vr(base + cp), off), 'tr%d' % r)
                for cp in range(4)]

    def w2_tr(self, r):
        out = []
        for q in range(5 * r, 5 * r + 5):
            out += self.w2_tr_unit(q)
        return out

    def w2_background(self):
        b = self.b
        pair = lambda xs: [xs[i] + xs[i + 1] for i in range(0, len(xs), 2)]
        o = self.w2_dma(13, 15)
        o.append(lambda: b.wait_lg('tr0'))
        o += self.w2_dma(15, 20)
        o.append(lambda: b.wait_vm('w2_1'))
        o += pair(self.w2_tr(1))
        o.append(self.flags_load_item())
        o.append(lambda: b.wait_lg('tr1'))
        o += self.w2_dma(20, 25)
        o.append(lambda: b.wait_vm('w2_2'))
        o += pair(self.w2_tr(2))
        o.append(lambda: b.wait_lg('tr2'))
        o += self.w2_dma(25, 30)
        return o

    def p2_setup_items(self):
        l = vL
        a, c, d = 252, 253, 254
        o = []
        A = o.append
        A('s_lshl_b32 s55, %s, 2' % sr(sRT))
        for tp in range(4):
            r = sHB + tp
            A('s_add_u32 %s, %s, %d' % (sr(r), sr(sW), tp))
            A('s_and_b32 %s, %s, 3' % (sr(r), sr(r)))
            A('s_add_u32 %s, %s, s55' % (sr(r), sr(r)))
            A('s_mul_i32 %s, %s, %d' % (sr(r), sr(r), NKS * 1024))
            A('s_add_u32 %s, %s, %d' % (sr(r), sr(r), H_OFF))
        A('s_mul_i32 s54, %s, %d' % (sr(sW), 11 * 1024))
        A('v_add_u32 %s, s54, %s' % (vr(vHA), vr(vL16)))
        A(['s_cmp_eq_u32 %s, 3' % sr(sW), 's_cselect_b32 s54, 5, 6'])
        A('v_lshl_add_u32 %s, s54, 10, %s' % (vr(vHB_), vr(vHA)))
        A('v_and_b32 %s, 15, %s' % (vr(a), vr(l)))
        A('s_lshl_b32 s54, %s, 6' % sr(sRT))
        A('s_lshl_b32 s55, %s, 4' % sr(sW))
        A('s_add_u32 s54, s54, s55')
        A('v_add_u32 %s, s54, %s' % (vr(a), vr(a)))
        A('v_lshlrev_b32 %s, 10, %s' % (vr(a), vr(a)))
        A('v_lshrrev_b32 %s, 4, %s' % (vr(c), vr(l)))
        A('s_lshl_b32 s55, %s, 7' % sr(sCT))
        A('v_lshl_add_u32 %s, %s, 3, %s' % (vr(vXR), vr(c), vr(a)))
        A('v_add_u32 %s, s55, %s' % (vr(vXR), vr(vXR)))
        A('v_and_b32 %s, 1, %s' % (vr(vO), vr(c)))
        A('v_lshlrev_b32 %s, 5, %s' % (vr(vO), vr(vO)))
        A('v_lshrrev_b32 %s, 1, %s' % (vr(c), vr(c)))
        A('v_lshl_add_u32 %s, %s, 4, %s' % (vr(vO), vr(c), vr(vO)))
        A('v_add3_u32 %s, %s, %s, s55' % (vr(vO), vr(vO), vr(a)))
        A('v_and_b32 %s, 3, %s' % (vr(vFA), vr(l)))
        A('v_lshlrev_b32 %s, 3, %s' % (vr(vFA), vr(vFA)))
        return [[(t, None) for t in x] if isinstance(x, list) else one(x) for x in o]

    def flags_text(self):
        return 'buffer_load_dwordx2 %s, %s, %s, %s offen sc1' % (vr(vFLG, 2), vr(vFA), srd(WS_), sr(sFLC))

    def flags_load_item(self):
        return one(self.flags_text(), 'flg')

    def flags_check(self):
        b = self.b

        def check():
            b('v_cmp_ne_u32 vcc, %s, %s' % (sr(sNON), vr(vFLG)))
            b('v_cmp_ne_u32 s[54:55], %s, %s' % (sr(sNON + 1), vr(vFLG + 1)))
            b('s_or_b64 vcc, vcc, s[54:55]')
            b('s_cmp_eq_u64 vcc, 0')
        self.poll_loop(self.flags_text(), check, 'L_flg')

    def main_loop(self, att):
        b = self.b
        if att:
            F = [116, 164]
            G = 27

            def xreg(f, t):
                return F[f] + 4 * t

            def wreg(f, p):
                return F[f] + 36 + 4 * p

            def reads(f, bb):
                xa = vXB if bb else vXA
                def wr(p):
                    return [('ds_read_b64_tr_b16 %s, %s offset:%d' % (vr(wreg(f, p) + 2 * hh, 2), vr(vWA),
                                                                     hh * 12288 + (3 * bb + p) * 1024), 'fr') for hh in range(2)]
                def xr(t):
                    return [('ds_read_b128 %s, %s offset:%d' % (vr(xreg(f, t), 4), vr(xa), t * 2048), 'fr')]
                out = wr(1) + xr(0) + wr(2) + xr(1) + wr(0)
                for t in range(2, 9):
                    out += xr(t)
                return out

            def mfmas(f, u):
                out = []
                C = lambda r: '0' if u == 0 else vr(r, 4)
                for t in range(9):
                    out.append('%s %s, %s, %s, %s' % (MF, vr(32 + 4 * t, 4), vr(wreg(f, 1), 4), vr(xreg(f, t), 4), C(32 + 4 * t)))
                    out.append('%s %s, %s, %s, %s' % (MF, vr(68 + 4 * t, 4), vr(xreg(f, t), 4), vr(wreg(f, 2), 4), C(68 + 4 * t)))
                    if t >= 1:
                        q = 4 * (t - 1)
                        out.append('%s %s, %s, %s, %s' % (MF, vr(q, 4), vr(wreg(f, 0), 4), vr(xreg(f, t), 4), C(q)))
                out.append('%s %s, %s, %s, %s' % (MF, vr(104, 4), vr(wreg(f, 0), 4), vr(vONES, 4), C(104)))
                return out
        else:
            F = [120, 160]
            G = 24

            def xreg(f, t):
                return F[f] + 4 * t

            def wreg(f, p, ti):
                return F[f] + 16 + 4 * (2 * p + ti)

            def reads(f, bb):
                xa = vXB if bb else vXA
                def wr(p, ti):
                    return [('ds_read_b64_tr_b16 %s, %s offset:%d' % (vr(wreg(f, p, ti) + 2 * hh, 2), vr(vWB if ti else vWA),
                                                                     hh * 12288 + (3 * bb + p) * 1024), 'fr') for hh in range(2)]
                def xr(t):
                    return [('ds_read_b128 %s, %s offset:%d' % (vr(xreg(f, t), 4), vr(xa), t * 2048), 'fr')]
                out = wr(0, 0) + xr(0) + xr(1) + xr(2) + xr(3)
                for pt in range(1, 6):
                    out += wr(pt >> 1, pt & 1)
                return out

            def mfmas(f, u):
                out = []
                C = lambda r: '0' if u == 0 else vr(r, 4)
                for pt in range(6):
                    for t in range(4):
                        acc = 16 * pt + 4 * t
                        out.append('%s %s, %s, %s, %s' % (MF, vr(acc, 4), vr(wreg(f, pt >> 1, pt & 1), 4), vr(xreg(f, t), 4), C(acc)))

                def sblock():
                    lab = b.label_name('L_nos')
                    b('s_cmp_lg_u32 %s, %d' % (sr(sTH), u & 1))
                    b('s_cbranch_scc1 %s' % lab)
                    b.begin_region()
                    for pt in range(6):
                        c = '0' if u < 2 else vr(96 + 4 * pt, 4)
                        b('%s %s, %s, %s, %s' % (MF, vr(96 + 4 * pt, 4), vr(wreg(f, pt >> 1, pt & 1), 4), vr(vONES, 4), c))
                    b.end_region()
                    b(lab + ':')
                out.append(sblock)
                return out

        b.lg_merge = OPT['wm']
        stats = self.stats_items()
        poison = self.poison_items(att) if att and OPT['pzu'] != (0,) else []
        p2s = self.p2_setup_items()
        tg = self.tag_items(att)
        su0, su1 = OPT['su']
        nu, gu, gc, fu = OPT['nu'], OPT['gu'], OPT['gc'], OPT['fu']
        b.wait_vm('st0')
        b.wait_lg('ones')
        self.ts('w0')
        b('s_barrier')
        self.ts('bar0')
        for t, tag in reads(0, 0):
            b(t, tag=tag)
        for u in range(16):
            s, bb, f = u >> 1, u & 1, u & 1
            mf = mfmas(f, u)
            streams = []
            first = []
            if bb == 1:
                b.wait_lg('fr', 'stw')
                self.ts('a%d' % u)
                if s + 1 < 8:
                    b.wait_vm('st%d' % (s + 1))
                self.ts('b%d' % u)
                if not OPT['abl'] & 4:
                    b('s_barrier')
                self.ts('c%d' % u)
            rd = []
            if u < 15 and not OPT['abl'] & 2:
                rd = [[x] for x in reads(1 - f, 1 - bb)]
            if bb == 1 and u < 15:
                delta = SLOT if (s % 3) < 2 else -2 * SLOT
                upd = [one('v_add_u32 %s, %s, %s' % (vr(r), hex(delta & 0xffffffff), vr(r)))
                       for r in ([vWA, vXA, vXB] if att else [vWA, vXA, vWB, vXB])]
                rd = upd[:2] + rd[:3] + upd[2:] + rd[3:]
            streams.append(dict(items=rd, lo=0, prio=1, ord=0, hi=(int(G * OPT['rdhi']) if OPT['sch'] else G - 3 if bb else (G * 3) // 4)))
            dm = []
            st3 = (u + 5) >> 1
            if u == 0:
                dm = [] if OPT['st2p'] == 1 else (self.dma_half(att, 2, 0) if OPT['st2p'] < 0 else []) + self.dma_half(att, 2, 1)
                dm.insert(max(len(dm) - 4, 0), one(self.nonce_text(), 'non'))
            elif st3 < 8:
                if not OPT['abl'] & 1:
                    dm = self.dma_half(att, st3, 0 if bb else 1)
            elif u == 11:
                dm = self.w2_setup_s() + self.w2_dma(0, 3)
            elif u == 12:
                dm = self.w2_dma(3, 5)
            elif u == 13:
                dm = self.w2_dma(5, 8)
            elif u == 14:
                dm = self.w2_dma(8, 10)
            elif u == 15:
                dm = self.w2_dma(10, 13)
            if OPT['pf'] >= 4 and u == OPT['pf'] - 4:
                pfb = blk(lambda: self.bulk_prefetch(att), 6)
                pfb.cost = 64
                dm.append(pfb)
            if u == gu:
                dm.insert(max(len(dm) - 4, 0), one(self.gather_text(), 'gat'))
            pz = []
            if poison and u in OPT['pzu']:
                n = OPT['pzu'].count(u)
                pz, poison = poison[:n], poison[n:]
            if OPT['pf'] == 2 and u in OPT['pfu']:
                pz = pz + [self.prefetch_items(att)[-3 + OPT['pfu'].index(u)]]
            if pz:
                streams.append(dict(items=dm, lo=0, hi=(G * 2) // 3, mind=1, prio=2, ord=2))
                streams.append(dict(items=pz, lo=(G * 2) // 3 + 2, hi=G - 1, prio=2, ord=3))
            else:
                streams.append(dict(items=dm, lo=0, hi=G - 1, mind=1, prio=2, ord=2))
            ex = []
            if u == 1 and OPT['sparse'] and poison:
                streams.append(dict(items=self.pz_pre, lo=0, hi=G - 1))
            if su0 <= u <= su1:
                k = -(-len(stats) // (su1 - u + 1))
                ex, stats = stats[:k], stats[k:]
                streams.append(dict(items=ex, lo=0, hi=G - 1))
            if u == nu:
                streams.append(dict(items=[blk(self.nonce_and_stats_store, 11)], lo=1, hi=3))
            if nu < u <= 9:
                k = -(-len(p2s) // (10 - u))
                ex, p2s = p2s[:k], p2s[k:]
                streams.append(dict(items=ex, lo=0, hi=G - 1))
                k = -(-len(tg) // (10 - u))
                ex, tg = tg[:k], tg[k:]
                streams.append(dict(items=ex, lo=0, hi=G - 1))
            if u == fu and att:
                streams.append(dict(items=[blk(self.flag_store, 5)], lo=2, hi=4))
            if u == 10:
                streams.append(dict(items=self.w2_setup_v(), lo=0, hi=G - 1))
            if u == 12:
                streams.append(dict(items=self.tr_base_items(vTB2, 2 * SLOT), lo=0, hi=G - 1))
            if u == gc:
                streams.append(dict(items=[blk(self.gather_check, 8)], lo=1, hi=3))
            if u == max(gc + 1, 14):
                streams.append(dict(items=self.tr_base01_items(), lo=0, hi=G - 1))
            if u == 15:
                tr = self.w2_tr(0)
                tr.insert(0, blk(lambda: b.wait_vm('w2_0'), 0))
                streams.append(dict(items=tr, lo=G // 3, hi=G - 1))
            self.schedule(mf, streams, G, '%s%d' % ('a' if att else 'm', u))
        assert not stats and not poison and not p2s and not tg
        b.lg_merge = 0

    def att_epilogue(self):
        b = self.b
        l = vL
        QS = 116
        VS = 134
        VP, KP, QP = 158, 176, 194
        a, c, d = T + 4, T + 5, T + 6
        vNEG = T + 7
        SEL = T + 8
        vAq, vAq2, vAv = T + 12, T + 13, T + 14
        vOW = T + 15
        b.bg = self.w2_background()
        b.bg_every = OPT['bg_att']
        b('v_and_b32 %s, 15, %s' % (vr(a), vr(l)))
        b('v_lshrrev_b32 %s, 4, %s' % (vr(c), vr(l)))
        b('v_lshlrev_b32 %s, 2, %s' % (vr(vAq), vr(a)))
        b('v_add_u32 %s, %d, %s' % (vr(vAq), ST, vr(vAq)))
        b('v_add_u32 %s, 256, %s' % (vr(vAq2), vr(vAq)))
        b('v_lshlrev_b32 %s, 4, %s' % (vr(vAv), vr(c)))
        b('v_add_u32 %s, %d, %s' % (vr(vAv), ST, vr(vAv)))
        for t in range(9):
            if t < 7:
                b('ds_read2_b32 %s, %s offset0:%d offset1:%d' % (vr(QS + 2 * t, 2), vr(vAq), 16 * t, 144 + 16 * t), tag='qs')
            else:
                b('ds_read2_b32 %s, %s offset0:%d offset1:%d' % (vr(QS + 2 * t, 2), vr(vAq2), 16 * t - 64, 80 + 16 * t), tag='qs')

        def vstat_read(t):
            base = VS + 8 * (t % 3)
            b('ds_read_b128 %s, %s offset:%d' % (vr(base, 4), vr(vAv), 64 * t), tag='vs')
            b('ds_read_b128 %s, %s offset:%d' % (vr(base + 4, 4), vr(vAv), STR + 64 * t), tag='vs')
        for t in range(3):
            vstat_read(t)
        for i in range(4):
            b('v_mov_b32_dpp %s, %s row_newbcast:0 row_mask:0xf bank_mask:0xf' % (vr(108 + i), vr(32 + i)))
        b('v_mov_b32 %s, %s' % (vr(112), vr(68)))
        b('v_mov_b32 %s, %s' % (vr(113), vr(68)))
        b('v_and_b32 %s, 1, %s' % (vr(d), vr(a)))
        b('v_permlane16_swap_b32 %s, %s' % (vr(112), vr(113)))
        b('v_cmp_eq_u32 %s, 1, %s' % (sr(sP, 2), vr(d)))
        b('v_lshl_add_u32 %s, %s, 2, %s' % (vr(c), vr(c), vr(d)))
        b('v_mov_b32 %s, %s' % (vr(113), vr(112)))
        b('v_cmp_le_u32 %s, %s, %s' % (sr(sC0, 2), vr(c), vr(a)))
        b('v_add_u32 %s, 2, %s' % (vr(c), vr(c)))
        b('v_permlane32_swap_b32 %s, %s' % (vr(112), vr(113)))
        b('v_cmp_le_u32 %s, %s, %s' % (sr(sC1, 2), vr(c), vr(a)))
        b('v_mov_b32 %s, 0x0c0c0100' % vr(a))
        b('v_mov_b32 %s, 0x01000c0c' % vr(c))
        b('v_cndmask_b32 %s, %s, %s, %s' % (vr(a), vr(a), vr(c), sr(sP, 2)))
        b('v_mov_b32 %s, 0x0c0c0302' % vr(c))
        b('v_mov_b32 %s, 0x03020c0c' % vr(d))
        b('v_cndmask_b32 %s, %s, %s, %s' % (vr(c), vr(c), vr(d), sr(sP, 2)))
        b('v_mov_b32 %s, 0x0c0c0c0c' % vr(d))
        b('v_cndmask_b32 %s, %s, %s, %s' % (vr(SEL + 0), vr(a), vr(d), sr(sC0, 2)))
        b('v_cndmask_b32 %s, %s, %s, %s' % (vr(SEL + 1), vr(c), vr(d), sr(sC1, 2)))
        b('v_cndmask_b32 %s, %s, %s, %s' % (vr(SEL + 2), vr(d), vr(a), sr(sC0, 2)))
        b('v_cndmask_b32 %s, %s, %s, %s' % (vr(SEL + 3), vr(d), vr(c), sr(sC1, 2)))
        b('v_mov_b32 %s, 0xcf6e6b28' % vr(vNEG))
        b('s_cmp_eq_u32 %s, 0' % sr(sRB))
        b('s_cselect_b64 %s, -1, 0' % sr(sZ, 2))
        b('s_mov_b32 %s, 0x3eb8aa3b' % sr(sC))
        b('s_lshr_b32 s54, %s, 1' % sr(sW))
        b('s_lshl_b32 s54, s54, 13')
        b('s_and_b32 s55, %s, 1' % sr(sW))
        b('s_lshl_b32 s56, s55, 3')
        b('s_add_u32 s56, s56, s54')
        b('s_add_u32 s56, s56, %d' % OX)
        b('v_add_u32 %s, s56, %s' % (vr(vOW), vr(vL16)))

        def norm_qk(acc, sreg, t, dst):
            st = vr(QS + 2 * t, 2)
            for h in range(2):
                b('v_pk_fma_f32 %s, %s, %s, %s op_sel:[0,0,0] op_sel_hi:[1,0,1]' % (vr(acc + 2 * h, 2), vr(sreg + 2 * h, 2), st, vr(acc + 2 * h, 2)))
            for h in range(2):
                b('v_pk_mul_f32 %s, %s, %s op_sel:[0,1] op_sel_hi:[1,1]' % (vr(acc + 2 * h, 2), vr(acc + 2 * h, 2), st))
            for h in range(2):
                b('v_cvt_pk_bf16_f32 %s, %s, %s' % (vr(dst + h), vr(acc + 2 * h), vr(acc + 2 * h + 1)))

        def norm_v(t):
            acc = 68 + 4 * t
            base = VS + 8 * (t % 3)
            for h in range(2):
                b('v_pk_fma_f32 %s, %s, %s, %s op_sel_hi:[1,0,1]' % (vr(acc + 2 * h, 2), vr(base + 2 * h, 2), vr(112, 2), vr(acc + 2 * h, 2)))
            for h in range(2):
                b('v_pk_mul_f32 %s, %s, %s' % (vr(acc + 2 * h, 2), vr(acc + 2 * h, 2), vr(base + 4 + 2 * h, 2)))
            for h in range(2):
                b('v_cvt_pk_bf16_f32 %s, %s, %s' % (vr(VP + 2 * t + h), vr(acc + 2 * h), vr(acc + 2 * h + 1)))
            if t + 3 < 9:
                vstat_read(t + 3)

        for t in range(9):
            norm_qk(32 + 4 * t, 108, t, KP + 2 * t)
        for t in range(1, 9):
            norm_qk(4 * (t - 1), 104, t, QP + 2 * (t - 1))
        for t in range(1, 9):
            D = 8 * (t - 1)
            b('%s %s, %s, %s, 0' % (MF16, vr(D, 4), vr(KP + 2 * (t - 1), 2), vr(QP + 2 * (t - 1), 2)))
            b('%s %s, %s, %s, 0' % (MF16, vr(D + 4, 4), vr(KP + 2 * t, 2), vr(QP + 2 * (t - 1), 2)))
        for t in range(9):
            norm_v(t)
        LG, MX = 64, 80
        for t in range(1, 9):
            D = 8 * (t - 1)
            for j in range(2):
                b('v_cndmask_b32 %s, %s, %s, %s' % (vr(D + 2 * j), vr(D + 2 * j), vr(D + 2 * j + 1), sr(sP, 2)))
                b('v_cndmask_b32 %s, %s, %s, %s' % (vr(D + 4 + 2 * j), vr(D + 4 + 2 * j), vr(D + 4 + 2 * j + 1), sr(sP, 2)))
            if t == 1:
                for j in range(2):
                    b('v_cndmask_b32 %s, %s, %s, %s' % (vr(D + 2 * j), vr(D + 2 * j), vr(vNEG), sr(sZ, 2)))
            b('v_cndmask_b32 %s, %s, %s, %s' % (vr(LG + 2 * (t - 1)), vr(D), vr(D + 4), sr(sC0, 2)))
            b('v_cndmask_b32 %s, %s, %s, %s' % (vr(LG + 2 * (t - 1) + 1), vr(D + 2), vr(D + 6), sr(sC1, 2)))
            b('v_max_f32 %s, %s, %s' % (vr(MX + t - 1), vr(LG + 2 * (t - 1)), vr(LG + 2 * (t - 1) + 1)))
        for h in range(2):
            m = MX + 4 * h
            b('v_permlane16_swap_b32 %s, %s' % (vr(m), vr(m + 1)))
            b('v_permlane16_swap_b32 %s, %s' % (vr(m + 2), vr(m + 3)))
        for h in range(2):
            m = MX + 4 * h
            b('v_max_f32 %s, %s, %s' % (vr(m), vr(m), vr(m + 1)))
            b('v_max_f32 %s, %s, %s' % (vr(m + 2), vr(m + 2), vr(m + 3)))
        for h in range(2):
            m = MX + 4 * h
            b('v_permlane32_swap_b32 %s, %s' % (vr(m), vr(m + 2)))
        for h in range(2):
            m = MX + 4 * h
            b('v_max_f32 %s, %s, %s' % (vr(m), vr(m), vr(m + 2)))
        for h in range(2):
            m = MX + 4 * h
            b('v_mul_f32 %s, %s, %s' % (vr(m), sr(sC), vr(m)))
        for h in range(2):
            m = MX + 4 * h
            b('v_mov_b32 %s, %s' % (vr(m + 2), vr(m)))
        for h in range(2):
            m = MX + 4 * h
            b('v_permlane32_swap_b32 %s, %s' % (vr(m), vr(m + 2)))
        for h in range(2):
            m = MX + 4 * h
            b('v_mov_b32 %s, %s' % (vr(m + 1), vr(m)))
            b('v_mov_b32 %s, %s' % (vr(m + 3), vr(m + 2)))
        for h in range(2):
            m = MX + 4 * h
            b('v_permlane16_swap_b32 %s, %s' % (vr(m), vr(m + 1)))
            b('v_permlane16_swap_b32 %s, %s' % (vr(m + 2), vr(m + 3)))
        for t in range(1, 9):
            L = LG + 2 * (t - 1)
            for j in range(2):
                b('v_fma_f32 %s, %s, %s, -%s' % (vr(L + j), vr(L + j), sr(sC), vr(MX + t - 1)))
        for t in range(1, 9):
            L = LG + 2 * (t - 1)
            for j in range(2):
                b('v_exp_f32 %s, %s' % (vr(L + j), vr(L + j)))
        for t in range(1, 9):
            L = LG + 2 * (t - 1)
            b('v_cvt_pk_bf16_f32 %s, %s, %s' % (vr(L), vr(L), vr(L + 1)))
        PF, OA, SM = 0, 32, 84
        for t in range(1, 9):
            L = LG + 2 * (t - 1)
            for i in range(4):
                b('v_perm_b32 %s, %s, %s, %s' % (vr(PF + 4 * (t - 1) + i), vr(L), vr(L), vr(SEL + i)))
            b('%s %s, %s, %s, 0' % (MF, vr(OA + 4 * (t - 1), 4), vr(VP + 2 * (t - 1), 4), vr(PF + 4 * (t - 1), 4)))
            b('%s %s, %s, %s, 0' % (MF, vr(SM + 4 * (t - 1), 4), vr(vONES, 4), vr(PF + 4 * (t - 1), 4)))
        for t in range(1, 9):
            sm = SM + 4 * (t - 1)
            b('v_rcp_f32 %s, %s' % (vr(sm), vr(sm)))
        for t in range(1, 9):
            sm, o = SM + 4 * (t - 1), OA + 4 * (t - 1)
            for h in range(2):
                b('v_pk_mul_f32 %s, %s, %s op_sel:[0,0] op_sel_hi:[1,0]' % (vr(o + 2 * h, 2), vr(o + 2 * h, 2), vr(sm, 2)))
            for h in range(2):
                b('v_cvt_pk_bf16_f32 %s, %s, %s' % (vr(o + h), vr(o + 2 * h), vr(o + 2 * h + 1)))
            b('ds_write_b64 %s, %s offset:%d' % (vr(vOW), vr(o, 2), (t - 1) * 1024), tag='ox')
        b.bg_flush()
        b.bg_every = 0
        self.ts('epi')
        b('s_lshr_b32 s54, %s, 1' % sr(sW))
        b('s_lshl_b32 s54, s54, 13')
        b('s_and_b32 s55, %s, 1' % sr(sW))
        b('s_lshl_b32 s56, s55, 12')
        b('s_add_u32 s56, s56, s54')
        b('s_add_u32 s56, s56, %d' % OX)
        b('v_add_u32 %s, s56, %s' % (vr(c), vr(vL16)))
        b.wait_lg('ox')
        b('s_barrier')
        for i in range(4):
            b('ds_read_b128 %s, %s offset:%d' % (vr(4 * i, 4), vr(c), i * 1024), tag='oxr')
        if not OPT['hfirst']:
            self.p2_issue(True)
        for i in range(4):
            b('s_add_u32 s57, %s, %d' % (sr(sHST), i * NKS * 1024))
            b('buffer_store_dwordx4 %s, %s, %s, s57 offen %s' % (vr(4 * i, 4), vr(vL16), srd(WS_), OPT['hstf']), tag='hst')
        if OPT['hfirst']:
            self.p2_issue(True)

    def mlp_epilogue(self):
        b = self.b
        l = vL
        a, c, d = T + 4, T + 5, T + 6
        QS = 120
        TM = 128
        PK = 152
        b.bg = self.w2_background()
        b('v_lshrrev_b32 %s, 4, %s' % (vr(c), vr(l)))
        b('v_lshlrev_b32 %s, 4, %s' % (vr(c), vr(c)))
        b('s_mul_i32 s54, %s, 384' % sr(sW))
        b('s_add_u32 s55, s54, %d' % SX)
        b('v_add_u32 %s, s55, %s' % (vr(d), vr(c)))
        b('s_xor_b32 s54, %s, 1' % sr(sW))
        b('s_mul_i32 s54, s54, 384')
        b('s_add_u32 s55, s54, %d' % SX)
        b('v_add_u32 %s, s55, %s' % (vr(c), vr(c)))
        b('s_mov_b32 exec_lo, 0x00010001')
        b('s_mov_b32 exec_hi, 0x00010001')
        for pt in range(6):
            b('ds_write_b128 %s, %s offset:%d' % (vr(d), vr(96 + 4 * pt, 4), pt * 64), tag='sx')
        b('s_mov_b64 exec, -1')
        b.bg_every = OPT['bg_mlp']
        b('v_and_b32 %s, 15, %s' % (vr(a), vr(l)))
        b('s_lshl_b32 s54, %s, 6' % sr(sTH))
        b('s_add_u32 s54, s54, 16')
        b('v_add_u32 %s, s54, %s' % (vr(a), vr(a)))
        b('v_lshlrev_b32 %s, 2, %s' % (vr(a), vr(a)))
        b('v_add_u32 %s, %d, %s' % (vr(a), ST, vr(a)))
        for t in range(4):
            b('ds_read2_b32 %s, %s offset0:%d offset1:%d' % (vr(QS + 2 * t, 2), vr(a), 16 * t, 144 + 16 * t), tag='qs')
        b.bg_pop(4)
        b.wait_lg('sx')
        b('s_barrier')
        self.ts('e0')
        for pt in range(6):
            b('ds_read_b128 %s, %s offset:%d' % (vr(TM + 4 * pt, 4), vr(c), pt * 64), tag='sxr')
        b.bg_pop(4)
        for pt in range(6):
            for h in range(2):
                r = 96 + 4 * pt + 2 * h
                b('v_pk_add_f32 %s, %s, %s' % (vr(r, 2), vr(r, 2), vr(TM + 4 * pt + 2 * h, 2)))
        k = 0
        skip = None
        for p in range(3):
            self.ts('e%d' % (p + 1))
            if p == 2:
                b.bg_flush()
                b.bg_every = 0
                skip = b.label_name('L_nopair')
                b('s_lshr_b32 s55, %s, 1' % sr(sW))
                b('s_add_u32 s55, s55, 4')
                b('s_cmp_ge_u32 s55, %s' % sr(sNP))
                b('s_cbranch_scc1 %s' % skip)
                b.begin_region()
            for t in range(4):
                st = vr(QS + 2 * t, 2)
                dst = PK + 4 * (k % 4)
                k += 1
                for ti in range(2):
                    acc = 16 * (2 * p + ti) + 4 * t
                    sreg = 96 + 4 * (2 * p + ti)
                    for h in range(2):
                        b('v_pk_fma_f32 %s, %s, %s, %s op_sel:[0,0,0] op_sel_hi:[1,0,1]' % (vr(acc + 2 * h, 2), vr(sreg + 2 * h, 2), st, vr(acc + 2 * h, 2)))
                    for h in range(2):
                        b('v_pk_mul_f32 %s, %s, %s op_sel:[0,1] op_sel_hi:[1,1]' % (vr(acc + 2 * h, 2), vr(acc + 2 * h, 2), st))
                    for h in range(2):
                        b('v_cvt_pk_bf16_f32 %s, %s, %s' % (vr(dst + 2 * ti + h), vr(acc + 2 * h), vr(acc + 2 * h + 1)))
                for i in range(4):
                    b('v_pk_max_i16 %s, %s, 0' % (vr(dst + i), vr(dst + i)))
                for i in range(4):
                    b('v_or_b32 %s, %s, %s' % (vr(dst + i), vr(vE + i), vr(dst + i)))
                b('s_add_u32 s57, %s, %d' % (sr(sHST), t * NKS * 1024 + p * 2048))
                b('buffer_store_dwordx4 %s, %s, %s, s57 offen %s' % (vr(dst, 4), vr(vL16), srd(WS_), OPT['hstf']), tag='hst')
        b.end_region()
        b(skip + ':')
        self.ts('epi')
        self.p2_issue(False)

    RING, XR = 64, 192
    vHT, vH8, vH9, vH10 = 243, 244, 245, 246

    def hload(self, j, tp):
        base = self.RING + 16 * (j % 8) + 4 * tp
        kind, off = self.step_off(j)
        if j < 8:
            va, o = (vHB_ if kind == 'b' else vHA), off * 1024
        elif j < 11:
            va, o = {8: self.vH8, 9: self.vH9, 10: self.vH10}[j], 0
        else:
            va, o = self.vHT, off * 1024
        return 'buffer_load_dwordx4 %s, %s, %s, %s offen offset:%d %s' % (vr(base, 4), vr(va), srd(WS_), sr(sHB + tp), o, OPT['hld'])

    def p2_issue(self, att):
        b = self.b
        if att:
            for i in range(4):
                b('v_accvgpr_read_b32 %s, %s' % (vr(vE + i), ar(aE + i)))
        for j in range(OPT['D']):
            for tp in TPO:
                b(self.hload(j, tp), tag='h%d_%d' % (j, tp))
            if j == 0:
                for cp in range(4):
                    b('buffer_load_dwordx2 %s, %s, %s, 0 offen offset:%d' % (vr(self.XR + 2 * cp, 2), vr(vXR), srd(X_), 32 * cp), tag='res')
        self.ts('ring')

    def check_texts(self, j):
        base = self.RING + 16 * (j % 8)
        t = vr(248)
        o = []
        if j < 11:
            regs = [base + 4 * tp + i for tp in TPO for i in range(4)]
            x = lambda r: 'v_xor_b32 %s, %s, %s' % (vr(r), vr(vE + (r - base) % 4), vr(r))
            for k, r in enumerate(regs):
                o.append(x(r))
                if k == 2:
                    o.append('v_or3_b32 %s, %s, %s, %s' % (t, vr(regs[0]), vr(regs[1]), vr(regs[2])))
                elif k >= 4 and k % 2 == 0:
                    o.append('v_or3_b32 %s, %s, %s, %s' % (t, t, vr(regs[k - 1]), vr(regs[k])))
            o.append('v_bitop3_b32 %s, %s, %s, %s bitop3:0xa8' % (t, t, vr(regs[15]), sr(sSGN)))
            o.append('v_cmp_ne_u32 vcc, 0, %s' % t)
        else:
            o.append('v_max3_u32 %s, %s, %s, %s' % (t, vr(base), vr(base + 4), vr(base + 8)))
            o.append('v_max_u32 %s, %s, %s' % (t, t, vr(base + 12)))
            o.append('v_cmp_eq_u32 vcc, -1, %s' % t)
        return o

    def verify_items(self, j, role):
        b = self.b
        slow, back = 'L_slow_%s_%d' % (role, j), 'L_back_%s_%d' % (role, j)
        txt = self.check_texts(j)

        def last():
            b(txt[-1])
            b('s_cbranch_vccnz %s' % slow)
            snap = [e['tag'] for e in b.vmq]
            b(back + ':')
            self.slow.append((j, slow, back, snap))
        items = [blk(lambda: b.wait_vm('h%d_%d' % (j, TPO[-1])), 1)]
        items += [one(t) for t in txt[:-1]]
        items.append(blk(last, 2))
        return items

    def emit_slow(self):
        b = self.b
        for j, slow, back, snap in self.slow:
            b.vmq, b.lgq, b.smem_pending = [], [], []
            again = slow + '_a'
            b('s_nop 0')
            b(slow + ':')
            b('s_mov_b32 %s, 0' % sr(sCNT))
            b(again + ':')
            b.begin_region()
            for tp in TPO:
                b(self.hload(j, tp))
            b.end_region()
            b.vmq = []
            b('s_waitcnt vmcnt(0)')
            for t in self.check_texts(j):
                b(t)
            b('s_cbranch_vccz %s_r' % slow)
            b('s_add_u32 %s, %s, 1' % (sr(sCNT), sr(sCNT)))
            b('s_cmp_lt_u32 %s, %d' % (sr(sCNT), OPT['poll_limit']))
            b('s_cbranch_scc1 %s' % again)
            b(slow + '_r:')
            b.begin_region()
            for tag in snap:
                if tag and tag.startswith('h') and '_' in tag and tag[1].isdigit():
                    jj, tp = tag[1:].split('_')
                    b(self.hload(int(jj), int(tp)))
                else:
                    b('buffer_load_dword %s, off, %s, 0' % (vr(249), srd(WS_)))
            b.end_region()
            b.vmq = []
            b('s_branch %s' % back)
        self.slow = []

    def phase2(self, role):
        b = self.b
        RING, XR, D = self.RING, self.XR, OPT['D']
        assert D <= 7
        for it in self.verify_items(0, role):
            self.emit(it)
        self.ts('ver0')
        tr = self.w2_tr(3) + self.w2_tr(4) + self.w2_tr(5)
        for j in range(15):
            base = RING + 16 * (j % 8)
            self.ts('p%d' % j)
            mf = []
            for tp in TPO:
                for cp in range(4):
                    acc = 16 * tp + 4 * cp
                    cin = vr(acc, 4) if (j > 0 or tp == 0) else '0'
                    mf.append('%s %s, %s, %s, %s' % (MF, vr(acc, 4), ar(16 * j + 4 * cp, 4), vr(base + 4 * tp, 4), cin))
            G = 16
            streams = []
            if j == 0:
                adr = ['v_add_u32 %s, 0x1000, %s' % (vr(self.vH8), vr(vHA)),
                       'v_add_u32 %s, 0x1000, %s' % (vr(self.vH10), vr(vHB_)),
                       ['s_cmp_eq_u32 %s, 3' % sr(sW), 's_cselect_b32 s54, 0, 1024',
                        'v_add_u32 %s, s54, %s' % (vr(self.vH9), vr(self.vH8))],
                       ['s_lshl_b32 s54, %s, 12' % sr(sW), 's_add_u32 s54, s54, %d' % (43 * 1024),
                        'v_add_u32 %s, s54, %s' % (vr(self.vHT), vr(vL16))]]
                adr = [[(t, None) for t in x] if isinstance(x, list) else one(x) for x in adr]
                res = []
                for cp in range(4):
                    for h in range(2):
                        x = XR + 2 * cp + h
                        res.append(one('v_lshlrev_b32 %s, 16, %s' % (vr(4 * cp + 2 * h), vr(x))))
                        res.append(one('v_and_b32 %s, 0xffff0000, %s' % (vr(4 * cp + 2 * h + 1), vr(x))))
                streams.append(dict(items=res, lo=0, hi=10, prio=1))
                streams.append(dict(items=adr, lo=0, hi=15))
            if j + D == 11:
                streams.append(dict(items=[blk(self.flags_check, 5)], lo=0, hi=0, prio=3, ord=0))
            if j + D < 15:
                ld = [one(self.hload(j + D, tp), 'h%d_%d' % (j + D, tp)) for tp in TPO]
                streams.append(dict(items=ld, lo=1, hi=G - 1, prio=2, ord=2))
            if 1 <= j <= 10:
                mine, tr = tr[:6], tr[6:]
                streams.append(dict(items=mine, lo=0, hi=G - 3, prio=0))
            if j < 14:
                v = self.verify_items(j + 1, role)
                long_ = j + 1 < 11
                streams.append(dict(items=v, lo=(OPT['vlo'] if long_ else 10), hi=G - 2, prio=1, ord=1))
            self.schedule2(mf, streams, G, 'p%s%d' % (role, j))
        assert not tr
        self.ts('p2loop')
        vRR = T + 13
        FL = T + 8
        b('v_add_u32 %s, %s, %s' % (vr(vRR), sr(sW2L), vr(vL16)))
        b('v_add_u32 %s, %d, %s' % (vr(vRR + 1), 2 * SLOT, vr(vRR)))
        for tp in range(1, 4):
            for cp in range(4):
                if tp < 3:
                    b('ds_write_b128 %s, %s offset:%d' % (vr(vRR), vr(16 * tp + 4 * cp, 4), (tp - 1) * SLOT + cp * 1024), tag='rw')
                else:
                    b('ds_write_b128 %s, %s offset:%d' % (vr(vRR + 1), vr(16 * tp + 4 * cp, 4), cp * 1024), tag='rw')
        for tp in range(1, 4):
            b('s_sub_u32 s54, %s, %d' % (sr(sW), tp))
            b('s_and_b32 s54, s54, 3')
            b('s_mul_i32 s54, s54, %d' % REG)
            b('s_add_u32 s54, s54, %d' % (SLOT0 + (tp - 1) * SLOT))
            b('v_add_u32 %s, s54, %s' % (vr(FL + tp), vr(vL16)))
        b.wait_lg('rw')
        b('s_barrier')
        RD = 64
        for tp in range(1, 4):
            for cp in range(4):
                b('ds_read_b128 %s, %s offset:%d' % (vr(RD + 16 * (tp - 1) + 4 * cp, 4), vr(FL + tp), cp * 1024), tag='rr')
        for tp in range(1, 4):
            for cp in range(4):
                for h in range(2):
                    r = 4 * cp + 2 * h
                    b('v_pk_add_f32 %s, %s, %s' % (vr(r, 2), vr(r, 2), vr(RD + 16 * (tp - 1) + r, 2)))
        PK = 16
        for cp in range(4):
            for h in range(2):
                b('v_cvt_pk_bf16_f32 %s, %s, %s' % (vr(PK + 2 * cp + h), vr(4 * cp + 2 * h), vr(4 * cp + 2 * h + 1)))
        for pr in range(2):
            p0, p1 = PK + 4 * pr, PK + 4 * pr + 2
            b('v_permlane16_swap_b32 %s, %s' % (vr(p0), vr(p1)))
            b('v_permlane16_swap_b32 %s, %s' % (vr(p0 + 1), vr(p1 + 1)))
        for pr in range(2):
            p0 = PK + 4 * pr
            b('buffer_store_dwordx4 %s, %s, %s, 0 offen offset:%d %s' % (vr(p0, 4), vr(vO), srd(OUT_), 64 * pr, OPT['ost']), tag='out')
        if OPT['stamps']:
            self.ts('end')
            n = len(OPT['stamps'].split(','))
            b('s_lshl_b32 s54, s2, 2')
            b('s_add_u32 s54, s54, %s' % sr(sW))
            b('s_lshl_b32 s54, s54, 7')
            b('s_add_u32 s54, s54, %d' % WS_FINE)
            b('s_mov_b32 s14, %d' % (WS_FINE + (1 << 20)))
            b('s_mov_b64 exec, 1')
            b('s_waitcnt lgkmcnt(0)')
            for i in range(n):
                b('v_mov_b32 %s, %s' % (vr(32 + i), sr(sTS + (2 if OPT['fst'] else 1) * i)))
                b('buffer_store_dword %s, off, %s, s54 offset:%d' % (vr(32 + i), srd(WS_), 4 * i))
            b('s_mov_b64 exec, -1')
        b('s_endpgm')

    def kernel(self):
        b = self.b
        self.prologue()
        b('s_cmp_lg_u32 %s, 0' % sr(sROLE))
        b('s_cbranch_scc1 L_mlp')
        st = self.save()
        for att, role in ((True, 'a'), (False, 'm')):
            if not att:
                b('L_mlp:')
                self.restore(st)
                b('s_nop 7')
            b.comment('attention workgroups' if att else 'MLP workgroups')
            self.role_prologue(att)
            self.main_loop(att)
            self.ts('loop')
            if att:
                self.att_epilogue()
            else:
                self.mlp_epilogue()
            self.phase2(role)
            self.emit_slow()
        b('L_end:')
        b('s_endpgm')
        b.finalize()
        return b.text()


HEADER = '''; LayerNorm + (dilated sliding-window attention || ReLU MLP) + residual, one persistent launch.
; @launch grid=(256,1,1) block=(256,1,1) lds=%d
.amdgcn_target "amdgcn-amd-amdhsa--gfx950"
.text
.globl %s_kernel
.p2align 8
.type %s_kernel,@function
%s_kernel:
'''
FOOTER = '''.section .rodata,"a"
.p2align 6
.amdhsa_kernel %s_kernel
  .amdhsa_next_free_vgpr 512
  .amdhsa_next_free_sgpr 102
  .amdhsa_accum_offset 256
  .amdhsa_group_segment_fixed_size 0
  .amdhsa_kernarg_size 72
  .amdhsa_user_sgpr_count 2
  .amdhsa_user_sgpr_kernarg_segment_ptr 1
  .amdhsa_system_sgpr_workgroup_id_x 1
.end_amdhsa_kernel
'''


def build(**opt):
    OPT.update(opt)
    g = Gen()
    body = g.kernel()
    extra = '; stamps: %s\n' % OPT['stamps'] if OPT['stamps'] else ''
    return extra + HEADER % (LDS_BYTES, NAME, NAME, NAME) + body + FOOTER % NAME


if __name__ == '__main__':
    out = sys.argv[1] if len(sys.argv) > 1 else 'k2.s'
    opt = {}
    for a in sys.argv[2:]:
        k, v = a.split('=')
        opt[k] = v if k in ('stamps', 'poison', 'hld', 'hstf', 'ost') else float(v) if k in ('rdhi', 'lam') else tuple(int(x) for x in v.split(',')) if k in ('pfu', 'su', 'pzu') else int(v)
    open(out, 'w').write(build(**opt))
    print('wrote', out)
```
